```python
import torch

def _softmax(x, axis=-1):
    return torch.softmax(x, dim=axis)
def _gelu(x):
    return torch.nn.functional.gelu(x, approximate="tanh")
def _silu(x):
    return torch.nn.functional.silu(x)
def _sigmoid(x):
    return torch.sigmoid(x)
def _layernorm(x, axis=-1, eps=1e-5):
    m = x.mean(dim=axis, keepdim=True)
    v = x.var(dim=axis, keepdim=True, unbiased=False)
    return (x - m) / torch.sqrt(v + eps)
def _scatter_add(tgt, idx, src, axis=0):
    return tgt.clone().index_add_(axis, idx, src)
def _segment_sum(src, seg, n):
    out = torch.zeros((n,) + src.shape[1:], dtype=src.dtype)
    return out.index_add_(0, seg, src)
def _pad(x, pw):
    flat = tuple(v for pair in reversed(pw) for v in pair)
    return torch.nn.functional.pad(x, flat)

kernel_name = 'interleave_layers__gqa_block_cached__glu_gated_reglu__decode'

def setup_inputs():

    _w = (lambda a: (lambda t: t.to(torch.bfloat16) if t.is_floating_point() else t)(torch.as_tensor(a)))
    def _A_setup():
        B, Sq, D = 2, 1, 512
        Hq, Hkv, Sk, Dh = 32, 8, 8192, 128
        assert Hq % Hkv == 0, (Hq, Hkv)
        return {
            "x": _w((lambda *s: torch.randn(*s, dtype=torch.bfloat16) * 0.05)(B, Sq, D)),
            "k_cache": _w((lambda *s: torch.randn(*s, dtype=torch.bfloat16) * 1.6)(B, Hkv, Sk, Dh)),
            "v_cache": _w((lambda *s: torch.randn(*s, dtype=torch.bfloat16) * 0.8)(B, Hkv, Sk, Dh)),
            "wq": _w((lambda *s: torch.randn(*s, dtype=torch.bfloat16) * 1.6)(D, Hq * Dh) * (D ** -0.5)),
            "wo": _w((lambda *s: torch.randn(*s, dtype=torch.bfloat16) * 0.8)(Hq * Dh, D) * ((Hq * Dh) ** -0.5)),
        }
    _A_in = _A_setup()

    def _B_setup():
        B, S, D, F = 2, 1, 512, 1792
        return {
            "x": _w((lambda *s: torch.randn(*s, dtype=torch.bfloat16) * 0.05)(B, S, D)),
            "W_gate": _w((lambda *s: torch.randn(*s, dtype=torch.bfloat16) * 0.4)(D, F) * (2.0 / D) ** 0.5),
            "W_up": _w((lambda *s: torch.randn(*s, dtype=torch.bfloat16) * 0.4)(D, F) * (2.0 / D) ** 0.5),
            "W_down": _w((lambda *s: torch.randn(*s, dtype=torch.bfloat16) * 0.4)(F, D) * (1.0 / F) ** 0.5),
        }
    _B_in = _B_setup()

    return {
        "A_x": _A_in["x"],
        "A_k_cache": _A_in["k_cache"],
        "A_v_cache": _A_in["v_cache"],
        "A_wq": _A_in["wq"],
        "A_wo": _A_in["wo"],
        "B_x": _B_in["x"],
        "B_W_gate": _B_in["W_gate"],
        "B_W_up": _B_in["W_up"],
        "B_W_down": _B_in["W_down"],
    }

def reference(A_x, A_k_cache, A_v_cache, A_wq, A_wo, B_x, B_W_gate, B_W_up, B_W_down):
    def _A_ref(x, k_cache, v_cache, wq, wo):
        B, Sq, D = x.shape
        Hq, Dh = 32, 128
        Hkv = k_cache.shape[1]
        rep = Hq // Hkv
        q = (lambda x, *d: x.permute(*d))((x @ wq).reshape(B, Sq, Hq, Dh), 0, 2, 1, 3)
        k = (lambda x, n, axis: torch.repeat_interleave(x, n, dim=axis))(k_cache, rep, axis=1)
        v = (lambda x, n, axis: torch.repeat_interleave(x, n, dim=axis))(v_cache, rep, axis=1)
        scores = torch.einsum("bhqd,bhkd->bhqk", q, k) * (Dh ** -0.5)
        p = _softmax(scores, axis=-1)
        o = torch.einsum("bhqk,bhkd->bhqd", p, v)
        return (lambda x, *d: x.permute(*d))(o, 0, 2, 1, 3).reshape(B, Sq, Hq * Dh) @ wo

    def _B_ref(x, W_gate, W_up, W_down):
        gate = torch.einsum("bsd,df->bsf", x, W_gate)
        up = torch.einsum("bsd,df->bsf", x, W_up)
        gate = gate * (lambda x, dt: x.to(dt))(gate > 0, gate.dtype)
        h = gate * up
        return torch.einsum("bsf,fd->bsd", h, W_down)

    x = A_x
    x = x + _A_ref(_layernorm(x, axis=-1), A_k_cache, A_v_cache, A_wq, A_wo)
    x = x + _B_ref(_layernorm(x, axis=-1), B_W_gate, B_W_up, B_W_down)
    x = x + _A_ref(_layernorm(x, axis=-1), A_k_cache, A_v_cache, A_wq, A_wo)
    x = x + _B_ref(_layernorm(x, axis=-1), B_W_gate, B_W_up, B_W_down)
    return x
```

```python
import re

TRANS = ("v_exp_f32", "v_log_f32", "v_rcp_f32", "v_rsq_f32", "v_sqrt_f32", "v_sin_f32", "v_cos_f32")

def regs_of(tok):
    tok = tok.strip()
    tok = tok.lstrip("-")
    if tok.startswith("abs(") or tok.startswith("|"):
        tok = tok.replace("abs(", "").replace(")", "").replace("|", "")
    m = re.fullmatch(r"([vsa])\[(\d+):(\d+)\]", tok)
    if m:
        return {(m.group(1), i) for i in range(int(m.group(2)), int(m.group(3)) + 1)}
    m = re.fullmatch(r"([vsa])(\d+)", tok)
    if m:
        return {(m.group(1), int(m.group(2)))}
    if tok == "vcc":
        return {("s", "vcc_lo"), ("s", "vcc_hi")}
    if tok in ("vcc_lo", "vcc_hi"):
        return {("s", tok)}
    if tok == "exec":
        return {("s", "exec_lo"), ("s", "exec_hi")}
    if tok in ("exec_lo", "exec_hi", "m0"):
        return {("s", tok)}
    return set()

class Ins:
    def __init__(self, line):
        self.line = line
        s = line.split(";")[0].strip()
        self.is_ins = bool(s) and not s.endswith(":") and not s.startswith(".")
        self.op = ""
        self.w = set(); self.r = set(); self.c = set(); self.ab = set()
        self.states = 0
        if not self.is_ins:
            return
        parts = s.split(None, 1)
        self.op = op = parts[0]
        rest = parts[1] if len(parts) > 1 else ""
        ops = [x.strip() for x in rest.split(",")] if rest else []
        mods = ""
        if ops:
            l = ops[-1].split()
        rest2 = re.sub(r"quad_perm:\[[^\]]*\]", "quad_perm", rest)
        ops = [x.strip() for x in rest2.split(",")] if rest2 else []
        if ops:
            l = ops[-1].split()
            ops[-1] = l[0]
            mods = " ".join(l[1:])
        self.mods = mods
        self.states = 1
        if op == "s_nop":
            self.states = int(ops[0], 0) + 1
        R = [regs_of(o) for o in ops]
        self.valu = op.startswith("v_") and not op.startswith("v_mfma") and not op.startswith("v_smfmac")
        self.mfma = op.startswith("v_mfma")
        self.dpp = "_dpp" in op
        self.perml = op.startswith("v_permlane")
        self.trans = op.replace("_e32", "").replace("_e64", "") in TRANS
        self.vmem = op.startswith(("buffer_", "global_", "flat_"))
        self.ds = op.startswith("ds_")
        self.salu = op.startswith("s_")
        self.lane = op.startswith(("v_readlane", "v_readfirstlane", "v_writelane"))
        self.ldsdma = self.vmem and (" lds" in (" " + mods) or "load_lds" in op)
        self.passes = 0
        if self.mfma:
            self.passes = 2 if "4x4x4" in op else (8 if "32x32" in op else 4)
            self.w = R[0]; self.ab = R[1] | R[2]; self.c = R[3]; self.r = self.ab | self.c
        elif self.perml:
            self.w = R[0] | R[1]; self.r = R[0] | R[1]
        elif self.valu:
            self.w = R[0]
            srcs = R[1:]
            if op.startswith(("v_add_co", "v_sub_co", "v_addc_co", "v_subb_co")):
                self.w = R[0] | R[1]; srcs = R[2:]
            self.r = set().union(*srcs) if srcs else set()
            self.dsrc = R[1] if self.dpp else set()
            if op.startswith(("v_fmac", "v_writelane", "v_dot2c")) or self.dpp:
                self.r |= R[0]
        elif self.vmem:
            if "store" in op or self.ldsdma or ("atomic" in op):
                self.r = set().union(*R) if R else set()
                if "atomic" in op and "sc0" in mods:
                    self.w = R[0]
            elif op in ("buffer_inv", "buffer_wbl2"):
                pass
            else:
                self.w = R[0]; self.r = set().union(*R[1:])
            if self.ldsdma:
                self.r |= {("s", "m0")}
            self.wide_store = ("store" in op) and (op.endswith("x4") or op.endswith("x3"))
            self.sdata = set()
            if self.wide_store:
                self.sdata = R[0] if op.startswith("buffer") else R[1]
        elif self.ds:
            if op.startswith(("ds_read", "ds_bpermute", "ds_permute", "ds_swizzle")):
                self.w = R[0]; self.r = set().union(*R[1:])
            else:
                self.r = set().union(*R)
        elif self.salu:
            if op.startswith(("s_cmp", "s_cbranch", "s_branch", "s_waitcnt", "s_barrier", "s_nop", "s_setprio", "s_endpgm", "s_sleep", "s_bitcmp")):
                self.r = set().union(*R) if R else set()
            else:
                self.w = R[0] if R else set()
                self.r = set().union(*R[1:]) if len(R) > 1 else set()

def need(p, c):
    n = 0
    isv = lambda S: {x for x in S if x[0] in "va"}
    iss = lambda S: {x for x in S if x[0] == "s"}
    if p.valu:
        vw = isv(p.w)
        if vw & c.r:
            if c.dpp and (vw & c.dsrc): n = max(n, 2)
            if c.perml: n = max(n, 2)
            if c.mfma: n = max(n, 2)
            if c.op.startswith(("v_readlane", "v_readfirstlane")): n = max(n, 1)
            if p.trans and c.valu and not c.trans: n = max(n, 1)
            if p.trans and c.valu and c.trans: n = max(n, 1)
        sw = iss(p.w)
        if sw & c.r:
            if c.vmem: n = max(n, 5)
            if c.valu: n = max(n, 4 if c.lane else 2)
            if c.salu and not c.op.startswith("s_cbranch"): n = max(n, 1)
        if c.op.startswith("v_cndmask") and ("s", "vcc_lo") in sw and ("s", "vcc_lo") in c.r: n = max(n, 2)
    if p.mfma:
        t = {2: 0, 4: 1, 8: 2}[p.passes]
        if c.mfma:
            if p.w & c.ab: n = max(n, (5, 8, 12)[t])
            if p.w & c.c:
                if p.w == c.c and p.passes == c.passes: n = max(n, (2, 0, 0)[t])
                else: n = max(n, (4, 6, 10)[t])
            if (p.w & c.w) and not (p.w & c.c): n = max(n, (5, 8, 12)[t])
        elif c.valu or c.vmem or c.ds:
            if p.w & (c.r | c.w): n = max(n, (5, 8, 12)[t])
            if c.valu and (p.c & c.w): n = max(n, (1, 3, 7)[t])
    if p.salu and ("s", "m0") in p.w and c.vmem and c.ldsdma: n = max(n, 1)
    if p.vmem and getattr(p, "wide_store", False) and (p.sdata & c.w):
        n = max(n, 2)
    return n

def fix(text):
    out = []
    inserted = 0
    for line in text.split("\n"):
        c = Ins(line)
        if c.is_ins:
            dist = 0
            pad = 0
            for p in reversed(out):
                if not p.is_ins:
                    continue
                if dist >= 20:
                    break
                k = need(p, c)
                if k > dist:
                    pad = max(pad, k - dist)
                dist += p.states
            while pad > 0:
                k = min(pad, 16)
                out.append(Ins(f"    s_nop {k-1}"))
                inserted += 1
                pad -= k
        out.append(c)
    return "\n".join(i.line for i in out), inserted
```

```python
import sys, math, struct
from asmlib import *
import hazard

NAME = "interleave_layers__gqa_block_cached__glu_gated_reglu__decode_kernel"

def f32(x):
    return "0x%08x" % struct.unpack("<I", struct.pack("<f", x))[0]

DEFAULT = dict(
    kvf="nt",
    wf="",
    wd_at="afterY",
    pf_at="wo",
    l2pf=True,
    ack=True,
    force_slow=False,
    diag=False,
    prefetch=True,
    spin=8000000,
    bias=0.0,
    x_stop=None,
    x_nogather=False,
    x_nowq=False,
    qbar=True,
    b1first=False,
    pol=0,
    klin=True,
    esmall=True,
    kpre=2,
    spec=True,
    inl=True,
    hint='',
    wo_at='X',
    aover=True,
    wdb=True,
    qkearly=True,
    clr2="none",
    x_noclr=False,
    x_nopub=False,

    x_pad=None,
    x_dbg=None,
    b1at=12,
    kwait=48,
)

WVS = 11264
T_WQ, T_WO, T_FF, T_WD = 0, 2048, 6144, 10240
OB = 8 * WVS
XB = OB + 16384
ONES = XB + 2048
QL = ONES + 1024
MLB = QL + 1024 + 256
RQ = MLB + 256
RQC = RQ + 2048
RW = RQC + 2048
RG = RW + 2048
RGC = RG + 2048
RD = RGC + 2048
DUM = RD + 2048
LDS_BYTES = DUM + (DUM - RQ) + 1024
F0 = 0x10000
W_ML, W_H, W_Y, W_Z, W_Q2 = F0, F0 + 0x10000, F0 + 0x20000, F0 + 0x30000, F0 + 0x40000
LSTR = 0x8000
W_Q1 = 0x58000
W_GF = 0x8000
W_HT = 0x9000
W_O = 0x70000
OSTR = 0x50000
OSLOT = 1024
W_DIAG = 0x200000
WS_BYTES = 0x400000
TAG_STEP = 0x9E3779B0


def gen(**kw):
    o = dict(DEFAULT); o.update(kw)
    a = Asm()
    kvf, wf = o["kvf"], o["wf"]
    sW = "s3"
    sK, sV, sWS, sWq, sX, sWo, sWg, sWu, sOut = [f"s[{i}:{i+3}]" for i in (28, 32, 36, 40, 44, 48, 52, 56, 60)]
    sWd = "s[4:7]"
    sG, sIdx, sB, sS, sO, sPure, sTag, sCnt, sL, sLO = [f"s{i}" for i in range(64, 74)]
    sT0, sT1, sT2, sT3 = "s74", "s75", "s76", "s77"
    sM0 = "s78"
    sYo = "s79"
    sMode = sTag
    sKh = "s101"
    c4k = {0: "0", 1: "s80", 2: "s81", 3: "s82"}
    sPlo, sPhi = "s83", "s84"
    sXcc = "s85"
    mC2, m16, m8, mY, mZ = "s[86:87]", "s[88:89]", "s[90:91]", "s[92:93]", "s[96:97]"
    sSt = "s[98:99]"
    vL = "v0"
    names = """vKG vC vT vT0 vT1 vTq vR4 vL16 vW4 vWg vWd vR4c vGS vOw vOw2 vOr vMLw vMLr vXw vXr
               aK aV aQ2 aO aML aY aH aZ aX1 aFin aRes pO pML pY pZ pS pQ pOut
               vDma vHalf vScale vInv vRes vX1 vStamp vA vEp""".split()
    R = {n: f"v{i+1}" for i, n in enumerate(names)}
    globals().update(R)
    assert len(names) + 1 <= 48, len(names)
    WB = 48
    XO = 64
    DD = 88
    TT = 104
    KB = 124
    VB = 188
    v = lambda i: f"v{i}"
    vr = lambda i, n: f"v[{i}:{i+n-1}]"
    DPP = "row_mask:0xf bank_mask:0xf"
    CHK = v(TT + 19)
    vDum = v(TT + 18)

    def stamp(i, layered=False):
        if o["diag"] is True or (o["diag"] == "light" and i == 21) or (isinstance(o["diag"], tuple) and (i in o["diag"] or i == 21)):
            a(f"    s_mov_b32 m0, s100\n    v_writelane_b32 {vStamp}, s98, m0\n    s_memrealtime {sSt}")
            if layered:
                a(f"    s_lshr_b32 s100, {sL}, 11\n    s_or_b32 s100, s100, {i}")
            else:
                a(f"    s_mov_b32 s100, {i}")
    stampL = lambda i: stamp(i, True)

    def srd(dst, lo, off_sgpr, size):
        d = int(dst[2:dst.index(":")])
        if off_sgpr is None:
            a(f"    s_mov_b32 s{d}, s{lo}\n    s_mov_b32 s{d+1}, s{lo+1}\n    s_mov_b32 s{d+2}, {size}")
        else:
            a(f"    s_add_u32 s{d}, s{lo}, {off_sgpr}\n    s_addc_u32 s{d+1}, s{lo+1}, 0\n    s_sub_u32 s{d+2}, {size}, {off_sgpr}")
        a(f"    s_mov_b32 s{d+3}, 0x20000")

    tail = Asm()
    tail2 = Asm()

    def into(stream, fn, *args):
        nonlocal a
        old, a = a, stream
        fn(*args)
        a = old

    def execm(m):
        a(f"    s_mov_b64 exec, {m}")

    def spin_tail(lbl):
        a(f"    s_cbranch_vccnz {lbl}_again\n{lbl}_ok:")
        tail2(f"{lbl}_again:\n    s_sub_u32 {sCnt}, {sCnt}, 1\n    s_cbranch_scc0 {lbl}\n    s_mov_b32 {sCnt}, 0\n    s_branch {lbl}_ok")

    def poll(loads, lbl, mid=None, mid2=None, younger=0, once=None, after=None):
        a(f"{lbl}:")
        for l, _ in loads:
            a("    " + l)
        if mid:
            mid()
        first = True
        pend = []
        for i, (_, regs) in enumerate(loads):
            a(f"    s_waitcnt vmcnt({len(loads)-1-i+younger})")
            if i == 0 and mid2:
                mid2()
            pend += regs
            last = i == len(loads) - 1 or (after and i in after)
            while len(pend) >= (3 if first else 2) or (last and pend):
                if first:
                    if len(pend) >= 3:
                        a(f"    v_max3_u32 {CHK}, {pend[0]}, {pend[1]}, {pend[2]}"); pend = pend[3:]
                    elif len(pend) == 2:
                        a(f"    v_max_u32 {CHK}, {pend[0]}, {pend[1]}"); pend = []
                    else:
                        a(f"    v_mov_b32 {CHK}, {pend[0]}"); pend = []
                    first = False
                elif len(pend) >= 2:
                    a(f"    v_max3_u32 {CHK}, {pend[0]}, {pend[1]}, {CHK}"); pend = pend[2:]
                else:
                    a(f"    v_max_u32 {CHK}, {pend[0]}, {CHK}"); pend = []
            if after and i in after:
                after[i]()
        a(f"    v_cmp_eq_u32 vcc, -1, {CHK}")
        if once:
            a(f"    s_cbranch_vccnz {once}\n    s_branch {once}_ok")
        else:
            spin_tail(lbl)

    def local_store(ins, lbl):
        if o["force_slow"]:
            a("    " + ins.replace("\n    s_mov_b64 exec, 1\n", " sc1\n    s_mov_b64 exec, 1\n") + " sc1")
            return
        a(f"    s_cmp_eq_u32 {sPure}, 0\n    s_cbranch_scc1 {lbl}_wt\n    {ins}\n{lbl}_e:")
        tail2(f"{lbl}_wt:\n    " + ins.replace("\n    s_mov_b64 exec, 1\n", " sc1\n    s_mov_b64 exec, 1\n") + f" sc1\n    s_branch {lbl}_e")

    vHt = v(TT + 10)
    def hint_post(use):
        a(f"""    s_lshr_b32 {sT0}, {sL}, {15 - 11}
    s_lshl_b32 {sT3}, {sG}, 7
    s_add_u32 {sT0}, {sT0}, {sT3}
    s_add_u32 {sT0}, {sT0}, {W_HT + use * 1024}
    s_lshl_b32 {sT3}, {sIdx}, 2
    s_add_u32 {sT3}, {sT3}, {sT0}
    buffer_store_dword {vEp}, off, {sWS}, {sT3}""")
    def hint_wait(lbl):
        a(f"""    s_cmp_eq_u32 {sPure}, 0
    s_cbranch_scc1 {lbl}_ok
    s_mov_b32 exec_hi, 0
{lbl}:
    buffer_load_dword {vHt}, {aV}, {sWS}, {sT0} offen sc1
    s_waitcnt vmcnt(0)
    v_cmp_ne_u32 vcc, {vHt}, {vEp}""")
        spin_tail(lbl)
        a("    s_mov_b64 exec, -1")

    def dma(srdn, tile_off, soff):
        a(f"    s_add_u32 m0, {sM0}, {tile_off}")
        a(f"    buffer_load_dwordx4 {vA}, {srdn}, {soff} offen {wf} lds")

    def tr_read(dst, tile_off):
        a(f"    ds_read_b64_tr_b16 {vr(dst,2)}, {vT} offset:{tile_off}")
        a(f"    ds_read_b64_tr_b16 {vr(dst+2,2)}, {vT} offset:{tile_off+512}")

    def red8(addr, unit0, tmp):
        for i in range(4):
            a(f"    ds_read2st64_b32 {vr(tmp+2*i,2)}, {addr} offset0:{unit0+2*i} offset1:{unit0+2*i+1}")

    def sum8(dst, tmp, extra=None, later=0):
        for i in range(4):
            a(f"    s_waitcnt lgkmcnt({3 - i + later})")
            a(f"    v_add_f32 {v(tmp+2*i)}, {v(tmp+2*i)}, {v(tmp+2*i+1)}")
            if i == 1:
                a(f"    v_add_f32 {v(tmp)}, {v(tmp)}, {v(tmp+2)}")
                if extra:
                    a(f"    v_add_f32 {v(tmp)}, {v(tmp)}, {extra}")
        a(f"    v_add_f32 {v(tmp+4)}, {v(tmp+4)}, {v(tmp+6)}")
        a(f"    v_add_f32 {dst}, {v(tmp)}, {v(tmp+4)}")

    def ln_stats(S2, S1, mu, rstd):
        a(f"    v_mul_f32 {mu}, {f32(1/512)}, {S1}")
        a(f"    v_mul_f32 {S2}, {f32(1/512)}, {S2}")
        a(f"    v_fma_f32 {S2}, -{mu}, {mu}, {S2}")
        a(f"    v_max_f32 {S2}, 0, {S2}")
        a(f"    v_add_f32 {S2}, {f32(1e-5)}, {S2}")
        a(f"    v_rsq_f32 {rstd}, {S2}")

    def pack16(d, S, T):
        a(f"    v_mov_b32_dpp {T}, {S} quad_perm:[1,1,3,3] {DPP}")
        a(f"    v_cvt_pk_bf16_f32 {v(d)}, {S}, {T}")
        for i in (1, 2, 3):
            a(f"    v_mov_b32_dpp {v(d+i)}, {v(d)} row_shl:{2*i} {DPP}")

    def quad4(d):
        for i in (1, 2, 3):
            a(f"    v_mov_b32_dpp {v(d+i)}, {v(d)} quad_perm:[{i},{i},{i},{i}] {DPP}")

    def gather_x(addr, soff, lbl, st, mid2=None, xw=None):
        Y = XO + 8
        poll([(f"buffer_load_dwordx4 {vr(Y+4*i,4)}, {addr}, {sWS}, {soff} offen offset:{128*i} sc1",
               [v(Y + 4 * i + j) for j in range(4)]) for i in range(4)], lbl, None, mid2,
             after={1: lambda: [a(f"    v_pk_add_f32 {vr(Y+j,2)}, {vr(Y+j,2)}, {vr(Y+4+j,2)}") for j in (0, 2)]} if o["spec"] else None)
        st()
        for j in (0, 2):
            if not o["spec"]:
                a(f"    v_pk_add_f32 {vr(Y+j,2)}, {vr(Y+j,2)}, {vr(Y+4+j,2)}")
            a(f"    v_pk_add_f32 {vr(Y+8+j,2)}, {vr(Y+8+j,2)}, {vr(Y+12+j,2)}")
        for j in (0, 2):
            a(f"    v_pk_add_f32 {vr(Y+j,2)}, {vr(Y+j,2)}, {vr(Y+8+j,2)}")
        a(f"""    v_permlane32_swap_b32 {v(Y)}, {v(Y+2)}
    v_permlane32_swap_b32 {v(Y+1)}, {v(Y+3)}
    v_pk_add_f32 {vr(Y,2)}, {vr(Y,2)}, {vr(Y+2,2)}
    v_cvt_pk_bf16_f32 {v(Y)}, {v(Y)}, {v(Y+1)}
    ds_write_b32 {xw or vXw}, {v(Y)}
    ds_read_b128 {vr(XO,4)}, {vXr}
    ds_read_b128 {vr(XO+4,4)}, {vXr} offset:64""")

    def sum_cols(addr, soff, lbl, dst):
        poll([(f"buffer_load_dword {v(TT+i)}, {addr}, {sWS}, {soff} offen offset:{128*i} sc1", [v(TT + i)]) for i in range(4)], lbl)
        a(f"""    v_add_f32 {v(TT)}, {v(TT)}, {v(TT+1)}
    v_add_f32 {v(TT+2)}, {v(TT+2)}, {v(TT+3)}
    v_add_f32 {dst}, {v(TT)}, {v(TT+2)}
    v_mov_b32 {v(TT)}, {dst}
    v_permlane32_swap_b32 {dst}, {v(TT)}
    v_add_f32 {dst}, {dst}, {v(TT)}""")

    def two_tile_write(base):
        a(f"    ds_write_b128 {vWg}, {vr(DD,4)} offset:{base - RQ}")
        a(f"    ds_write_b128 {vWg}, {vr(DD+4,4)} offset:{base - RQ + 128}")

    def stats_write(base):
        a(f"    ds_write_b128 {vL16}, {vr(DD+8,4)} offset:{base - RQ + 2048 + 192}")
        a("    s_waitcnt lgkmcnt(0)\n    s_barrier")

    def two_tile_reduce(base, n, aD, aC):
        st = v(TT + 8)
        S2, S1, mu, rs, S, CS = v(DD), v(DD + 1), v(DD + 2), v(DD + 3), v(DD + 4), v(DD + 5)
        u = (base - RQ) // 256
        h = n // 2
        a(f"    ds_read_b32 {st}, {vGS} offset:{base - RQ}")
        for i in range(h):
            a(f"    ds_read2st64_b32 {vr(TT+2*i,2)}, {aD} offset0:{u+2*i} offset1:{u+2*i+1}")
        for i in range(h):
            a(f"    ds_read2st64_b32 {vr(XO+2*i,2)}, {aC} offset0:{u+2*i} offset1:{u+2*i+1}")
        chain = [f"v_add_f32_dpp {st}, {st}, {st} quad_perm:[1,0,3,2] {DPP}",
                 f"v_add_f32_dpp {st}, {st}, {st} quad_perm:[2,3,0,1] {DPP}",
                 f"v_add_f32_dpp {st}, {st}, {st} row_half_mirror {DPP}",
                 f"v_mul_f32_dpp {mu}, {st}, {vInv} row_newbcast:8 {DPP}\n    v_mul_f32_dpp {S2}, {st}, {vInv} row_newbcast:0 {DPP}",
                 f"v_fma_f32 {S2}, -{mu}, {mu}, {S2}\n    v_max_f32 {S2}, 0, {S2}\n    v_add_f32 {S2}, {f32(1e-5)}, {S2}\n    v_rsq_f32 {rs}, {S2}"]
        if n == 8:
            fill = [f"s_waitcnt lgkmcnt(6)\n    v_pk_add_f32 {vr(TT,2)}, {vr(TT,2)}, {vr(TT+2,2)}",
                    f"s_waitcnt lgkmcnt(4)\n    v_pk_add_f32 {vr(TT+4,2)}, {vr(TT+4,2)}, {vr(TT+6,2)}",
                    f"s_waitcnt lgkmcnt(2)\n    v_pk_add_f32 {vr(XO,2)}, {vr(XO,2)}, {vr(XO+2,2)}",
                    f"v_pk_add_f32 {vr(TT,2)}, {vr(TT,2)}, {vr(TT+4,2)}\n    s_waitcnt lgkmcnt(0)\n    v_pk_add_f32 {vr(XO+4,2)}, {vr(XO+4,2)}, {vr(XO+6,2)}",
                    f"v_pk_add_f32 {vr(XO,2)}, {vr(XO,2)}, {vr(XO+4,2)}\n    v_add_f32 {S}, {v(TT)}, {v(TT+1)}\n    v_add_f32 {CS}, {v(XO)}, {v(XO+1)}"]
        else:
            fill = [f"s_waitcnt lgkmcnt(2)\n    v_pk_add_f32 {vr(TT,2)}, {vr(TT,2)}, {vr(TT+2,2)}",
                    f"s_waitcnt lgkmcnt(0)\n    v_pk_add_f32 {vr(XO,2)}, {vr(XO,2)}, {vr(XO+2,2)}",
                    f"v_add_f32 {S}, {v(TT)}, {v(TT+1)}\n    v_add_f32 {CS}, {v(XO)}, {v(XO+1)}", None, None]
        a(f"    s_waitcnt lgkmcnt({2*h})")
        for c_, f_ in zip(chain, fill):
            a("    " + c_)
            if f_:
                a("    " + f_)
        a(f"    v_fma_f32 {S}, -{mu}, {CS}, {S}\n    v_mul_f32 {S}, {S}, {rs}")
        return S

    def add_bf16x8(d, A, B):
        for i in range(4):
            x, y = TT + 4 * (i & 1), TT + 4 * (i & 1) + 2
            a(f"""    v_lshlrev_b32 {v(x)}, 16, {A[i]}
    v_and_b32 {v(x+1)}, 0xffff0000, {A[i]}
    v_lshlrev_b32 {v(y)}, 16, {B[i]}
    v_and_b32 {v(y+1)}, 0xffff0000, {B[i]}
    v_pk_add_f32 {vr(x,2)}, {vr(x,2)}, {vr(y,2)}
    v_cvt_pk_bf16_f32 {v(d+i)}, {v(x)}, {v(x+1)}""")

    def r64_addr(shift):
        t = v(TT + 7)
        a(f"""    v_bfe_u32 {vA}, {vL}, 2, 2
    v_lshl_add_u32 {vA}, {vKG}, 3, {vA}
    v_lshlrev_b32 {vA}, {shift}, {vA}
    v_and_b32 {t}, 1, {vKG}
    v_lshlrev_b32 {t}, 1, {t}
    v_xor_b32 {t}, {t}, {vL}
    v_and_b32 {t}, 3, {t}
    v_lshl_add_u32 {vA}, {t}, 4, {vA}""")

    cO, cF, cQ = v(TT + 12), v(TT + 13), v(TT + 14)
    def slot_addrs():
        t2, t3, t4 = v(TT + 2), v(TT + 3), v(TT + 4)
        a(f"""    s_lshl_b32 {sT2}, {sO}, 10
    s_add_u32 {sT2}, {sT2}, {W_O}
    v_lshl_add_u32 {cO}, {vL}, 4, {sT2}
    v_mov_b32 {t2}, {sO}
    v_mov_b32 {t3}, {sYo}
    v_cmp_lt_u32 vcc, 1, {vKG}
    v_cndmask_b32 {t2}, {t2}, {t3}, vcc
    v_lshrrev_b32 {t3}, 3, {vL}
    v_lshlrev_b32 {t4}, 15, {t3}
    v_lshl_add_u32 {cF}, {t2}, 7, {t4}
    v_and_b32 {t4}, 7, {vL}
    v_lshl_add_u32 {cF}, {t4}, 4, {cF}
    v_add_u32 {cF}, {F0}, {cF}
    s_lshl_b32 {sT2}, {sO}, 7
    s_add_u32 {sT2}, {sT2}, {W_Q2}
    v_lshlrev_b32 {t3}, 22, {t3}
    v_lshl_add_u32 {cQ}, {t4}, 4, {t3}
    v_add_u32 {cQ}, {sT2}, {cQ}
    s_mov_b32 {sT3}, {OSTR}""")

    def kshuffle():
        if not o["klin"]:
            return
        aw, ar = DD, DD + 4
        a(f"""    s_add_u32 {sT1}, {sM0}, {T_WO}
    v_xor_b32 {v(aw)}, {vC}, {vKG}
    v_lshlrev_b32 {v(ar)}, 4, {v(aw)}
    v_lshl_add_u32 {v(aw)}, {vKG}, 8, {v(ar)}
    v_lshl_add_u32 {v(ar)}, {vC}, 8, {v(ar)}
    v_add_u32 {v(aw)}, {sT1}, {v(aw)}
    v_add_u32 {v(ar)}, {sT1}, {v(ar)}""")
        for j in (1, 2, 3):
            a(f"    v_xor_b32 {v(aw+j)}, {64*j}, {v(aw)}\n    v_xor_b32 {v(ar+j)}, {64*j}, {v(ar)}")
        for u in range(4):
            h = (u & 1) * 4096
            if u:
                a("    s_waitcnt lgkmcnt(6)")
            for j in range(4):
                a(f"    ds_write_b128 {v(aw+j)}, {vr(KB+16*u+4*j,4)} offset:{h + 1024*j}")
            for t in range(4):
                a(f"    ds_read_b128 {vr(KB+16*u+4*t,4)}, {v(ar+t)} offset:{h}")

    def kload(i):
        if o["klin"]:
            a(f"    buffer_load_dwordx4 {vr(KB+16*(i&3)+4*(i>>2),4)}, {aK}, {sK}, {c4k[i>>2]} offen offset:{(i&3)*1024} {kvf}")
            return
        u, t = i // 4, i % 4
        a(f"    buffer_load_dwordx4 {vr(KB+4*i,4)}, {aK}, {sK}, 0 offen offset:{u*1024+t*64} {kvf}")

    t0, t1, t2, t3, t4, t5 = [v(TT + i) for i in range(6)]
    a(f"""    s_cmp_ge_u32 s2, 256
    s_cbranch_scc1 L_end
    s_load_dwordx16 s[4:19], s[0:1], 0
    s_load_dwordx8 s[20:27], s[0:1], 64
    v_lshrrev_b32 v1, 6, v0
    v_and_b32 {vL}, 63, v0
    v_readfirstlane_b32 {sW}, v1""")
    if o["diag"]:
        a(f"    v_mov_b32 {vStamp}, 0\n    s_memrealtime {sSt}\n    s_mov_b32 s100, 0")
    a(f"""    s_lshr_b32 {sIdx}, s2, 3
    s_and_b32 {sG}, s2, 7
    s_lshr_b32 {sB}, s2, 7
    s_and_b32 {sS}, {sIdx}, 15
    s_and_b32 {sKh}, {sIdx}, 1
    v_lshrrev_b32 {vKG}, 4, {vL}
    v_and_b32 {vC}, 15, {vL}
""")
    if o["klin"]:
        a(f"    v_lshlrev_b32 {aK}, 4, {vL}")
    else:
        a(f"""    ; K lane address: (c>>2)*4096 + (c&3)*256 + kg*16
    v_bfe_u32 {aK}, {vL}, 2, 2
    v_lshlrev_b32 {aK}, 12, {aK}
    v_and_b32 {t1}, 3, {vL}
    v_lshl_add_u32 {aK}, {t1}, 8, {aK}
    v_lshl_add_u32 {aK}, {vKG}, 4, {aK}""")
    a(f"""    ; kv byte offset: ((8b + g)*16 + s)*8 + w) << 14
    s_lshl3_add_u32 {sT0}, {sB}, {sG}
    s_lshl4_add_u32 {sT0}, {sT0}, {sS}
    s_lshl3_add_u32 {sT0}, {sT0}, {sW}
    s_lshl_b32 {sT0}, {sT0}, 14
    s_mov_b32 s31, 0x20000
    s_sub_u32 s30, 33554432, {sT0}
    s_cmp_lt_u32 {sW}, 4
    s_cbranch_scc0 L_young
    s_lshl2_add_u32 {sT1}, {sKh}, {sW}
    s_lshl_b32 {sT1}, {sT1}, 19
    s_lshr_b32 {sT2}, {sIdx}, 1
    s_lshl4_add_u32 {sT2}, {sG}, {sT2}
    s_lshl_b32 {sT2}, {sT2}, 6
    s_add_u32 {sT1}, {sT1}, {sT2}
    s_mul_i32 {sT3}, {sW}, {2*WVS}""")
    r64_addr(13)
    a(f"""    s_mov_b32 s43, 0x20000
    s_sub_u32 s42, 4194304, {sT1}
    s_add_u32 m0, {sT3}, {T_WQ}
    s_waitcnt lgkmcnt(0)
    s_add_u32 s40, s10, {sT1}
    s_addc_u32 s41, s11, 0""")
    if o["diag"]:
        stamp(2)
        a(f"    s_add_u32 m0, {sT3}, {T_WQ}")
    for k in range(0 if o["x_nowq"] else 4):
        if k:
            a(f"    s_add_u32 m0, {sT3}, {(k >> 1) * WVS + T_WQ + (k & 1) * 1024}")
            a(f"    s_mov_b32 {sT2}, {((k >> 1) * 32 + (k & 1) * 4) * 8192}")
        a(f"    buffer_load_dwordx4 {vA}, {sWq}, {sT2 if k else 0} offen {wf} lds")
    a(f"    s_add_u32 s28, s6, {sT0}\n    s_addc_u32 s29, s7, 0")
    def common2():
        a(f"""    v_lshlrev_b32 {aV}, 2, {vL}
    s_lshl_b32 {sO}, {sG}, 5
    s_add_u32 {sO}, {sO}, {sIdx}
    s_mov_b32 s80, 4096
    s_mov_b32 s81, 8192
    s_mov_b32 s82, 12288
    s_add_u32 s32, s8, {sT0}
    s_addc_u32 s33, s9, 0
    s_mov_b32 s34, s30
    s_mov_b32 s35, 0x20000
    s_mov_b32 s36, s26
    s_mov_b32 s37, s27
    s_mov_b32 s38, {WS_BYTES}
    s_mov_b32 s39, 0x20000
    s_lshr_b32 {sT1}, {sG}, 2
    s_xor_b32 {sT1}, {sT1}, {o["pol"]}
    s_lshl1_add_u32 {sYo}, {sB}, {sT1}
    s_lshl4_add_u32 {sYo}, {sYo}, {sS}
    s_and_b32 {sT1}, {sG}, 3
    s_lshl2_add_u32 {sYo}, {sYo}, {sT1}""")
    c0 = TT + 8
    def small_ops():
        a(f"""    v_lshlrev_b32 {t0}, 4, {vL}
    s_cmp_eq_u32 {sW}, 0
    s_cbranch_scc0 L_sm1""")
        srd(sX, 4, None, 2048)
        a(f"""    s_mov_b32 m0, {XB}
    s_nop 0
    buffer_load_dwordx4 {t0}, {sX}, 0 offen lds
    buffer_load_dwordx4 {t0}, {sX}, 0 offen offset:1024 lds
    s_branch L_sm9
L_sm1:
    s_cmp_eq_u32 {sW}, 3
    s_cbranch_scc0 L_sm2
    buffer_load_dword {vEp}, off, {sWS}, 0 offset:4 sc1
    s_branch L_sm9
L_sm2:
    v_mov_b32 {v(c0)}, -1
    v_mov_b32 {v(c0+1)}, -1
    v_mov_b32 {v(c0+2)}, -1
    v_mov_b32 {v(c0+3)}, -1""")
        slot_addrs()
        a(f"""    s_cmp_eq_u32 {sW}, 1
    s_cbranch_scc1 L_sm3
    v_mov_b32 {cO}, {cF}
    s_mov_b32 exec_lo, 0x00ff00ff
    s_mov_b32 exec_hi, 0x00ff00ff
L_sm3:
    buffer_store_dwordx4 {vr(c0,4)}, {cO}, {sWS}, 0 offen sc1
    s_mov_b64 exec, -1
L_sm9:""")
    for i in range(16):
        if i == o["kpre"]:
            common2()
            if o["esmall"]:
                small_ops()
        kload(i)
        if i + 1 == o["b1at"]:
            stamp(16)
            a(f"    s_waitcnt vmcnt({o['b1at'] - (o['kpre'] if o['esmall'] else 0)})")
            if o["esmall"]:
                a(f"""    s_cmp_eq_u32 {sW}, 3
    s_cbranch_scc0 L_b1
    v_mov_b32 {t3}, {QL + 1028}
    v_add_u32 {vEp}, {TAG_STEP}, {vEp}
    ds_write_b32 {t3}, {vEp}
    s_waitcnt lgkmcnt(0)
L_b1:""")
            a("    s_barrier")
            stamp(22)
    a("L_vloads:")
    for n in range(16):
        for r, d in ((0, 2), (1, 4), (2, 3), (3, 5)):
            key = 4 * n + r
            if key == o["kwait"]:
                a(f"    s_waitcnt vmcnt({key})")
                if o["qkearly"]:
                    a(f"    s_cmp_lt_u32 {sW}, 4\n    s_cbranch_scc0 L_mid\nL_vrest:")
            a(f"    buffer_load_dword {v(VB+4*n+d)}, {aV}, {sV}, {c4k[key//16]} offen offset:{(key%16)*256} {kvf}")
    stamp(5)
    a(f"""    s_cmp_lt_u32 {sW}, 4
    s_cbranch_scc0 L_joined
    s_branch L_setup
L_young:""")
    if o["prefetch"]:
        a(f"""    ; each of these waves pulls 128 bytes of the code into L2
    s_getpc_b64 s[94:95]
L_pc:
    s_lshl2_add_u32 {sT2}, {sIdx}, {sW}
    s_sub_u32 {sT2}, {sT2}, 4
    s_lshl_b32 {sT2}, {sT2}, 7
    s_min_u32 {sT2}, {sT2}, L_codeend-L_pc-64
    v_lshl_add_u32 {t2}, {vL}, 6, {sT2}
    s_mov_b64 exec, 3
    global_load_dword {vDum}, {t2}, s[94:95]
    s_mov_b64 exec, -1""")
    a(f"""    v_mov_b32 {t3}, {QL + 1024}
    v_mov_b32 {t4}, 0
    ds_write_b32 {t3}, {t4}
    s_waitcnt lgkmcnt(0)
    s_add_u32 s28, s6, {sT0}
    s_addc_u32 s29, s7, 0""")
    common2()
    a(f"""    s_cmp_eq_u32 {sW}, 7
    s_cbranch_scc1 L_w7a
    {"s_barrier" if o["b1first"] else ""}
    s_branch L_setup
L_w7a:""")
    a("    s_setprio 3")
    if not o["esmall"]:
        srd(sX, 4, None, 2048)
        a(f"""    s_mov_b32 m0, {XB}
    v_lshlrev_b32 {t0}, 4, {vL}
    v_mov_b32 {v(c0)}, -1
    buffer_load_dwordx4 {t0}, {sX}, 0 offen lds
    buffer_load_dwordx4 {t0}, {sX}, 0 offen offset:1024 lds
    buffer_load_dword {vEp}, off, {sWS}, 0 offset:4 sc1
    v_mov_b32 {v(c0+1)}, -1
    v_mov_b32 {v(c0+2)}, -1
    v_mov_b32 {v(c0+3)}, -1""")
        slot_addrs()
        if not o["x_noclr"]:
            a(f"""    buffer_store_dwordx4 {vr(c0,4)}, {cO}, {sWS}, 0 offen sc1
    s_mov_b32 exec_lo, 0x00ff00ff
    s_mov_b32 exec_hi, 0x00ff00ff
    buffer_store_dwordx4 {vr(c0,4)}, {cF}, {sWS}, 0 offen sc1
    s_mov_b64 exec, -1""")
    a(f"""L_setup:
    v_bfe_u32 {t5}, {vL}, 3, 2
    v_lshlrev_b32 {vDma}, 3, {t5}
    v_lshrrev_b32 {t5}, 5, {vL}
    v_lshl_add_u32 {vDma}, {t5}, 2, {vDma}
    v_bfe_u32 {t5}, {vL}, 1, 2
    v_add_u32 {vDma}, {vDma}, {t5}
    v_and_b32 {vHalf}, 1, {vL}
    v_lshlrev_b32 {vHalf}, 4, {vHalf}
    s_mul_i32 {sM0}, {sW}, {WVS}""")
    h8 = t1
    a(f"""    s_getreg_b32 {sXcc}, hwreg(HW_REG_XCC_ID, 0, 4)
    s_mov_b32 s86, 0x00030003
    s_mov_b32 s87, 0x00030003
    s_mov_b32 s88, 0x01010101
    s_mov_b32 s89, 0x01010101
    s_mov_b32 s90, 0x01010101
    s_mov_b32 s91, 0
    s_mov_b32 s92, 0x00001111
    s_mov_b32 s93, 0x00001111
    s_mov_b32 s96, 0x11111111
    s_mov_b32 s97, 0
    s_mov_b32 {sPlo}, 0x05040100
    s_mov_b32 {sPhi}, 0x07060302
    s_mov_b32 {sCnt}, {o['spin']}
    s_mov_b32 {sL}, 0
    s_mov_b32 {sLO}, 0
    s_mov_b32 {sPure}, 0
    s_mov_b32 {sMode}, 0
    v_lshrrev_b32 {t2}, 1, {vKG}
    v_and_b32 {t3}, 1, {vKG}
    v_lshl_add_u32 {vT}, {vL}, 3, {sM0}
    s_lshl_b32 {sT2}, {sW}, 8
    s_add_u32 {sT2}, {sT2}, {RQ}                ; RQ + w*256
    v_add_u32 {vW4}, {sT2}, {aV}
    v_add_u32 {vR4}, {RQ}, {aV}
    v_lshlrev_b32 {vWd}, 6, {vC}
    v_lshl_add_u32 {vWd}, {vKG}, 4, {vWd}
    v_add_u32 {vWd}, {sT2}, {vWd}
    v_lshlrev_b32 {t5}, 4, {vL}
    v_add_u32 {vL16}, {sT2}, {t5}
    v_add_u32 {t5}, {DUM}, {t5}
    v_add_u32 {vWg}, {2048 - 128}, {vWd}
    v_cmp_eq_u32 vcc, 2, {vC}
    v_cndmask_b32 {vWg}, {t5}, {vWg}, vcc
    v_cmp_gt_u32 vcc, 2, {vC}
    v_cndmask_b32 {vWg}, {vWg}, {vWd}, vcc
    v_cndmask_b32 {vWd}, {t5}, {vWd}, vcc
    v_cmp_gt_u32 vcc, 2, {vL}
    v_cndmask_b32 {vL16}, {t5}, {vL16}, vcc
    v_mov_b32 {vInv}, {f32(1/512)}
    v_mov_b32 {vScale}, {f32(128**-0.5 * math.log2(math.e))}
    v_mov_b32 {vRes}, 0
    v_mov_b32 {vX1}, 0
    ds_write_b32 {vR4}, {vRes} offset:{RD - RQ + 7*256}
    v_lshrrev_b32 {t4}, 2, {vC}
    s_and_b32 {sT3}, {sO}, 0xf0
    s_lshl_b32 {sT3}, {sT3}, 7
    s_add_u32 {sT3}, {sT3}, {W_Q2}
    v_lshl_add_u32 {aQ2}, {vL}, 4, {sT3}
    s_lshl_b32 {sT2}, {sG}, 12
    s_lshl_b32 {sT3}, {sW}, 8
    s_add_u32 {sT2}, {sT2}, {sT3}
    s_add_u32 {sT2}, {sT2}, {W_H}
    v_lshl_add_u32 {aH}, {t2}, 7, {sT2}
    v_lshl_add_u32 {aH}, {vC}, 5, {aH}
    v_lshl_add_u32 {aH}, {t3}, 4, {aH}
    s_and_b32 {sT2}, {sO}, 0xf0
    s_lshl_b32 {sT3}, {sW}, 1
    s_add_u32 {sT3}, {sT3}, {sT2}
    s_lshl_b32 {sT3}, {sT3}, 10
    s_add_u32 {sT3}, {sT3}, {W_O}
    v_lshl_add_u32 {aO}, {vL}, 4, {sT3}
    v_lshl_add_u32 {aML}, {vKG}, 2, {vC}
    v_and_b32 {aML}, 15, {aML}
    s_lshr_b32 {sT3}, {sW}, 1
    s_add_u32 {sT3}, {sT3}, {sT2}
    s_lshl_b32 {sT3}, {sT3}, 7
    s_add_u32 {sT3}, {sT3}, {W_ML}
    v_lshl_add_u32 {aML}, {aML}, 3, {sT3}
    v_xor_b32 {t1}, {o["pol"]}, {t2}
    v_lshlrev_b32 {t1}, 13, {t1}
    v_lshrrev_b32 {aY}, 3, {vC}
    v_lshl_add_u32 {aY}, {aY}, 9, {t1}
    v_lshl_add_u32 {aY}, {t3}, 14, {aY}
    v_and_b32 {t5}, 7, {vC}
    v_lshl_add_u32 {aY}, {t5}, 4, {aY}
    s_lshl_b32 {sT3}, {sW}, 10
    s_add_u32 {sT3}, {sT3}, {W_Y}
    v_add_u32 {aY}, {sT3}, {aY}
    v_bfe_u32 {aZ}, {vL}, 3, 2
    v_lshl_add_u32 {aZ}, {aZ}, 9, {t1}
    v_lshl_add_u32 {aZ}, {t5}, 4, {aZ}
    s_lshr_b32 {sT2}, {sW}, 2
    s_lshl_b32 {sT2}, {sT2}, 14
    s_and_b32 {sT3}, {sW}, 3
    s_lshl_b32 {sT3}, {sT3}, 11
    s_add_u32 {sT3}, {sT3}, {sT2}
    s_add_u32 {sT3}, {sT3}, {W_Z}
    v_add_u32 {aZ}, {sT3}, {aZ}
    ; x1 for this workgroup's 16 columns: b'*16384 + gh*8192 + (idx>>1)*512 + (idx&1)*64 + c*4
    v_lshl_add_u32 {t5}, {vC}, 2, {t1}
    s_lshr_b32 {sT2}, {sIdx}, 1
    s_lshl_b32 {sT2}, {sT2}, 9
    s_lshl_b32 {sT3}, {sKh}, 6
    s_add_u32 {sT2}, {sT2}, {sT3}
    s_add_u32 {sT2}, {sT2}, {W_Y}
    v_lshl_add_u32 {aX1}, {t3}, 14, {t5}
    v_add_u32 {aX1}, {sT2}, {aX1}
    s_lshl_b32 {sT2}, {sB}, 14
    s_lshl_b32 {sT3}, {sS}, 9
    s_add_u32 {sT2}, {sT2}, {sT3}
    s_add_u32 {sT2}, {sT2}, {W_Z}
    v_lshl_add_u32 {aFin}, {t3}, 6, {t5}
    v_add_u32 {aFin}, {sT2}, {aFin}
    s_lshl_b32 {sT2}, {sIdx}, 5
    v_lshlrev_b32 {pOut}, 10, {t3}
    v_lshl_add_u32 {pOut}, {vC}, 1, {pOut}
    v_add_u32 {pOut}, {sT2}, {pOut}
    s_and_b32 {sT1}, {sO}, 0xf0                 ; O: (o & 0xf0)*1024 + w*4096 + (l>>2)*256 + s*16 + (l&3)*4
    s_lshl_b32 {sT2}, {sW}, 2
    s_add_u32 {sT2}, {sT2}, {sT1}
    s_lshl_b32 {sT2}, {sT2}, 10
    s_lshl_b32 {sT3}, {sS}, 4
    s_add_u32 {sT2}, {sT2}, {sT3}
    s_add_u32 {sT2}, {sT2}, {W_O}
    v_lshrrev_b32 {pO}, 2, {vL}
    v_lshl_add_u32 {pO}, {pO}, 8, {sT2}
    v_and_b32 {t5}, 3, {vL}
    v_lshl_add_u32 {pO}, {t5}, 2, {pO}
    s_add_u32 {sT2}, {sT1}, {sW}
    s_lshl_b32 {sT2}, {sT2}, 7
    s_lshl_b32 {sT3}, {sS}, 3
    s_add_u32 {sT2}, {sT2}, {sT3}
    s_add_u32 {sT2}, {sT2}, {W_ML}
    v_mov_b32 {pML}, {sT2}
    s_bfe_u32 {sT2}, {sIdx}, 0x20001
    s_lshl_b32 {sT2}, {sT2}, 2
    s_lshr_b32 {sT3}, {sIdx}, 3
    s_add_u32 {sT2}, {sT2}, {sT3}
    s_lshl_b32 {sT2}, {sT2}, 4
    s_lshl_b32 {sT3}, {sG}, 12
    s_add_u32 {sT2}, {sT2}, {sT3}
    s_lshl_b32 {sT3}, {sKh}, 10
    s_add_u32 {sT2}, {sT2}, {sT3}
    s_add_u32 {sT2}, {sT2}, {W_Q2}
    v_lshl_add_u32 {pQ}, {t3}, 11, {sT2}
    v_lshl_add_u32 {pQ}, {t2}, 9, {pQ}
    v_lshrrev_b32 {t5}, 3, {vC}
    v_lshl_add_u32 {pQ}, {t5}, 8, {pQ}
    s_lshl_b32 {sT2}, {sO}, 7
    v_lshl_add_u32 {pS}, {vL}, 1, {sT2}         ; o*128 + (b*16+n)*2
    s_lshl_b32 {sT2}, {sYo}, 7
    s_add_u32 {sT3}, {sT2}, {W_Z}
    v_add_u32 {pZ}, {sT3}, {aV}
    s_add_u32 {sT2}, {sT2}, {W_Y}
    v_lshlrev_b32 {pY}, 2, {vC}
    v_lshl_add_u32 {pY}, {t2}, 6, {pY}
    v_add_u32 {pY}, {sT2}, {pY}
    v_lshrrev_b32 {vT0}, 2, {vL}
    v_lshlrev_b32 {vT0}, 6, {vT0}
    v_and_b32 {vT1}, 3, {vL}
    v_lshl_add_u32 {vT0}, {vT1}, 3, {vT0}
    v_lshl_add_u32 {vT0}, {t3}, 5, {vT0}
    s_and_b32 {sT2}, {sW}, 3
    s_mul_i32 {sT2}, {sT2}, {2*WVS}
    v_add_u32 {vTq}, {sT2}, {vT0}
    v_add_u32 {vT0}, {sM0}, {vT0}
    v_xor_b32 {vT1}, 32, {vT0}
    s_lshl_b32 {sT2}, {sW}, 11
    s_add_u32 {sT2}, {sT2}, {OB}
    v_lshl_add_u32 {vOw}, {vL}, 3, {sT2}
    v_add_u32 {vOw2}, 1024, {vOw}
    s_lshl_b32 {sT2}, {sW}, 9
    s_add_u32 {sT2}, {sT2}, {OB}
    v_lshl_add_u32 {vOr}, {vL}, 3, {sT2}
    s_lshl_b32 {sT2}, {sW}, 3
    s_add_u32 {sT2}, {sT2}, {MLB}
    v_and_b32 {vMLw}, 3, {vL}
    v_lshl_add_u32 {vMLw}, {vMLw}, 6, {sT2}
    s_lshl_b32 {sT2}, {sW}, 6
    s_add_u32 {sT2}, {sT2}, {MLB}
    v_and_b32 {vMLr}, 7, {vL}
    v_lshl_add_u32 {vMLr}, {vMLr}, 3, {sT2}
    v_lshlrev_b32 {vR4c}, 2, {vC}
    v_lshl_add_u32 {vR4c}, {t2}, 7, {vR4c}
    v_add_u32 {vR4c}, {RQC}, {vR4c}
    ; x staging
    s_lshl_b32 {sT2}, {sW}, 7
    s_add_u32 {sT2}, {sT2}, {XB}
    v_lshl_add_u32 {vXw}, {t3}, 10, {sT2}
    v_lshl_add_u32 {vXw}, {vC}, 3, {vXw}
    v_lshl_add_u32 {vXw}, {t2}, 2, {vXw}
    v_min_u32 {vXr}, 2, {vC}
    v_lshl_add_u32 {vXr}, {vXr}, 10, {sT2}
    v_lshl_add_u32 {vXr}, {vKG}, 4, {vXr}
    v_lshlrev_b32 {t5}, 2, {t3}
    v_cmp_gt_u32 vcc, 8, {vC}
    v_cndmask_b32 {t5}, 8, {t5}, vcc
    v_and_b32 {vGS}, 7, {vL}
    v_lshlrev_b32 {vGS}, 8, {vGS}
    v_lshl_add_u32 {vGS}, {t3}, 4, {vGS}
    v_add_u32 {vGS}, {vGS}, {t5}
    v_add_u32 {vGS}, {RQC + 192}, {vGS}
    v_lshlrev_b32 {t5}, 1, {vC}
    v_lshl_add_u32 {t5}, {t2}, 5, {t5}
    s_lshl_b32 {sT2}, {sB}, 10
    s_lshl_b32 {sT3}, {sS}, 6
    s_add_u32 {sT2}, {sT2}, {sT3}
    s_add_u32 {sT2}, {sT2}, {XB}
    v_add_u32 {aRes}, {sT2}, {t5}
    s_lshl_b32 {sT1}, {sG}, 19                  ; wo: (512g + 64(w&3))*1024 + s*64
    s_and_b32 {sT2}, {sW}, 3
    s_lshl_b32 {sT2}, {sT2}, 16
    s_add_u32 {sT1}, {sT1}, {sT2}
    s_lshl_b32 {sT2}, {sS}, 6
    s_add_u32 {sT1}, {sT1}, {sT2}""")
    srd(sWo, 12, sT1, 4194304)
    srd(sOut, 22, None, 2048)
    a(f"""    s_mul_i32 {sT1}, {sG}, 14
    s_min_u32 {sT2}, {sIdx}, 13
    s_add_u32 {sT1}, {sT1}, {sT2}
    s_lshl_b32 {sT1}, {sT1}, 5
    s_mul_i32 {sT2}, {sW}, {64*3584}
    s_add_u32 {sT1}, {sT1}, {sT2}""")
    srd(sWg, 16, sT1, 1835008)
    srd(sWu, 18, sT1, 1835008)
    a(f"""    s_mul_i32 {sT1}, {sG}, 7
    s_min_u32 {sT2}, {sW}, 6
    s_add_u32 {sT1}, {sT1}, {sT2}
    s_lshl_b32 {sT1}, {sT1}, 15
    s_lshl_b32 {sT2}, {sIdx}, 5
    s_add_u32 {sT1}, {sT1}, {sT2}""")
    srd(sWd, 20, sT1, 1835008)
    a(f"""    s_cmp_lt_u32 {sW}, 4
    s_cbranch_scc1 L_joined
    s_cmp_eq_u32 {sW}, 7
    s_cbranch_scc0 L_young2""")
    b0, b1, bx, by = t0, t1, t2, t5
    a(f"""    v_mov_b32 {v(DD)}, 0x3f803f80
    v_mov_b32 {v(DD+1)}, 0x3f803f80
    v_mov_b32 {v(DD+2)}, 0x3f803f80
    v_mov_b32 {v(DD+3)}, 0x3f803f80
    v_lshlrev_b32 {b0}, 4, {vL}
    v_add_u32 {b0}, {ONES}, {b0}
    ds_write_b128 {b0}, {vr(DD,4)}
    v_subrev_u32 {b0}, {sM0}, {vT0}
    v_xor_b32 {b1}, 32, {b0}
    s_lshl_b32 {sT2}, {sKh}, 9
    v_subrev_u32 {bx}, {7*128}, {vXr}
    v_add_u32 {bx}, {sT2}, {bx}
    v_xor_b32 {by}, 512, {bx}
    v_mov_b32 {t3}, {QL + 1028}""")
    if o["esmall"]:
        a(f"    s_waitcnt lgkmcnt(0)\n    s_barrier\n    ds_read_b32 {vEp}, {t3}")
    else:
        a(f"""    s_waitcnt vmcnt(0)
    v_add_u32 {vEp}, {TAG_STEP}, {vEp}
    ds_write_b32 {t3}, {vEp}
    s_waitcnt lgkmcnt(0)
    s_barrier""")
    assert XB % 1024 == 0
    def q1_reads(k):
        if k == 4:
            a(f"    v_add_u32 {b0}, {4*WVS}, {b0}\n    v_add_u32 {b1}, {4*WVS}, {b1}")
        off = (k & 3) * WVS + T_WQ
        A, B = WB + 8 * (k & 1), XO + 8 * (k & 1)
        for ct in range(2):
            for jj in range(2):
                a(f"    ds_read_b64_tr_b16 {vr(A+4*ct+2*jj,2)}, {(b0, b1)[ct]} offset:{off + 1024*jj}")
        a(f"    ds_read_b128 {vr(B,4)}, {bx} offset:{64*k}")
        a(f"    ds_read_b128 {vr(B+4,4)}, {by} offset:{64*k}")
    q1_reads(0); q1_reads(1)
    D0, D1, DS = DD, DD + 12, DD + 4
    for k in range(8):
        a(f"    s_waitcnt lgkmcnt({6 if k < 7 else 0})")
        A, B = WB + 8 * (k & 1), XO + 8 * (k & 1)
        c = lambda r: vr(r, 4) if k else "0"
        a(f"    v_mfma_f32_16x16x32_bf16 {vr(D0,4)}, {vr(A,4)}, {vr(B,4)}, {c(D0)}")
        a(f"    v_mfma_f32_16x16x32_bf16 {vr(DS,4)}, {vr(B,4)}, {vr(B,4)}, {c(DS)}")
        a(f"    v_mfma_f32_16x16x32_bf16 {vr(D1,4)}, {vr(A+4,4)}, {vr(B,4)}, {c(D1)}")
        a(f"    v_mfma_f32_16x16x32_bf16 {vr(DS,4)}, {vr(B+4,4)}, {vr(B+4,4)}, {vr(DS,4)}")
        if k + 2 < 8:
            q1_reads(k + 2)
    S2, S1, mu, rs = v(DD + 8), v(DD + 9), v(DD + 10), v(DD + 11)
    a(f"""    v_cmp_eq_u32 vcc, 0, {vC}
    v_readlane_b32 {sT0}, {v(DD+4)}, 0
    v_readlane_b32 {sT1}, {v(DD+5)}, 1
    v_readlane_b32 {sT2}, {v(DD+6)}, 0
    v_readlane_b32 {sT3}, {v(DD+6)}, 1
    v_mov_b32 {S2}, {sT0}
    v_mov_b32 {t3}, {sT1}
    v_mov_b32 {S1}, {sT2}
    v_mov_b32 {t4}, {sT3}
    v_cndmask_b32 {S2}, {t3}, {S2}, vcc
    v_cndmask_b32 {S1}, {t4}, {S1}, vcc""")
    ln_stats(S2, S1, mu, rs)
    a(f"""    s_lshl_b32 {sT2}, {sG}, 13
    s_lshl_b32 {sT3}, {sKh}, 11
    s_add_u32 {sT2}, {sT2}, {sT3}
    s_lshr_b32 {sT3}, {sIdx}, 1
    s_lshl_b32 {sT3}, {sT3}, 7
    s_add_u32 {sT2}, {sT2}, {sT3}
    s_add_u32 {sT2}, {sT2}, {W_Q1}
    v_lshlrev_b32 {t3}, 7, {vC}
    v_lshl_add_u32 {t3}, {vKG}, 4, {t3}
    v_add_u32 {t3}, {OB + 7*2048}, {t3}
    v_lshlrev_b32 {t4}, 4, {vL}
    v_add_u32 {t1}, {OB + 7*2048}, {t4}
    v_lshrrev_b32 {t0}, 3, {vL}
    v_mul_u32_u24 {t0}, {4096 - 128}, {t0}
    v_add_u32 {t0}, {t0}, {t4}""")
    for ct, D in enumerate((D0, D1)):
        P4 = XO + 4 * ct
        for r in range(4):
            a(f"    v_mul_f32_dpp {v(DD+4+r)}, {v(D+r)}, {mu} quad_perm:[2,2,2,2] {DPP}")
        for r in range(4):
            a(f"    v_sub_f32 {v(D+r)}, {v(D+r)}, {v(DD+4+r)}")
            a(f"    v_mul_f32 {v(D+r)}, {v(D+r)}, {rs}")
        a(f"""    v_cvt_pk_bf16_f32 {v(P4)}, {v(D)}, {v(D+1)}
    v_cvt_pk_bf16_f32 {v(P4+2)}, {v(D+2)}, {v(D+3)}
    v_add_u32 {v(P4+1)}, {sXcc}, {vEp}
    v_add_u32 {v(P4+3)}, {sXcc}, {vEp}""")
    a(f"""    ds_write_b128 {t3}, {vr(XO,4)}
    ds_write_b128 {t3}, {vr(XO+4,4)} offset:64
    ds_read_b128 {vr(XO+8,4)}, {t1}
    s_mov_b64 exec, 0xffff
    s_waitcnt lgkmcnt(0)""")
    if not o["x_nopub"]:
        a(f"    buffer_store_dwordx4 {vr(XO+8,4)}, {t0}, {sWS}, {sT2} offen sc1")
    execm("-1")
    stamp(3)
    a("    s_setprio 0")
    a("    s_branch L_young3\nL_young2:")
    if not o["b1first"]:
        a("    s_barrier")
    a("L_young3:")
    for i in range(16):
        kload(i)
    a("    s_branch L_vloads\nL_joined:")

    def late_loads():
        r64_addr(10)
        for half in range(2):
            for m, so in enumerate((0, 4096, 32768, 36864)):
                a(f"    s_mov_b32 {sT2}, {so + half * 262144}")
                dma(sWo, T_WO + 1024 * m + (half - (o["wo_at"] == "Y")) * 4 * WVS, sT2)
        if o["pf_at"] == "wo":
            pf_load()
    def pf_load():
        t = v(TT + 7)
        if not o["l2pf"]:
            return
        a(f"""    s_mul_i32 {sT1}, {sIdx}, 3                  ; waves 1..3 of every workgroup
    s_sub_u32 {sT2}, {sW}, {5 if (o["wo_at"] == "Y" and o["pf_at"] == "wo") else 1}
    s_add_u32 {sT1}, {sT1}, {sT2}
    s_add_u32 {sT1}, {sT1}, 1
    s_cmp_lt_u32 {sT2}, 3
    s_cselect_b32 {sT1}, {sT1}, 97
    s_sub_u32 {sT1}, 96, {sT1}
    s_cmp_lt_u32 {sT1}, 64
    s_cbranch_scc0 L_pf_d
    s_and_b32 {sT2}, {sT1}, 31
    s_mul_i32 {sT2}, {sT2}, {16*3584}
    s_mul_i32 {sT3}, {sG}, 448
    s_add_u32 {sT2}, {sT2}, {sT3}
    v_lshrrev_b32 {t}, 2, {vL}
    v_mul_u32_u24 {t}, 3584, {t}
    v_and_b32 {vA}, 3, {vL}
    v_lshl_add_u32 {t}, {vA}, 7, {t}
    s_cmp_lt_u32 {sT1}, 32
    s_cselect_b32 s40, s16, s18
    s_cselect_b32 s41, s17, s19
    s_mov_b32 s42, 1835008
    s_branch L_pf_go
L_pf_d:
    s_sub_u32 {sT2}, {sT1}, 64
    s_lshl_b32 {sT2}, {sT2}, 13
    s_mul_i32 {sT3}, {sG}, {224*1024}
    s_add_u32 {sT2}, {sT2}, {sT3}
    v_lshlrev_b32 {t}, 7, {vL}
    s_mov_b32 s40, s20
    s_mov_b32 s41, s21
    s_cmp_lt_u32 {sT1}, 92
    s_cselect_b32 s42, 1835008, 0
L_pf_go:
    s_mov_b32 s43, 0x20000
    buffer_load_dword {vDum}, {t}, {sWq}, {sT2} offen {wf}""")
    def wd_load():
        a(f"    v_lshl_add_u32 {vA}, {vDma}, 10, {vHalf}")
        dma(sWd, T_WD, "0")
    nD = 0

    def wo_read():
        for e in range(2):
            for ct in range(2):
                for j in range(2):
                    a(f"    ds_read_b64_tr_b16 {vr(WB+8*e+4*ct+2*j,2)}, {(vT0, vT1)[ct]} offset:{T_WO + 1024*(2*e+j)}")

    a(f"""    s_cmp_eq_u32 {sW}, {99 if o["x_nogather"] else 1}
    s_cbranch_scc0 L_h2
    v_mov_b32 {t5}, {QL + 1028}
    ds_read_b32 {vEp}, {t5}
    s_lshr_b32 {sT2}, {sO}, 4
    s_lshl_b32 {sT2}, {sT2}, 12
    s_add_u32 {sT2}, {sT2}, {W_Q1}
    v_lshl_add_u32 {t5}, {vL}, 4, {sT2}
L_hq:""")
    for i in range(4):
        a(f"    buffer_load_dwordx4 {vr(DD+4*i,4)}, {t5}, {sWS}, 0 offen offset:{1024*i} sc1")
    a("    s_waitcnt vmcnt(0) lgkmcnt(0)")
    for r in range(DD + 1, DD + 16, 2):
        a(f"    v_sub_u32 {v(r)}, {v(r)}, {vEp}")
    a(f"""    v_max3_u32 {CHK}, {v(DD+1)}, {v(DD+3)}, {v(DD+5)}
    v_max3_u32 {CHK}, {v(DD+7)}, {v(DD+9)}, {CHK}
    v_max3_u32 {CHK}, {v(DD+11)}, {v(DD+13)}, {CHK}
    v_max_u32 {CHK}, {v(DD+15)}, {CHK}
    v_cmp_lt_u32 vcc, 15, {CHK}""")
    spin_tail("L_hq")
    a(f"""    v_cmp_ne_u32 vcc, {sXcc}, {v(DD+1)}
    v_cmp_ne_u32 s[94:95], {sXcc}, {v(DD+9)}""")
    add_bf16x8(XO, [v(DD + 2 * i) for i in range(4)], [v(DD + 8 + 2 * i) for i in range(4)])
    a(f"""    v_cmp_ne_u32 s[8:9], {sXcc}, {v(DD+5)}
    s_or_b64 s[94:95], s[94:95], vcc
    v_cmp_ne_u32 vcc, {sXcc}, {v(DD+13)}
    v_bfe_u32 {t5}, {vL}, 1, 2
    v_lshlrev_b32 {t5}, 8, {t5}
    v_bfe_u32 {t4}, {vL}, 3, 2
    v_lshl_add_u32 {t5}, {t4}, 6, {t5}
    v_lshrrev_b32 {t4}, 5, {vL}
    v_lshl_add_u32 {t5}, {t4}, 4, {t5}
    v_and_b32 {t4}, 1, {vL}
    v_lshl_add_u32 {t5}, {t4}, 3, {t5}
    v_add_u32 {t5}, {QL}, {t5}
    s_or_b64 s[94:95], s[94:95], s[8:9]
    s_or_b64 vcc, vcc, s[94:95]
    s_cselect_b32 {sT1}, 1, 3
    v_mov_b32 {v(DD+4)}, {sT1}
    ds_write_b64 {t5}, {vr(XO,2)}
    ds_write_b64 {t5}, {vr(XO+2,2)} offset:32
    v_mov_b32 {t5}, {QL + 1024}
    ds_write_b32 {t5}, {v(DD+4)}""")
    stamp(4)
    a(f"""    s_cmp_eq_u32 {sIdx}, 0
    s_cbranch_scc0 L_nolead
    s_lshl_b32 {sT1}, {sG}, 7
    s_add_u32 {sT1}, {sT1}, {W_GF}
    v_mov_b32 {v(DD)}, {vEp}
    v_mov_b32 {v(DD+1)}, {vEp}
    v_mov_b32 {v(DD+2)}, {vEp}
    v_mov_b32 {v(DD+3)}, {vEp}
    v_lshlrev_b32 {t5}, 4, {vL}
    s_mov_b64 exec, 0xff
    buffer_store_dwordx4 {vr(DD,4)}, {t5}, {sWS}, {sT1} offen sc1
    s_mov_b64 exec, -1
L_nolead:""")
    a("L_h2:")
    if o["klin"]:
        assert o["qkearly"]
        a(f"    s_cmp_lt_u32 {sW}, 4\n    s_cbranch_scc0 L_h3")
        kshuffle()
        a("L_h3:")
    a(f"""    v_lshlrev_b32 {t0}, 4, {vL}
    v_add_u32 {t0}, {QL}, {t0}
    v_mov_b32 {t2}, {QL + 1024}
    s_cmp_lt_u32 {sW}, 4
    s_cbranch_scc1 L_qf
    {"s_barrier" if o["wo_at"] == "X" else ""}
    {"s_cmp_eq_u32 " + sMode + ", 1" if o["qkearly"] else ""}
    {"s_cbranch_scc1 L_pv1b" if o["qkearly"] else ""}
L_qf:
    ds_read_b32 {t1}, {t2}
    s_waitcnt lgkmcnt(0)
    v_cmp_eq_u32 vcc, {77 if o["x_nogather"] else 0}, {t1}""")
    spin_tail("L_qf")
    if o["qkearly"]:
        tail("L_mid:")
        into(tail, kshuffle)
        tail(f"""    v_mov_b32 {t2}, {QL + 1024}
    ds_read_b32 {t1}, {t2}
    v_lshlrev_b32 {t0}, 4, {vL}
    v_add_u32 {t0}, {QL}, {t0}
    s_waitcnt lgkmcnt(0)
    v_cmp_eq_u32 vcc, 0, {t1}
    s_cbranch_vccnz L_vrest
    s_mov_b32 {sMode}, 1
    s_branch L_qf_ok""")
    a(f"""    ds_read_b128 {vr(XO,4)}, {t0}
    v_readfirstlane_b32 {sPure}, {t1}
    s_lshr_b32 {sPure}, {sPure}, 1
    s_waitcnt lgkmcnt(0)""")
    stamp(6)
    a("    s_branch L_attn")
    a(f"L_q:\n    v_xor_b32 {vA}, 32, {vTq}")
    for e in range(2):
        for ct in range(2):
            for jj in range(2):
                a(f"    ds_read_b64_tr_b16 {vr(WB+8*e+4*ct+2*jj,2)}, {(vTq, vA)[ct]} offset:{e*WVS + T_WQ + 1024*jj}")
    a(f"""    s_lshl_b32 {sT1}, {sKh}, 10
    v_add_u32 {v(TT+16)}, {sT1}, {vR4}
    v_add_u32 {v(TT+17)}, {sT1}, {vR4c}
    v_bfe_u32 {v(TT+15)}, {vL}, 2, 1
    v_lshlrev_b32 {v(TT+15)}, 10, {v(TT+15)}
    v_bfe_u32 {t0}, {vL}, 3, 2
    v_lshl_add_u32 {v(TT+15)}, {t0}, 5, {v(TT+15)}
    v_and_b32 {t0}, 3, {vL}
    v_lshl_add_u32 {v(TT+15)}, {t0}, 3, {v(TT+15)}
    v_lshrrev_b32 {t0}, 5, {vL}
    v_lshl_add_u32 {v(TT+15)}, {t0}, 2, {v(TT+15)}
    s_lshl_b32 {sT2}, {sW}, 7
    s_add_u32 {sT2}, {sT2}, {XB}
    v_add_u32 {v(TT+15)}, {sT2}, {v(TT+15)}
    s_lshr_b32 {sT1}, {sW}, 2
    s_mov_b32 {sL}, {LSTR}
    s_mov_b32 {sLO}, {OSTR}""")
    if "d" in o["hint"]:
        a(f"    s_cmp_eq_u32 {sW}, 0\n    s_cbranch_scc0 L_q0")
        hint_wait("L_hd")
        a("L_q0:")
    if o["ack"]:
        a("    s_waitcnt vmcnt(0)")
    a("    s_barrier")
    stamp(15)
    gather_x(aZ, "0", "L_pd", lambda: stamp(17), None, v(TT + 15))
    if not o["inl"]:
        a(f"    s_cmp_eq_u32 {sT1}, {sKh}\n    s_cbranch_scc0 L_ql")
    a(f"""    s_waitcnt lgkmcnt(1)
    v_mfma_f32_16x16x32_bf16 {vr(DD,4)}, {vr(WB,4)}, {vr(XO,4)}, 0
    v_mfma_f32_16x16x32_bf16 {vr(DD+4,4)}, {vr(WB+4,4)}, {vr(XO,4)}, 0
    v_mfma_f32_16x16x32_bf16 {vr(DD+8,4)}, {vr(XO,4)}, {vr(XO,4)}, 0
    s_waitcnt lgkmcnt(0)
    v_mfma_f32_16x16x32_bf16 {vr(DD,4)}, {vr(WB+8,4)}, {vr(XO+4,4)}, {vr(DD,4)}
    v_mfma_f32_16x16x32_bf16 {vr(DD+4,4)}, {vr(WB+12,4)}, {vr(XO+4,4)}, {vr(DD+4,4)}
    v_mfma_f32_16x16x32_bf16 {vr(DD+8,4)}, {vr(XO+4,4)}, {vr(XO+4,4)}, {vr(DD+8,4)}""")
    if not o["inl"]:
      tail(f"""L_ql:
    s_waitcnt lgkmcnt(1)
    v_mfma_f32_16x16x32_bf16 {vr(DD+8,4)}, {vr(XO,4)}, {vr(XO,4)}, 0
    s_waitcnt lgkmcnt(0)
    v_mfma_f32_16x16x32_bf16 {vr(DD+8,4)}, {vr(XO+4,4)}, {vr(XO+4,4)}, {vr(DD+8,4)}
    s_nop 6
    s_branch L_qs""")
    two_tile_write(RQ)
    a("L_qs:")
    stats_write(RQ)
    a(f"    s_cmp_eq_u32 {sW}, 0\n    s_cbranch_scc0 L_q2")
    S = two_tile_reduce(RQ, 4, v(TT + 16), v(TT + 17))
    pack16(DD + 8, S, v(DD + 6))
    execm(m16)
    local_store(f"buffer_store_dwordx4 {vr(DD+8,4)}, {pQ}, {sWS}, 0 offen", "L_sq")
    execm("-1")
    a(f"    s_cmp_eq_u32 {sG}, 0\n    s_cbranch_scc1 L_res2\nL_q2:")
    tail(f"""L_res2:
    ds_read_u16 {vRes}, {aRes}
    s_waitcnt lgkmcnt(0)
    v_lshlrev_b32 {vRes}, 16, {vRes}
    s_branch L_q2""")
    if o["qbar"]:
        a("    s_barrier")
    stamp(18)
    poll([(f"buffer_load_dwordx4 {vr(DD+4*i,4)}, {aQ2}, {sWS}, 0 offen offset:{1024*i} sc1", [v(DD + 4 * i + k) for k in range(4)]) for i in range(2)], "L_pq",
         after={0: lambda: [a(f"    v_lshlrev_b32 {v(TT+2*i)}, 16, {v(DD+i)}\n    v_and_b32 {v(TT+2*i+1)}, 0xffff0000, {v(DD+i)}") for i in range(4)]} if o["spec"] else None)
    stamp(19)
    if o["spec"]:
        for i in range(4):
            y = DD + 8 + 2 * (i & 1)
            a(f"""    v_lshlrev_b32 {v(y)}, 16, {v(DD+4+i)}
    v_and_b32 {v(y+1)}, 0xffff0000, {v(DD+4+i)}
    v_pk_add_f32 {vr(y,2)}, {vr(y,2)}, {vr(TT+2*i,2)}
    v_cvt_pk_bf16_f32 {v(XO+i)}, {v(y)}, {v(y+1)}""")
    else:
        add_bf16x8(XO, [v(DD + i) for i in range(4)], [v(DD + 4 + i) for i in range(4)])
    a("L_attn:")
    s = [v(TT + i) for i in range(4)]
    def qk(u, rho):
        t = (u + rho) & 3
        c = vr(DD + 4 * u, 4) if rho else "0"
        a(f"    v_mfma_f32_16x16x32_bf16 {vr(DD+4*u,4)}, {vr(KB+16*u+4*t,4)}, {vr(XO+4*rho,4)}, {c}")
    def rot(rho):
        for i in range(4):
            a(f"    v_mov_b32_dpp {v(XO+4*rho+i)}, {v(XO+i)} row_ror:{16-4*rho} {DPP}")
    def merge(u):
        for r in range(4):
            a(f"    v_mov_b32_dpp {s[r]}, {v(DD+4*u+r)} quad_perm:[0,1,2,3] row_mask:0xf bank_mask:{1<<u}")
    for u in (1, 2, 3):
        qk(u, 0); rot(u)
    for u in (1, 2, 3):
        for rho in (1, 2, 3):
            qk(u, rho)
    qk(0, 0); qk(0, 1); merge(1); qk(0, 2); merge(2); qk(0, 3); merge(3); merge(0)
    m, lsum, tx = v(TT + 4), v(TT + 5), v(TT + 6)
    a(f"""    v_max3_f32 {m}, {s[0]}, {s[1]}, {s[2]}
    v_max_f32 {m}, {m}, {s[3]}
    v_max_f32_dpp {m}, {m}, {m} row_ror:4 {DPP}
    v_max_f32_dpp {m}, {m}, {m} row_ror:8 {DPP}
    v_mov_b32 {tx}, {m}
    v_permlane16_swap_b32 {m}, {tx}
    v_max_f32 {m}, {m}, {tx}
    v_mov_b32 {tx}, {m}
    v_permlane32_swap_b32 {m}, {tx}
    v_max_f32 {m}, {m}, {tx}
    v_mul_f32 {m}, {m}, {vScale}""")
    for r in range(4):
        a(f"    v_fma_f32 {s[r]}, {s[r]}, {vScale}, -{m}")
    for r in range(4):
        a(f"    v_exp_f32 {s[r]}, {s[r]}")
    P = TT + 8
    a(f"""    s_cmp_eq_u32 {sL}, 0
    v_cvt_pk_bf16_f32 {v(P)}, {s[0]}, {s[1]}
    v_cvt_pk_bf16_f32 {v(P+1)}, {s[2]}, {s[3]}
    s_cbranch_scc1 L_pv1""")
    aE, aOd = DD, DD + 4
    def pv(n, out):
        c1 = vr(aE, 4) if n else "0"
        c2 = vr(aOd, 4) if n else "0"
        out(f"    v_mfma_f32_4x4x4_16b_bf16 {vr(aE,4)}, {vr(P,2)}, {vr(VB+4*n,2)}, {c1} cbsz:4 abid:{n}")
        out(f"    v_mfma_f32_4x4x4_16b_bf16 {vr(aOd,4)}, {vr(P,2)}, {vr(VB+4*n+2,2)}, {c2} cbsz:4 abid:{n}")
    lred = [f"v_pk_add_f32 {vr(TT,2)}, {vr(TT,2)}, {vr(TT+2,2)}",
            f"v_add_f32 {lsum}, {s[0]}, {s[1]}",
            f"v_add_f32_dpp {lsum}, {lsum}, {lsum} row_ror:4 {DPP}",
            f"v_add_f32_dpp {lsum}, {lsum}, {lsum} row_ror:8 {DPP}",
            f"v_mov_b32 {tx}, {lsum}",
            f"v_permlane16_swap_b32 {lsum}, {tx}",
            f"v_add_f32 {lsum}, {lsum}, {tx}",
            f"v_mov_b32 {tx}, {lsum}",
            f"v_permlane32_swap_b32 {lsum}, {tx}",
            f"v_add_f32 {lsum}, {lsum}, {tx}",
            f"ds_write_b64 {vMLw}, {vr(TT+4,2)}"]
    stampL(7)
    for n in range(16):
        pv(n, a)
        if n < 15:
            a("    " + (lred[n] if n < len(lred) else "s_nop 0"))
    a("    s_nop 2\nL_pv3:")
    tail("L_pv1:")
    for l in lred:
        tail("    " + l)
    if o["qkearly"]:
        tail(f"    s_cmp_eq_u32 {sMode}, 1\n    s_cbranch_scc1 L_vrest\nL_pv1b:")
    def perms(n):
        b = VB + 4 * n
        tail(f"    s_waitcnt vmcnt({min(63, 60 - 4*n)})")
        tail(f"    v_perm_b32 {v(b)}, {v(b+4)}, {v(b+2)}, {sPlo}")
        tail(f"    v_perm_b32 {v(b+1)}, {v(b+5)}, {v(b+3)}, {sPlo}")
        tail(f"    v_perm_b32 {v(b+2)}, {v(b+4)}, {v(b+2)}, {sPhi}")
        tail(f"    v_perm_b32 {v(b+3)}, {v(b+5)}, {v(b+3)}, {sPhi}")
    perms(0)
    for n in range(16):
        if n < 15:
            perms(n + 1)
        pv(n, tail)
    tail("    s_nop 2\n    s_branch L_pv3")
    stampL(8)
    if o["x_stop"] == 8:
        a(f"    s_cmp_lt_u32 {sW}, 4\n    s_cbranch_scc0 L_done\n    {'s_barrier' if o['wo_at'] == 'X' else ''}\n    s_branch L_done")
    a(f"    s_or_b32 {sT1}, {sL}, {sW}\n    s_cmp_lt_u32 {sT1}, 4")
    for h in range(4):
        ad = vOw if h < 2 else vOw2
        a(f"    ds_write2_b32 {ad}, {v(aE+h)}, {v(aOd+h)} offset0:{(h&1)*128} offset1:{(h&1)*128+1}")
    a(f"""    s_cbranch_scc1 L_late
L_nolate:
    s_cmp_lt_u32 {sW}, 4
    s_waitcnt lgkmcnt(0)
    s_barrier
    s_cbranch_scc0 L_yw
    ds_read_b64 {vr(TT,2)}, {vMLr}""")
    main = a
    a = tail
    a(f"L_late:\n    v_mov_b32 {t5}, {QL + 1028}\n    ds_read_b32 {vEp}, {t5}")
    if o["wo_at"] == "X":
        a("    s_barrier")
        stamp(1)
        late_loads()
    a(f"""    s_cmp_eq_u32 {sG}, 0
    s_cbranch_scc0 L_nolate
    ds_read_u16 {vRes}, {aRes}
    s_waitcnt lgkmcnt(0)
    v_lshlrev_b32 {vRes}, 16, {vRes}
    s_branch L_nolate""")
    a("L_yw:")
    if o["wo_at"] == "Y":
        a(f"    s_cmp_eq_u32 {sL}, 0\n    s_cbranch_scc0 L_wo")
        stamp(1)
        late_loads()
    a(f"""    s_or_b32 {sT1}, {sL}, 7
    s_cmp_eq_u32 {sT1}, {sW}
    s_cbranch_scc0 L_wo""")
    slot_addrs()
    c0 = TT + 8
    for i in range(4):
        a(f"    v_mov_b32 {v(c0+i)}, -1")
    a(f"""    s_mov_b32 exec_lo, 0
    s_mov_b32 exec_hi, 0xff00ff00
    buffer_store_dwordx4 {vr(c0,4)}, {cF}, {sWS}, 0 offen sc1
    s_cmp_eq_u32 {sPure}, {1 if (o["clr2"] == "plain" and not o["force_slow"]) else 2}""")
    for k, fl in enumerate(("sc1", "")):
        a(f"""    {"s_cbranch_scc1 L_mk1" if k == 0 else "L_mk1:"}
    s_mov_b32 exec_lo, 0xff00ff00
    s_mov_b32 exec_hi, 0
    buffer_store_dwordx4 {vr(c0,4)}, {cF}, {sWS}, 0 offen {fl}
    s_mov_b64 exec, -1
    buffer_store_dwordx4 {vr(c0,4)}, {cO}, {sWS}, {sT3} offen {fl}
    buffer_store_dwordx4 {vr(c0,4)}, {cQ}, {sWS}, 0 offen {fl}
    {"s_branch L_mk2" if k == 0 else "L_mk2:"}""")
    if o["hint"]:
        a(f"""    s_lshl_b32 {sT1}, {sG}, 7
    s_add_u32 {sT1}, {sT1}, {W_HT}
    v_lshlrev_b32 {t0}, 10, {vL}
    s_mov_b64 exec, 15
    buffer_load_dword {vDum}, {t0}, {sWS}, {sT1} offen sc1
    s_mov_b64 exec, -1""")
    a(f"""    v_and_b32 {t0}, 7, {vL}
    v_lshlrev_b32 {t0}, 7, {t0}
    v_add_u32 {t0}, {W_GF + 4}, {t0}
L_gf:
    buffer_load_dword {t1}, {t0}, {sWS}, 0 offen sc1
    s_waitcnt vmcnt(0)
    v_cmp_ne_u32 vcc, {t1}, {vEp}
    s_cbranch_vccz L_wo
    s_sub_u32 {sCnt}, {sCnt}, 1
    s_cbranch_scc0 L_gf
    s_mov_b32 {sCnt}, 0
    s_branch L_wo""")
    a = main
    for i in range(8):
        a(f"    ds_read_b64 {vr(XO+2*i,2)}, {vOr} offset:{i*2048}")
    mm, ll, M, Lr, f = v(TT), v(TT + 1), v(TT + 2), v(TT + 3), v(TT + 4)
    a(f"""    s_waitcnt lgkmcnt(8)
    v_max_f32_dpp {M}, {mm}, {mm} row_ror:4 {DPP}
    v_max_f32_dpp {M}, {M}, {M} row_ror:2 {DPP}
    v_max_f32_dpp {M}, {M}, {M} row_ror:1 {DPP}
    v_sub_f32 {f}, {mm}, {M}
    v_exp_f32 {f}, {f}
    v_mul_f32 {Lr}, {f}, {ll}""")
    o0, o1 = v(TT + 5), v(TT + 6)
    lr2 = [f"v_add_f32_dpp {Lr}, {Lr}, {Lr} row_ror:4 {DPP}",
           f"v_add_f32_dpp {Lr}, {Lr}, {Lr} row_ror:2 {DPP}",
           f"v_add_f32_dpp {Lr}, {Lr}, {Lr} row_ror:1 {DPP}"]
    for i in range(8):
        op = "v_mul_f32_dpp" if i == 0 else "v_fmac_f32_dpp"
        if i in (0, 4):
            a(f"    s_waitcnt lgkmcnt({4 - i})")
        a(f"    {op} {o0}, {f}, {v(XO+2*i)} row_newbcast:{i} {DPP}")
        a(f"    {op} {o1}, {f}, {v(XO+2*i+1)} row_newbcast:{i} {DPP}")
        if i < 3:
            a("    " + lr2[i])
    a(f"    v_cvt_pk_bf16_f32 {o0}, {o0}, {o1}")
    local_store(f"buffer_store_dword {o0}, {pO}, {sWS}, {sLO} offen\n    s_mov_b64 exec, 1\n    buffer_store_dwordx2 {vr(TT+2,2)}, {pML}, {sWS}, {sL} offen", "L_so")
    execm("-1")
    if o["inl"]:
        a("L_wo:\n    s_barrier")
    else:
        a(f"L_wo:\n    s_cmp_eq_u32 {sL}, 0\n    s_cbranch_scc1 L_wo0\nL_wo1:\n    s_barrier")
    aloads = [(f"buffer_load_dwordx2 {vr(TT,2)}, {aML}, {sWS}, {sL} offen sc1", [v(TT), v(TT + 1)]),
              (f"buffer_load_dwordx4 {vr(XO,4)}, {aO}, {sWS}, {sLO} offen sc1", [v(XO + i) for i in range(4)]),
              (f"buffer_load_dwordx4 {vr(XO+4,4)}, {aO}, {sWS}, {sLO} offen offset:1024 sc1", [v(XO + 4 + i) for i in range(4)])]
    if o["inl"]:
        pass
    elif o["aover"]:
        tail("L_wo0:\n    s_barrier")
        if o["pf_at"] == "poll":
            into(tail, poll, aloads, "L_pa0", pf_load, None, 1, "L_pa1")
        into(tail, poll, aloads, "L_pa1")
        tail("    s_barrier")
        into(tail, wo_read)
        tail("    s_branch L_pa_ok")
    elif o["pf_at"] == "poll":
        tail("L_wo0:\n    s_waitcnt vmcnt(0)\n    s_barrier")
        into(tail, poll, aloads, "L_pa0", lambda: (pf_load(), wo_read()), None, 1, "L_pa")
    else:
        tail("L_wo0:\n    s_waitcnt vmcnt(0)\n    s_branch L_wo1")
    stampL(9)
    mm, ll, M, e_, Lt = v(TT), v(TT + 1), v(TT + 2), v(TT + 3), v(TT + 4)
    def wo_fac():
        a(f"""    v_max_f32_dpp {M}, {mm}, {mm} row_ror:8 {DPP}
    v_max_f32_dpp {M}, {M}, {M} row_ror:4 {DPP}
    v_max_f32_dpp {M}, {M}, {M} row_ror:2 {DPP}
    v_max_f32_dpp {M}, {M}, {M} row_ror:1 {DPP}
    v_sub_f32 {e_}, {mm}, {M}
    v_exp_f32 {e_}, {e_}
    v_mul_f32 {Lt}, {e_}, {ll}""")
    poll(aloads, "L_pa", wo_read, after={0: wo_fac} if o["spec"] else None)
    if o["inl"]:
        a(f"    s_cmp_eq_u32 {sL}, 0\n    s_cbranch_scc0 L_pa2\n    s_barrier")
        wo_read()
        a("L_pa2:")
    stampL(10)
    if o["pf_at"] == "afterA" or o["wd_at"] == "afterA":
        a(f"    s_cmp_eq_u32 {sL}, 0\n    s_cbranch_scc1 L_wo2a\nL_wo2:")
        tail("L_wo2a:")
        if o["pf_at"] == "afterA":
            into(tail, pf_load)
        if o["wd_at"] == "afterA":
            into(tail, wd_load)
        tail("    s_branch L_wo2")
    z0, z1 = v(TT + 5), v(TT + 6)
    if o["spec"]:
        a(f"""    s_waitcnt lgkmcnt(0)
    v_mfma_f32_16x16x32_bf16 {vr(DD,4)}, {vr(XO,4)}, {vr(WB,4)}, 0
    v_add_f32_dpp {Lt}, {Lt}, {Lt} row_ror:8 {DPP}
    v_mfma_f32_16x16x32_bf16 {vr(DD,4)}, {vr(XO+4,4)}, {vr(WB+8,4)}, {vr(DD,4)}
    v_mfma_f32_16x16x32_bf16 {vr(DD+4,4)}, {vr(XO,4)}, {vr(WB+4,4)}, 0
    v_add_f32_dpp {Lt}, {Lt}, {Lt} row_ror:4 {DPP}
    v_mfma_f32_16x16x32_bf16 {vr(DD+4,4)}, {vr(XO+4,4)}, {vr(WB+12,4)}, {vr(DD+4,4)}
    s_cmp_eq_u32 {sW}, 0
    v_add_f32_dpp {Lt}, {Lt}, {Lt} row_ror:2 {DPP}
    s_nop 1
    v_add_f32_dpp {Lt}, {Lt}, {Lt} row_ror:1 {DPP}
    v_rcp_f32 {Lt}, {Lt}""")
        for z, D in ((z0, DD), (z1, DD + 4)):
            for r in range(4):
                op = "v_mul_f32_dpp" if r == 0 else "v_fmac_f32_dpp"
                a(f"    {op} {z}, {e_}, {v(D+r)} row_newbcast:{r} {DPP}")
        a(f"""    v_permlane32_swap_b32 {z0}, {z1}
    v_add_f32 {z0}, {z0}, {z1}
    v_mul_f32 {z1}, {z0}, {Lt}
    v_mul_f32 {z0}, {z0}, {Lt}
    v_permlane16_swap_b32 {z0}, {z1}
    v_add_f32 {z0}, {z0}, {z1}
    ds_write_b32 {vW4}, {z0} offset:{RW - RQ}
    s_waitcnt lgkmcnt(0)
    s_barrier
    s_cbranch_scc0 L_roles""")
    else:
        mm, ll, M, e_, Lt = v(TT), v(TT + 1), v(TT + 2), v(TT + 3), v(TT + 4)
        a(f"""    v_max_f32_dpp {M}, {mm}, {mm} row_ror:8 {DPP}
    s_waitcnt lgkmcnt(0)
    v_mfma_f32_16x16x32_bf16 {vr(DD,4)}, {vr(XO,4)}, {vr(WB,4)}, 0
    v_max_f32_dpp {M}, {M}, {M} row_ror:4 {DPP}
    v_mfma_f32_16x16x32_bf16 {vr(DD+4,4)}, {vr(XO,4)}, {vr(WB+4,4)}, 0
    v_mfma_f32_16x16x32_bf16 {vr(DD,4)}, {vr(XO+4,4)}, {vr(WB+8,4)}, {vr(DD,4)}
    v_max_f32_dpp {M}, {M}, {M} row_ror:2 {DPP}
    v_mfma_f32_16x16x32_bf16 {vr(DD+4,4)}, {vr(XO+4,4)}, {vr(WB+12,4)}, {vr(DD+4,4)}
    s_nop 0
    v_max_f32_dpp {M}, {M}, {M} row_ror:1 {DPP}
    v_sub_f32 {e_}, {mm}, {M}
    v_exp_f32 {e_}, {e_}
    v_mul_f32 {Lt}, {e_}, {ll}""")
        z0, z1 = v(TT + 5), v(TT + 6)
        for r in range(4):
            op = "v_mul_f32_dpp" if r == 0 else "v_fmac_f32_dpp"
            a(f"    {op} {z0}, {e_}, {v(DD+r)} row_newbcast:{r} {DPP}")
            a(f"    {op} {z1}, {e_}, {v(DD+4+r)} row_newbcast:{r} {DPP}")
            a(f"    v_add_f32_dpp {Lt}, {Lt}, {Lt} row_ror:{8 >> r} {DPP}")
        a(f"""    s_cmp_eq_u32 {sW}, 0
    v_permlane32_swap_b32 {z0}, {z1}
    v_rcp_f32 {Lt}, {Lt}
    v_add_f32 {z0}, {z0}, {z1}
    v_mov_b32 {z1}, {z0}
    v_permlane16_swap_b32 {z0}, {z1}
    v_add_f32 {z0}, {z0}, {z1}
    v_mul_f32 {z0}, {z0}, {Lt}
    ds_write_b32 {vW4}, {z0} offset:{RW - RQ}
    s_waitcnt lgkmcnt(0)
    s_barrier
    s_cbranch_scc0 L_roles""")
    red8(vR4, (RW - RQ) // 256, TT)
    sum8(v(TT + 8), TT, extra=vRes)
    quad4(TT + 8)
    execm(mY)
    a(f"    buffer_store_dwordx4 {vr(TT+8,4)}, {pY}, {sWS}, {sL} offen sc1")
    if "b" in o["hint"]:
        execm("1")
        hint_post(0)
    execm("-1")
    a(f"""L_roles:
    s_cmp_lt_u32 {sIdx}, 14
    s_cbranch_scc0 L_nogu""")
    tail("L_nogu:")
    if o["wd_at"] == "afterY":
        tail(f"    s_cmp_eq_u32 {sL}, 0\n    s_cbranch_scc0 L_dn")
        into(tail, wd_load)
    tail(f"""    s_xor_b32 {sT1}, s2, 255
    s_or_b32 {sT1}, {sT1}, {sL}
    s_or_b32 {sT1}, {sT1}, {sW}
    s_cbranch_scc1 L_dn
    ; every workgroup has read the epoch word by now: leave this launch's tag for the next one
    v_mov_b32 {t5}, {QL + 1028}
    ds_read_b32 {v(DD)}, {t5}
    v_lshlrev_b32 {t5}, 4, {vL}
    s_waitcnt lgkmcnt(0)
    v_mov_b32 {v(DD+1)}, {v(DD)}
    v_mov_b32 {v(DD+2)}, {v(DD)}
    v_mov_b32 {v(DD+3)}, {v(DD)}
    s_mov_b64 exec, 0xff
    buffer_store_dwordx4 {vr(DD,4)}, {t5}, {sWS}, 0 offen sc1
    s_mov_b64 exec, -1""")
    tail("    s_branch L_dn")
    a(f"    s_cmp_eq_u32 {sL}, 0\n    s_cbranch_scc1 L_gu0")
    tail(f"""L_gu0:
    v_mul_u32_u24 {vA}, 3584, {vDma}
    v_add_u32 {vA}, {vA}, {vHalf}
    s_mov_b32 {sT1}, {32*3584}""")
    for srdn, off, so in ((sWg, T_FF, "0"), (sWg, T_FF + 1024, sT1), (sWu, T_FF + 2048, "0"), (sWu, T_FF + 3072, sT1)):
        into(tail, dma, srdn, off, so)
    wd_here = o["wd_at"] == "afterY" and not o["wdb"]
    if wd_here:
        into(tail, wd_load)
    if o["ack"]:
        tail(f"    s_waitcnt vmcnt({4 + wd_here})")
    tail("    s_branch L_gu1")
    if o["ack"]:
        a("    s_waitcnt vmcnt(0)")
    a("L_gu1:")
    if "b" in o["hint"]:
        a(f"    s_cmp_eq_u32 {sW}, 0\n    s_cbranch_scc0 L_gu2")
        hint_wait("L_hb")
        a("L_gu2:")
    a("    s_barrier")
    stampL(11)
    def gu_mid():
        for i in range(4):
            tr_read(WB + 4 * i, T_FF + 1024 * i)
    def gu_got():
        stampL(12)
    gather_x(aY, sL, "L_pb", gu_got, gu_mid)
    if o["wd_at"] == "afterY" and o["wdb"] and o["inl"]:
        wd_load()
    elif o["wd_at"] == "afterY" and o["wdb"]:
        a(f"    s_cmp_eq_u32 {sL}, 0\n    s_cbranch_scc1 L_wdb\nL_wdb1:")
        tail("L_wdb:")
        into(tail, wd_load)
        tail("    s_branch L_wdb1")
    a(f"""    s_waitcnt lgkmcnt(1)
    v_mfma_f32_16x16x32_bf16 {vr(DD,4)}, {vr(WB,4)}, {vr(XO,4)}, 0
    v_mfma_f32_16x16x32_bf16 {vr(DD+4,4)}, {vr(WB+8,4)}, {vr(XO,4)}, 0
    v_mfma_f32_16x16x32_bf16 {vr(DD+8,4)}, {vr(XO,4)}, {vr(XO,4)}, 0
    s_waitcnt lgkmcnt(0)
    v_mfma_f32_16x16x32_bf16 {vr(DD,4)}, {vr(WB+4,4)}, {vr(XO+4,4)}, {vr(DD,4)}
    v_mfma_f32_16x16x32_bf16 {vr(DD+4,4)}, {vr(WB+12,4)}, {vr(XO+4,4)}, {vr(DD+4,4)}
    v_mfma_f32_16x16x32_bf16 {vr(DD+8,4)}, {vr(XO+4,4)}, {vr(XO+4,4)}, {vr(DD+8,4)}
    s_add_u32 {sT1}, {sL}, {W_H}
    s_cmp_eq_u32 {sW}, 0""")
    two_tile_write(RG)
    stats_write(RG)
    a("    s_cbranch_scc0 L_dn")
    S = two_tile_reduce(RG, 8, vR4, vR4c)
    U = v(DD + 6)
    a(f"""    v_mov_b32 {U}, {S}
    v_permlane32_swap_b32 {S}, {U}
    v_max_f32 {S}, 0, {S}
    v_mul_f32 {S}, {S}, {U}""")
    pack16(DD + 8, S, U)
    execm(m8)
    local_store(f"buffer_store_dwordx4 {vr(DD+8,4)}, {pS}, {sWS}, {sT1} offen", "L_sh")
    execm("-1")
    stampL(13)
    a(f"""L_dn:
    s_cmp_eq_u32 {sW}, 7
    s_cbranch_scc1 L_dn7
    s_or_b32 {sT1}, {sW}, {sG}
    s_cmp_eq_u32 {sT1}, 0
    s_cbranch_scc1 L_x1
L_dn0:""")
    a = tail
    a("L_dn7:")
    if o["clr2"] == "warm":
        a(f"""    s_cmp_eq_u32 {sL}, 0
    s_cbranch_scc0 L_dn1
    s_mov_b32 {sT3}, {OSTR}
    s_mov_b64 exec, {m16}
    buffer_load_dword {vDum}, {cO}, {sWS}, {sT3} offen sc1
    s_mov_b64 exec, 1
    buffer_load_dword {vDum}, {cQ}, {sWS}, 0 offen sc1
    s_mov_b32 exec_lo, 0x01000100
    buffer_load_dword {vDum}, {cF}, {sWS}, 0 offen sc1
    s_mov_b64 exec, -1""")
    a("    s_branch L_dn1")
    a("L_x1:\n    s_waitcnt vmcnt(0)")
    sum_cols(aX1, sL, "L_pr", vX1)
    a(f"""    v_cvt_pk_bf16_f32 {vX1}, {vX1}, {vX1}
    v_and_b32 {vX1}, 0xffff0000, {vX1}
    s_branch L_dn0""")
    a = main
    a("    s_waitcnt vmcnt(0)")
    tr_read(WB, T_WD)
    execm(mC2)
    poll([(f"buffer_load_dwordx4 {vr(XO,4)}, {aH}, {sWS}, {sL} offen sc1", [v(XO + i) for i in range(4)])], "L_pc2")
    execm("-1")
    stampL(14)
    a(f"""    s_waitcnt lgkmcnt(0)
    v_mfma_f32_16x16x32_bf16 {vr(DD,4)}, {vr(WB,4)}, {vr(XO,4)}, 0
    ds_write_b128 {vWd}, {vr(DD,4)} offset:{RD - RQ}
    s_waitcnt lgkmcnt(0)
L_dn1:
    s_cmp_eq_u32 {sW}, 0
    s_barrier
    s_cbranch_scc0 L_dn2""")
    red8(vR4, (RD - RQ) // 256, TT)
    sum8(v(TT + 8), TT, extra=vX1)
    quad4(TT + 8)
    execm(mZ)
    a(f"    buffer_store_dwordx4 {vr(TT+8,4)}, {pZ}, {sWS}, {sL} offen sc1")
    if "d" in o["hint"] or "f" in o["hint"]:
        execm("1")
        hint_post(1)
    execm("-1")
    a(f"L_dn2:\n    s_cmp_eq_u32 {sL}, 0\n    s_cbranch_scc1 L_q")
    a(f"""    s_and_b32 {sT1}, {sIdx}, 7
    s_xor_b32 {sT1}, {sT1}, {sG}
    s_or_b32 {sT1}, {sT1}, {sW}
    s_cbranch_scc1 L_done""")
    if "f" in o["hint"]:
        hint_wait("L_hf")
    if o["ack"]:
        a("    s_waitcnt vmcnt(0)")
    stamp(31)
    sum_cols(aFin, sL, "L_pf", v(DD))
    if o["x_pad"] == "loop":
        a(f"    s_mov_b32 {sT1}, 0\nL_pad:")
        for i in range(62):
            a(f"    v_add3_u32 {v(TT)}, {v(TT)}, {v(TT+1)}, {v(TT+2)}")
        a(f"    s_add_u32 {sT1}, {sT1}, 1\n    s_cmp_lt_u32 {sT1}, 16\n    s_cbranch_scc1 L_pad")
    if o["x_pad"] == "line":
        for i in range(1024):
            a(f"    v_add3_u32 {v(TT)}, {v(TT)}, {v(TT+1)}, {v(TT+2)}")
    if o["x_pad"] == "far":
        a("    s_branch L_far\nL_farb:")
    if o["bias"]:
        a(f"    v_add_f32 {v(DD)}, {f32(o['bias'])}, {v(DD)}")
    pack16(DD + 4, v(DD), v(DD + 1))
    execm(m8)
    a(f"    buffer_store_dwordx4 {vr(DD+4,4)}, {pOut}, {sOut}, 0 offen")
    stamp(20)
    a("L_done:")
    if o["diag"]:
        execm("-1")
        stamp(21)
        a(f"""    s_waitcnt lgkmcnt(0)
    v_writelane_b32 {vStamp}, s98, 21
    v_writelane_b32 {vStamp}, {sPure}, 32
    v_writelane_b32 {vStamp}, {sCnt}, 33
    s_lshl_b32 {sT1}, s2, 3
    s_add_u32 {sT1}, {sT1}, {sW}
    s_lshl_b32 {sT1}, {sT1}, 8
    s_add_u32 {sT1}, {sT1}, {W_DIAG}
    buffer_store_dword {vStamp}, {aV}, {sWS}, {sT1} offen""")
        if o["x_dbg"]:
            a(f"""    s_mov_b32 s40, s24
    s_mov_b32 s41, s25
    s_mov_b32 s42, 256
    s_mov_b32 s43, 0x20000
    v_readlane_b32 {sT1}, {vStamp}, 0
    s_not_b32 {sT2}, {sT1}
    v_mov_b32 {v(TT)}, 0
    v_writelane_b32 {v(TT)}, {sT2}, 0""")
            for n, k in enumerate(o["x_dbg"]):
                a(f"    v_readlane_b32 {sT1}, {vStamp}, {k}\n    s_nop 3\n    v_writelane_b32 {v(TT)}, {sT1}, {n+1}")
            a(f"    s_mov_b64 exec, 0xffff\n    buffer_atomic_umax {v(TT)}, {aV}, s[40:43], 0 offen")
    a("L_end:\n    s_endpgm")
    a(tail.text().rstrip("\n"))
    a(tail2.text().rstrip("\n"))
    a("L_codeend:")
    if o["x_pad"] == "far":
        a("    s_endpgm\nL_far:")
        for i in range(1024):
            a(f"    v_add3_u32 {v(TT)}, {v(TT)}, {v(TT+1)}, {v(TT+2)}")
        a("    s_branch L_farb")
    body, nops = hazard.fix(a.text())
    return body


HEAD = open("interleave_layers__gqa_block_cached__glu_gated_reglu__decode.s.ref").read().split("; Override")[0]

def write(path, **kw):
    body = gen(**kw)
    txt = kernel_file(NAME, body, 256, 512, LDS_BYTES, vgpr=256, accum=256, sgpr=102, comment=HEAD)
    open(path, "w").write(txt)
    build(path, NAME)
    return path

if __name__ == "__main__":
    write("main_diag.s", diag=True)
    write("main.s")
    print("LDS", LDS_BYTES)
```

```python
import sys, math, struct
from asmlib import *
import hazard

NAME = "interleave_layers__gqa_block_cached__glu_gated_reglu__decode_kernel"

def f32(x):
    return "0x%08x" % struct.unpack("<I", struct.pack("<f", x))[0]

DEFAULT = dict(
    kvf="nt",
    wf="",
    wd_at="afterY",
    pf_at="wo",
    l2pf=True,
    ack=True,
    force_slow=False,
    diag=False,
    prefetch=True,
    spin=8000000,
    bias=0.0,
    x_stop=None,
    x_nogather=False,
    x_nowq=False,
    qbar=True,
    b1first=False,
    pol=0,
    klin=True,
    esmall=True,
    kpre=2,
    spec=True,
    inl=True,
    hint='',
    wo_at='X',
    aover=True,
    wdb=True,
    qkearly=True,
    w64=False,
    clr2="warm2",
    x_noclr=False,
    x_half=False,
    x_delay=None,
    x_nopub=False,

    x_pad=None,
    x_dbg=None,
    b1at=12,
    kwait=48,
)

WVS = 11264
T_WQ, T_WO, T_FF, T_WD = 0, 2048, 6144, 10240
OB = 8 * WVS
XB = OB + 16384
ONES = XB + 2048
QL = ONES + 1024
MLB = QL + 1024 + 256
RQ = MLB + 256
RQC = RQ + 2048
RW = RQC + 2048
RG = RW + 2048
RGC = RG + 2048
RD = RGC + 2048
DUM = RD + 2048
LDS_BYTES = DUM + (DUM - RQ) + 1024
F0 = 0x10000
W_ML, W_H, W_Y, W_Z, W_Q2 = F0, F0 + 0x10000, F0 + 0x20000, F0 + 0x30000, F0 + 0x40000
LSTR = 0x8000
W_Q1 = 0x58000
W_GF = 0x8000
W_HT = 0x9000
W_O = 0x70000
OSTR = 0x50000
OSLOT = 1024
W_DIAG = 0x200000
WS_BYTES = 0x400000
TAG_STEP = 0x9E3779B0


def gen(**kw):
    o = dict(DEFAULT); o.update(kw)
    a = Asm()
    kvf, wf = o["kvf"], o["wf"]
    sW = "s3"
    sK, sV, sWS, sWq, sX, sWo, sWg, sWu, sOut = [f"s[{i}:{i+3}]" for i in (28, 32, 36, 40, 44, 48, 52, 56, 60)]
    sWd = "s[4:7]"
    sG, sIdx, sB, sS, sO, sPure, sTag, sCnt, sL, sLO = [f"s{i}" for i in range(64, 74)]
    sT0, sT1, sT2, sT3 = "s74", "s75", "s76", "s77"
    sM0 = "s78"
    sYo = "s79"
    sMode = sTag
    sKh = "s101"
    c4k = {0: "0", 1: "s80", 2: "s81", 3: "s82"}
    sPlo, sPhi = "s83", "s84"
    sXcc = "s85"
    mC2, m16, m8, mY, mZ = "s[86:87]", "s[88:89]", "s[90:91]", "s[92:93]", "s[96:97]"
    sSt = "s[98:99]"
    vL = "v0"
    names = """vKG vC vT vT0 vT1 vTq vR4 vL16 vW4 vWg vWd vR4c vGS vOw vOw2 vOr vMLw vMLr vXw vXr
               aK aV aQ2 aO aML aY aH aZ aX1 aFin aRes pO pML pY pZ pS pQ pOut
               vDma vHalf vScale vInv vRes vX1 vStamp vA vEp""".split()
    R = {n: f"v{i+1}" for i, n in enumerate(names)}
    globals().update(R)
    assert len(names) + 1 <= 48, len(names)
    WB = 48
    XO = 64
    DD = 88
    TT = 104
    KB = 124
    VB = 188
    v = lambda i: f"v{i}"
    vr = lambda i, n: f"v[{i}:{i+n-1}]"
    DPP = "row_mask:0xf bank_mask:0xf"
    CHK = v(TT + 19)
    vDum = v(TT + 18)

    def stamp(i, layered=False):
        if o["diag"] is True or (o["diag"] == "light" and i == 21) or (isinstance(o["diag"], tuple) and (i in o["diag"] or i == 21)):
            a(f"    s_mov_b32 m0, s100\n    v_writelane_b32 {vStamp}, s98, m0\n    s_memrealtime {sSt}")
            if layered:
                a(f"    s_lshr_b32 s100, {sL}, 11\n    s_or_b32 s100, s100, {i}")
            else:
                a(f"    s_mov_b32 s100, {i}")
    stampL = lambda i: stamp(i, True)

    def srd(dst, lo, off_sgpr, size):
        d = int(dst[2:dst.index(":")])
        if off_sgpr is None:
            a(f"    s_mov_b32 s{d}, s{lo}\n    s_mov_b32 s{d+1}, s{lo+1}\n    s_mov_b32 s{d+2}, {size}")
        else:
            a(f"    s_add_u32 s{d}, s{lo}, {off_sgpr}\n    s_addc_u32 s{d+1}, s{lo+1}, 0\n    s_sub_u32 s{d+2}, {size}, {off_sgpr}")
        a(f"    s_mov_b32 s{d+3}, 0x20000")

    tail = Asm()
    tail2 = Asm()

    def into(stream, fn, *args):
        nonlocal a
        old, a = a, stream
        fn(*args)
        a = old

    def execm(m):
        a(f"    s_mov_b64 exec, {m}")

    def spin_tail(lbl):
        a(f"    s_cbranch_vccnz {lbl}_again\n{lbl}_ok:")
        tail2(f"{lbl}_again:\n    s_sub_u32 {sCnt}, {sCnt}, 1\n    s_cbranch_scc0 {lbl}\n    s_mov_b32 {sCnt}, 0\n    s_branch {lbl}_ok")

    def poll(loads, lbl, mid=None, mid2=None, younger=0, once=None, after=None):
        a(f"{lbl}:")
        for l, _ in loads:
            a("    " + l)
        if mid:
            mid()
        first = True
        pend = []
        for i, (_, regs) in enumerate(loads):
            a(f"    s_waitcnt vmcnt({len(loads)-1-i+younger})")
            if i == 0 and mid2:
                mid2()
            pend += regs
            last = i == len(loads) - 1 or (after and i in after)
            while len(pend) >= (3 if first else 2) or (last and pend):
                if first:
                    if len(pend) >= 3:
                        a(f"    v_max3_u32 {CHK}, {pend[0]}, {pend[1]}, {pend[2]}"); pend = pend[3:]
                    elif len(pend) == 2:
                        a(f"    v_max_u32 {CHK}, {pend[0]}, {pend[1]}"); pend = []
                    else:
                        a(f"    v_mov_b32 {CHK}, {pend[0]}"); pend = []
                    first = False
                elif len(pend) >= 2:
                    a(f"    v_max3_u32 {CHK}, {pend[0]}, {pend[1]}, {CHK}"); pend = pend[2:]
                else:
                    a(f"    v_max_u32 {CHK}, {pend[0]}, {CHK}"); pend = []
            if after and i in after:
                after[i]()
        a(f"    v_cmp_eq_u32 vcc, -1, {CHK}")
        if once:
            a(f"    s_cbranch_vccnz {once}\n    s_branch {once}_ok")
        else:
            spin_tail(lbl)

    def local_store(ins, lbl):
        if o["force_slow"]:
            a("    " + ins.replace("\n    s_mov_b64 exec, 1\n", " sc1\n    s_mov_b64 exec, 1\n") + " sc1")
            return
        a(f"    s_cmp_eq_u32 {sPure}, 0\n    s_cbranch_scc1 {lbl}_wt\n    {ins}\n{lbl}_e:")
        tail2(f"{lbl}_wt:\n    " + ins.replace("\n    s_mov_b64 exec, 1\n", " sc1\n    s_mov_b64 exec, 1\n") + f" sc1\n    s_branch {lbl}_e")

    vHt = v(TT + 10)
    def hint_post(use):
        a(f"""    s_lshr_b32 {sT0}, {sL}, {15 - 11}
    s_lshl_b32 {sT3}, {sG}, 7
    s_add_u32 {sT0}, {sT0}, {sT3}
    s_add_u32 {sT0}, {sT0}, {W_HT + use * 1024}
    s_lshl_b32 {sT3}, {sIdx}, 2
    s_add_u32 {sT3}, {sT3}, {sT0}
    buffer_store_dword {vEp}, off, {sWS}, {sT3}""")
    def hint_wait(lbl):
        a(f"""    s_cmp_eq_u32 {sPure}, 0
    s_cbranch_scc1 {lbl}_ok
    s_mov_b32 exec_hi, 0
{lbl}:
    buffer_load_dword {vHt}, {aV}, {sWS}, {sT0} offen sc1
    s_waitcnt vmcnt(0)
    v_cmp_ne_u32 vcc, {vHt}, {vEp}""")
        spin_tail(lbl)
        a("    s_mov_b64 exec, -1")

    def ackwait():
        if o["x_delay"] is not None:
            for i in range(o["x_delay"]):
                a("    s_nop 15")
        elif o["ack"]:
            a("    s_waitcnt vmcnt(0)")

    def dma(srdn, tile_off, soff):
        a(f"    s_add_u32 m0, {sM0}, {tile_off}")
        a(f"    buffer_load_dwordx4 {vA}, {srdn}, {soff} offen {wf} lds")

    def tr_read(dst, tile_off):
        a(f"    ds_read_b64_tr_b16 {vr(dst,2)}, {vT} offset:{tile_off}")
        a(f"    ds_read_b64_tr_b16 {vr(dst+2,2)}, {vT} offset:{tile_off+512}")

    def red8(addr, unit0, tmp):
        for i in range(4):
            a(f"    ds_read2st64_b32 {vr(tmp+2*i,2)}, {addr} offset0:{unit0+2*i} offset1:{unit0+2*i+1}")

    def sum8(dst, tmp, extra=None, later=0):
        for i in range(4):
            a(f"    s_waitcnt lgkmcnt({3 - i + later})")
            a(f"    v_add_f32 {v(tmp+2*i)}, {v(tmp+2*i)}, {v(tmp+2*i+1)}")
            if i == 1:
                a(f"    v_add_f32 {v(tmp)}, {v(tmp)}, {v(tmp+2)}")
                if extra:
                    a(f"    v_add_f32 {v(tmp)}, {v(tmp)}, {extra}")
        a(f"    v_add_f32 {v(tmp+4)}, {v(tmp+4)}, {v(tmp+6)}")
        a(f"    v_add_f32 {dst}, {v(tmp)}, {v(tmp+4)}")

    def ln_stats(S2, S1, mu, rstd):
        a(f"    v_mul_f32 {mu}, {f32(1/512)}, {S1}")
        a(f"    v_mul_f32 {S2}, {f32(1/512)}, {S2}")
        a(f"    v_fma_f32 {S2}, -{mu}, {mu}, {S2}")
        a(f"    v_max_f32 {S2}, 0, {S2}")
        a(f"    v_add_f32 {S2}, {f32(1e-5)}, {S2}")
        a(f"    v_rsq_f32 {rstd}, {S2}")

    def pack16(d, S, T):
        a(f"    v_mov_b32_dpp {T}, {S} quad_perm:[1,1,3,3] {DPP}")
        a(f"    v_cvt_pk_bf16_f32 {v(d)}, {S}, {T}")
        for i in (1, 2, 3):
            a(f"    v_mov_b32_dpp {v(d+i)}, {v(d)} row_shl:{2*i} {DPP}")

    def quad4(d):
        for i in (1, 2, 3):
            a(f"    v_mov_b32_dpp {v(d+i)}, {v(d)} quad_perm:[{i},{i},{i},{i}] {DPP}")

    def gather_x(addr, soff, lbl, st, mid2=None, xw=None):
        Y = XO + 8
        poll([(f"buffer_load_dwordx4 {vr(Y+4*i,4)}, {addr}, {sWS}, {soff} offen offset:{128*i} sc1",
               [v(Y + 4 * i + j) for j in range(4)]) for i in range(2 if o['x_half'] else 4)], lbl, None, mid2,
             after={1: lambda: [a(f"    v_pk_add_f32 {vr(Y+j,2)}, {vr(Y+j,2)}, {vr(Y+4+j,2)}") for j in (0, 2)]} if o["spec"] else None)
        st()
        for j in (0, 2):
            if not o["spec"]:
                a(f"    v_pk_add_f32 {vr(Y+j,2)}, {vr(Y+j,2)}, {vr(Y+4+j,2)}")
            a(f"    v_pk_add_f32 {vr(Y+8+j,2)}, {vr(Y+8+j,2)}, {vr(Y+12+j,2)}")
        for j in (0, 2):
            a(f"    v_pk_add_f32 {vr(Y+j,2)}, {vr(Y+j,2)}, {vr(Y+8+j,2)}")
        a(f"""    v_permlane32_swap_b32 {v(Y)}, {v(Y+2)}
    v_permlane32_swap_b32 {v(Y+1)}, {v(Y+3)}
    v_pk_add_f32 {vr(Y,2)}, {vr(Y,2)}, {vr(Y+2,2)}
    v_cvt_pk_bf16_f32 {v(Y)}, {v(Y)}, {v(Y+1)}
    ds_write_b32 {xw or vXw}, {v(Y)}
    ds_read_b128 {vr(XO,4)}, {vXr}
    ds_read_b128 {vr(XO+4,4)}, {vXr} offset:64""")

    def sum_cols(addr, soff, lbl, dst):
        poll([(f"buffer_load_dword {v(TT+i)}, {addr}, {sWS}, {soff} offen offset:{128*i} sc1", [v(TT + i)]) for i in range(4)], lbl)
        a(f"""    v_add_f32 {v(TT)}, {v(TT)}, {v(TT+1)}
    v_add_f32 {v(TT+2)}, {v(TT+2)}, {v(TT+3)}
    v_add_f32 {dst}, {v(TT)}, {v(TT+2)}
    v_mov_b32 {v(TT)}, {dst}
    v_permlane32_swap_b32 {dst}, {v(TT)}
    v_add_f32 {dst}, {dst}, {v(TT)}""")

    def two_tile_write(base):
        a(f"    ds_write_b128 {vWg}, {vr(DD,4)} offset:{base - RQ}")
        a(f"    ds_write_b128 {vWg}, {vr(DD+4,4)} offset:{base - RQ + 128}")

    def stats_write(base):
        a(f"    ds_write_b128 {vL16}, {vr(DD+8,4)} offset:{base - RQ + 2048 + 192}")
        a("    s_waitcnt lgkmcnt(0)\n    s_barrier")

    def two_tile_reduce(base, n, aD, aC):
        st = v(TT + 8)
        S2, S1, mu, rs, S, CS = v(DD), v(DD + 1), v(DD + 2), v(DD + 3), v(DD + 4), v(DD + 5)
        u = (base - RQ) // 256
        h = n // 2
        a(f"    ds_read_b32 {st}, {vGS} offset:{base - RQ}")
        for i in range(h):
            a(f"    ds_read2st64_b32 {vr(TT+2*i,2)}, {aD} offset0:{u+2*i} offset1:{u+2*i+1}")
        for i in range(h):
            a(f"    ds_read2st64_b32 {vr(XO+2*i,2)}, {aC} offset0:{u+2*i} offset1:{u+2*i+1}")
        chain = [f"v_add_f32_dpp {st}, {st}, {st} quad_perm:[1,0,3,2] {DPP}",
                 f"v_add_f32_dpp {st}, {st}, {st} quad_perm:[2,3,0,1] {DPP}",
                 f"v_add_f32_dpp {st}, {st}, {st} row_half_mirror {DPP}",
                 f"v_mul_f32_dpp {mu}, {st}, {vInv} row_newbcast:8 {DPP}\n    v_mul_f32_dpp {S2}, {st}, {vInv} row_newbcast:0 {DPP}",
                 f"v_fma_f32 {S2}, -{mu}, {mu}, {S2}\n    v_max_f32 {S2}, 0, {S2}\n    v_add_f32 {S2}, {f32(1e-5)}, {S2}\n    v_rsq_f32 {rs}, {S2}"]
        if n == 8:
            fill = [f"s_waitcnt lgkmcnt(6)\n    v_pk_add_f32 {vr(TT,2)}, {vr(TT,2)}, {vr(TT+2,2)}",
                    f"s_waitcnt lgkmcnt(4)\n    v_pk_add_f32 {vr(TT+4,2)}, {vr(TT+4,2)}, {vr(TT+6,2)}",
                    f"s_waitcnt lgkmcnt(2)\n    v_pk_add_f32 {vr(XO,2)}, {vr(XO,2)}, {vr(XO+2,2)}",
                    f"v_pk_add_f32 {vr(TT,2)}, {vr(TT,2)}, {vr(TT+4,2)}\n    s_waitcnt lgkmcnt(0)\n    v_pk_add_f32 {vr(XO+4,2)}, {vr(XO+4,2)}, {vr(XO+6,2)}",
                    f"v_pk_add_f32 {vr(XO,2)}, {vr(XO,2)}, {vr(XO+4,2)}\n    v_add_f32 {S}, {v(TT)}, {v(TT+1)}\n    v_add_f32 {CS}, {v(XO)}, {v(XO+1)}"]
        else:
            fill = [f"s_waitcnt lgkmcnt(2)\n    v_pk_add_f32 {vr(TT,2)}, {vr(TT,2)}, {vr(TT+2,2)}",
                    f"s_waitcnt lgkmcnt(0)\n    v_pk_add_f32 {vr(XO,2)}, {vr(XO,2)}, {vr(XO+2,2)}",
                    f"v_add_f32 {S}, {v(TT)}, {v(TT+1)}\n    v_add_f32 {CS}, {v(XO)}, {v(XO+1)}", None, None]
        a(f"    s_waitcnt lgkmcnt({2*h})")
        for c_, f_ in zip(chain, fill):
            a("    " + c_)
            if f_:
                a("    " + f_)
        a(f"    v_fma_f32 {S}, -{mu}, {CS}, {S}\n    v_mul_f32 {S}, {S}, {rs}")
        return S

    def add_bf16x8(d, A, B):
        for i in range(4):
            x, y = TT + 4 * (i & 1), TT + 4 * (i & 1) + 2
            a(f"""    v_lshlrev_b32 {v(x)}, 16, {A[i]}
    v_and_b32 {v(x+1)}, 0xffff0000, {A[i]}
    v_lshlrev_b32 {v(y)}, 16, {B[i]}
    v_and_b32 {v(y+1)}, 0xffff0000, {B[i]}
    v_pk_add_f32 {vr(x,2)}, {vr(x,2)}, {vr(y,2)}
    v_cvt_pk_bf16_f32 {v(d+i)}, {v(x)}, {v(x+1)}""")

    def r64_addr(shift):
        t = v(TT + 7)
        a(f"""    v_bfe_u32 {vA}, {vL}, 2, 2
    v_lshl_add_u32 {vA}, {vKG}, 3, {vA}
    v_lshlrev_b32 {vA}, {shift}, {vA}
    v_and_b32 {t}, 1, {vKG}
    v_lshlrev_b32 {t}, 1, {t}
    v_xor_b32 {t}, {t}, {vL}
    v_and_b32 {t}, 3, {t}
    v_lshl_add_u32 {vA}, {t}, 4, {vA}""")

    cO, cF, cQ = v(TT + 12), v(TT + 13), v(TT + 14)
    def slot_addrs():
        t2, t3, t4 = v(TT + 2), v(TT + 3), v(TT + 4)
        a(f"""    s_lshl_b32 {sT2}, {sO}, 10
    s_add_u32 {sT2}, {sT2}, {W_O}
    v_lshl_add_u32 {cO}, {vL}, 4, {sT2}
    v_mov_b32 {t2}, {sO}
    v_mov_b32 {t3}, {sYo}
    v_cmp_lt_u32 vcc, 1, {vKG}
    v_cndmask_b32 {t2}, {t2}, {t3}, vcc
    v_lshrrev_b32 {t3}, 3, {vL}
    v_lshlrev_b32 {t4}, 15, {t3}
    v_lshl_add_u32 {cF}, {t2}, 7, {t4}
    v_and_b32 {t4}, 7, {vL}
    v_lshl_add_u32 {cF}, {t4}, 4, {cF}
    v_add_u32 {cF}, {F0}, {cF}
    s_lshl_b32 {sT2}, {sO}, 7
    s_add_u32 {sT2}, {sT2}, {W_Q2}
    v_lshlrev_b32 {t3}, 22, {t3}
    v_lshl_add_u32 {cQ}, {t4}, 4, {t3}
    v_add_u32 {cQ}, {sT2}, {cQ}
    s_mov_b32 {sT3}, {OSTR}""")

    def kshuffle():
        if not o["klin"]:
            return
        aw, ar = DD, DD + 4
        a(f"""    s_add_u32 {sT1}, {sM0}, {T_WO}
    v_xor_b32 {v(aw)}, {vC}, {vKG}
    v_lshlrev_b32 {v(ar)}, 4, {v(aw)}
    v_lshl_add_u32 {v(aw)}, {vKG}, 8, {v(ar)}
    v_lshl_add_u32 {v(ar)}, {vC}, 8, {v(ar)}
    v_add_u32 {v(aw)}, {sT1}, {v(aw)}
    v_add_u32 {v(ar)}, {sT1}, {v(ar)}""")
        for j in (1, 2, 3):
            a(f"    v_xor_b32 {v(aw+j)}, {64*j}, {v(aw)}\n    v_xor_b32 {v(ar+j)}, {64*j}, {v(ar)}")
        for u in range(4):
            h = (u & 1) * 4096
            if u:
                a("    s_waitcnt lgkmcnt(6)")
            for j in range(4):
                a(f"    ds_write_b128 {v(aw+j)}, {vr(KB+16*u+4*j,4)} offset:{h + 1024*j}")
            for t in range(4):
                a(f"    ds_read_b128 {vr(KB+16*u+4*t,4)}, {v(ar+t)} offset:{h}")

    def kload(i):
        if o["klin"]:
            a(f"    buffer_load_dwordx4 {vr(KB+16*(i&3)+4*(i>>2),4)}, {aK}, {sK}, {c4k[i>>2]} offen offset:{(i&3)*1024} {kvf}")
            return
        u, t = i // 4, i % 4
        a(f"    buffer_load_dwordx4 {vr(KB+4*i,4)}, {aK}, {sK}, 0 offen offset:{u*1024+t*64} {kvf}")

    t0, t1, t2, t3, t4, t5 = [v(TT + i) for i in range(6)]
    a(f"""    s_cmp_ge_u32 s2, 256
    s_cbranch_scc1 L_end
    s_load_dwordx16 s[4:19], s[0:1], 0
    s_load_dwordx8 s[20:27], s[0:1], 64
    v_lshrrev_b32 v1, 6, v0
    v_and_b32 {vL}, 63, v0
    v_readfirstlane_b32 {sW}, v1""")
    if o["diag"]:
        a(f"    v_mov_b32 {vStamp}, 0\n    s_memrealtime {sSt}\n    s_mov_b32 s100, 0")
    a(f"""    s_lshr_b32 {sIdx}, s2, 3
    s_and_b32 {sG}, s2, 7
    s_lshr_b32 {sB}, s2, 7
    s_and_b32 {sS}, {sIdx}, 15
    s_and_b32 {sKh}, {sIdx}, 1
    v_lshrrev_b32 {vKG}, 4, {vL}
    v_and_b32 {vC}, 15, {vL}
""")
    if o["klin"]:
        a(f"    v_lshlrev_b32 {aK}, 4, {vL}")
    else:
        a(f"""    ; K lane address: (c>>2)*4096 + (c&3)*256 + kg*16
    v_bfe_u32 {aK}, {vL}, 2, 2
    v_lshlrev_b32 {aK}, 12, {aK}
    v_and_b32 {t1}, 3, {vL}
    v_lshl_add_u32 {aK}, {t1}, 8, {aK}
    v_lshl_add_u32 {aK}, {vKG}, 4, {aK}""")
    a(f"""    ; kv byte offset: ((8b + g)*16 + s)*8 + w) << 14
    s_lshl3_add_u32 {sT0}, {sB}, {sG}
    s_lshl4_add_u32 {sT0}, {sT0}, {sS}
    s_lshl3_add_u32 {sT0}, {sT0}, {sW}
    s_lshl_b32 {sT0}, {sT0}, 14
    s_mov_b32 s31, 0x20000
    s_sub_u32 s30, 33554432, {sT0}
    s_cmp_lt_u32 {sW}, 4
    s_cbranch_scc0 L_young
    s_lshl2_add_u32 {sT1}, {sKh}, {sW}
    s_lshl_b32 {sT1}, {sT1}, 19
    s_lshr_b32 {sT2}, {sIdx}, 1
    s_lshl4_add_u32 {sT2}, {sG}, {sT2}
    s_lshl_b32 {sT2}, {sT2}, 6
    s_add_u32 {sT1}, {sT1}, {sT2}
    s_mul_i32 {sT3}, {sW}, {2*WVS}""")
    r64_addr(13)
    a(f"""    s_mov_b32 s43, 0x20000
    s_sub_u32 s42, 4194304, {sT1}
    s_add_u32 m0, {sT3}, {T_WQ}
    s_waitcnt lgkmcnt(0)
    s_add_u32 s40, s10, {sT1}
    s_addc_u32 s41, s11, 0""")
    if o["diag"]:
        stamp(2)
        a(f"    s_add_u32 m0, {sT3}, {T_WQ}")
    for k in range(0 if o["x_nowq"] else 4):
        if k:
            a(f"    s_add_u32 m0, {sT3}, {(k >> 1) * WVS + T_WQ + (k & 1) * 1024}")
            a(f"    s_mov_b32 {sT2}, {((k >> 1) * 32 + (k & 1) * 4) * 8192}")
        a(f"    buffer_load_dwordx4 {vA}, {sWq}, {sT2 if k else 0} offen {wf} lds")
    a(f"    s_add_u32 s28, s6, {sT0}\n    s_addc_u32 s29, s7, 0")
    def common2():
        a(f"""    v_lshlrev_b32 {aV}, 2, {vL}
    s_lshl_b32 {sO}, {sG}, 5
    s_add_u32 {sO}, {sO}, {sIdx}
    s_mov_b32 s80, 4096
    s_mov_b32 s81, 8192
    s_mov_b32 s82, 12288
    s_add_u32 s32, s8, {sT0}
    s_addc_u32 s33, s9, 0
    s_mov_b32 s34, s30
    s_mov_b32 s35, 0x20000
    s_mov_b32 s36, s26
    s_mov_b32 s37, s27
    s_mov_b32 s38, {WS_BYTES}
    s_mov_b32 s39, 0x20000
    s_lshr_b32 {sT1}, {sG}, 2
    s_xor_b32 {sT1}, {sT1}, {o["pol"]}
    s_lshl1_add_u32 {sYo}, {sB}, {sT1}
    s_lshl4_add_u32 {sYo}, {sYo}, {sS}
    s_and_b32 {sT1}, {sG}, 3
    s_lshl2_add_u32 {sYo}, {sYo}, {sT1}""")
    c0 = TT + 8
    def small_ops():
        a(f"""    v_lshlrev_b32 {t0}, 4, {vL}
    s_cmp_eq_u32 {sW}, 0
    s_cbranch_scc0 L_sm1""")
        srd(sX, 4, None, 2048)
        a(f"""    s_mov_b32 m0, {XB}
    s_nop 0
    buffer_load_dwordx4 {t0}, {sX}, 0 offen lds
    buffer_load_dwordx4 {t0}, {sX}, 0 offen offset:1024 lds
    s_branch L_sm9
L_sm1:
    s_cmp_eq_u32 {sW}, 3
    s_cbranch_scc0 L_sm2
    buffer_load_dword {vEp}, off, {sWS}, 0 offset:4 sc1
    s_branch L_sm9
L_sm2:
    v_mov_b32 {v(c0)}, -1
    v_mov_b32 {v(c0+1)}, -1
    v_mov_b32 {v(c0+2)}, -1
    v_mov_b32 {v(c0+3)}, -1""")
        slot_addrs()
        a(f"""    s_cmp_eq_u32 {sW}, 1
    s_cbranch_scc1 L_sm3
    v_mov_b32 {cO}, {cF}
    s_mov_b32 exec_lo, 0x00ff00ff
    s_mov_b32 exec_hi, 0x00ff00ff
L_sm3:
    buffer_store_dwordx4 {vr(c0,4)}, {cO}, {sWS}, 0 offen sc1
    s_mov_b64 exec, -1
L_sm9:""")
    for i in range(16):
        if i == o["kpre"]:
            common2()
            if o["esmall"]:
                small_ops()
        kload(i)
        if i + 1 == o["b1at"]:
            stamp(16)
            a(f"    s_waitcnt vmcnt({o['b1at'] - (o['kpre'] if o['esmall'] else 0)})")
            if o["esmall"]:
                a(f"""    s_cmp_eq_u32 {sW}, 3
    s_cbranch_scc0 L_b1
    v_mov_b32 {t3}, {QL + 1028}
    v_add_u32 {vEp}, {TAG_STEP}, {vEp}
    ds_write_b32 {t3}, {vEp}
    s_waitcnt lgkmcnt(0)
L_b1:""")
            a("    s_barrier")
            stamp(22)
    a("L_vloads:")
    for n in range(16):
        for r, d in ((0, 2), (1, 4), (2, 3), (3, 5)):
            key = 4 * n + r
            if key == o["kwait"]:
                a(f"    s_waitcnt vmcnt({key})")
                if o["qkearly"]:
                    a(f"    s_cmp_lt_u32 {sW}, 4\n    s_cbranch_scc0 L_mid\nL_vrest:")
            a(f"    buffer_load_dword {v(VB+4*n+d)}, {aV}, {sV}, {c4k[key//16]} offen offset:{(key%16)*256} {kvf}")
    stamp(5)
    a(f"""    s_cmp_lt_u32 {sW}, 4
    s_cbranch_scc0 L_joined
    s_branch L_setup
L_young:""")
    if o["prefetch"]:
        a(f"""    ; each of these waves pulls 128 bytes of the code into L2
    s_getpc_b64 s[94:95]
L_pc:
    s_lshl2_add_u32 {sT2}, {sIdx}, {sW}
    s_sub_u32 {sT2}, {sT2}, 4
    s_lshl_b32 {sT2}, {sT2}, 7
    s_min_u32 {sT2}, {sT2}, L_codeend-L_pc-64
    v_lshl_add_u32 {t2}, {vL}, 6, {sT2}
    s_mov_b64 exec, 3
    global_load_dword {vDum}, {t2}, s[94:95]
    s_mov_b64 exec, -1""")
    a(f"""    v_mov_b32 {t3}, {QL + 1024}
    v_mov_b32 {t4}, 0
    ds_write_b32 {t3}, {t4}
    s_waitcnt lgkmcnt(0)
    s_add_u32 s28, s6, {sT0}
    s_addc_u32 s29, s7, 0""")
    common2()
    a(f"""    s_cmp_eq_u32 {sW}, 7
    s_cbranch_scc1 L_w7a
    {"s_barrier" if o["b1first"] else ""}
    s_branch L_setup
L_w7a:""")
    a("    s_setprio 3")
    if not o["esmall"]:
        srd(sX, 4, None, 2048)
        a(f"""    s_mov_b32 m0, {XB}
    v_lshlrev_b32 {t0}, 4, {vL}
    v_mov_b32 {v(c0)}, -1
    buffer_load_dwordx4 {t0}, {sX}, 0 offen lds
    buffer_load_dwordx4 {t0}, {sX}, 0 offen offset:1024 lds
    buffer_load_dword {vEp}, off, {sWS}, 0 offset:4 sc1
    v_mov_b32 {v(c0+1)}, -1
    v_mov_b32 {v(c0+2)}, -1
    v_mov_b32 {v(c0+3)}, -1""")
        slot_addrs()
        if not o["x_noclr"]:
            a(f"""    buffer_store_dwordx4 {vr(c0,4)}, {cO}, {sWS}, 0 offen sc1
    s_mov_b32 exec_lo, 0x00ff00ff
    s_mov_b32 exec_hi, 0x00ff00ff
    buffer_store_dwordx4 {vr(c0,4)}, {cF}, {sWS}, 0 offen sc1
    s_mov_b64 exec, -1""")
    a(f"""L_setup:
    v_bfe_u32 {t5}, {vL}, 3, 2
    v_lshlrev_b32 {vDma}, 3, {t5}
    v_lshrrev_b32 {t5}, 5, {vL}
    v_lshl_add_u32 {vDma}, {t5}, 2, {vDma}
    v_bfe_u32 {t5}, {vL}, 1, 2
    v_add_u32 {vDma}, {vDma}, {t5}
    v_and_b32 {vHalf}, 1, {vL}
    v_lshlrev_b32 {vHalf}, 4, {vHalf}
    s_mul_i32 {sM0}, {sW}, {WVS}""")
    h8 = t1
    a(f"""    s_getreg_b32 {sXcc}, hwreg(HW_REG_XCC_ID, 0, 4)
    s_mov_b32 s86, 0x00030003
    s_mov_b32 s87, 0x00030003
    s_mov_b32 s88, 0x01010101
    s_mov_b32 s89, 0x01010101
    s_mov_b32 s90, 0x01010101
    s_mov_b32 s91, 0
    s_mov_b32 s92, 0x00001111
    s_mov_b32 s93, 0x00001111
    s_mov_b32 s96, 0x11111111
    s_mov_b32 s97, 0
    s_mov_b32 {sPlo}, 0x05040100
    s_mov_b32 {sPhi}, 0x07060302
    s_mov_b32 {sCnt}, {o['spin']}
    s_mov_b32 {sL}, 0
    s_mov_b32 {sLO}, 0
    s_mov_b32 {sPure}, 0
    s_mov_b32 {sMode}, 0
    v_lshrrev_b32 {t2}, 1, {vKG}
    v_and_b32 {t3}, 1, {vKG}
    v_lshl_add_u32 {vT}, {vL}, 3, {sM0}
    s_lshl_b32 {sT2}, {sW}, 8
    s_add_u32 {sT2}, {sT2}, {RQ}                ; RQ + w*256
    v_add_u32 {vW4}, {sT2}, {aV}
    v_add_u32 {vR4}, {RQ}, {aV}
    v_lshlrev_b32 {vWd}, 6, {vC}
    v_lshl_add_u32 {vWd}, {vKG}, 4, {vWd}
    v_add_u32 {vWd}, {sT2}, {vWd}
    v_lshlrev_b32 {t5}, 4, {vL}
    v_add_u32 {vL16}, {sT2}, {t5}
    v_add_u32 {t5}, {DUM}, {t5}
    v_add_u32 {vWg}, {2048 - 128}, {vWd}
    v_cmp_eq_u32 vcc, 2, {vC}
    v_cndmask_b32 {vWg}, {t5}, {vWg}, vcc
    v_cmp_gt_u32 vcc, 2, {vC}
    v_cndmask_b32 {vWg}, {vWg}, {vWd}, vcc
    v_cndmask_b32 {vWd}, {t5}, {vWd}, vcc
    v_cmp_gt_u32 vcc, 2, {vL}
    v_cndmask_b32 {vL16}, {t5}, {vL16}, vcc
    v_mov_b32 {vInv}, {f32(1/512)}
    v_mov_b32 {vScale}, {f32(128**-0.5 * math.log2(math.e))}
    v_mov_b32 {vRes}, 0
    v_mov_b32 {vX1}, 0
    ds_write_b32 {vR4}, {vRes} offset:{RD - RQ + 7*256}
    v_lshrrev_b32 {t4}, 2, {vC}
    s_and_b32 {sT3}, {sO}, 0xf0
    s_lshl_b32 {sT3}, {sT3}, 7
    s_add_u32 {sT3}, {sT3}, {W_Q2}
    v_lshl_add_u32 {aQ2}, {vL}, 4, {sT3}
    s_lshl_b32 {sT2}, {sG}, 12
    s_lshl_b32 {sT3}, {sW}, 8
    s_add_u32 {sT2}, {sT2}, {sT3}
    s_add_u32 {sT2}, {sT2}, {W_H}
    v_lshl_add_u32 {aH}, {t2}, 7, {sT2}
    v_lshl_add_u32 {aH}, {vC}, 5, {aH}
    v_lshl_add_u32 {aH}, {t3}, 4, {aH}
    s_and_b32 {sT2}, {sO}, 0xf0
    s_lshl_b32 {sT3}, {sW}, 1
    s_add_u32 {sT3}, {sT3}, {sT2}
    s_lshl_b32 {sT3}, {sT3}, 10
    s_add_u32 {sT3}, {sT3}, {W_O}
    v_lshl_add_u32 {aO}, {vL}, 4, {sT3}
    v_lshl_add_u32 {aML}, {vKG}, 2, {vC}
    v_and_b32 {aML}, 15, {aML}
    s_lshr_b32 {sT3}, {sW}, 1
    s_add_u32 {sT3}, {sT3}, {sT2}
    s_lshl_b32 {sT3}, {sT3}, 7
    s_add_u32 {sT3}, {sT3}, {W_ML}
    v_lshl_add_u32 {aML}, {aML}, 3, {sT3}
    v_xor_b32 {t1}, {o["pol"]}, {t2}
    v_lshlrev_b32 {t1}, 13, {t1}
    v_lshrrev_b32 {aY}, 3, {vC}
    v_lshl_add_u32 {aY}, {aY}, 9, {t1}
    v_lshl_add_u32 {aY}, {t3}, 14, {aY}
    v_and_b32 {t5}, 7, {vC}
    v_lshl_add_u32 {aY}, {t5}, 4, {aY}
    s_lshl_b32 {sT3}, {sW}, 10
    s_add_u32 {sT3}, {sT3}, {W_Y}
    v_add_u32 {aY}, {sT3}, {aY}
    v_bfe_u32 {aZ}, {vL}, 3, 2
    v_lshl_add_u32 {aZ}, {aZ}, 9, {t1}
    v_lshl_add_u32 {aZ}, {t5}, 4, {aZ}
    s_lshr_b32 {sT2}, {sW}, 2
    s_lshl_b32 {sT2}, {sT2}, 14
    s_and_b32 {sT3}, {sW}, 3
    s_lshl_b32 {sT3}, {sT3}, 11
    s_add_u32 {sT3}, {sT3}, {sT2}
    s_add_u32 {sT3}, {sT3}, {W_Z}
    v_add_u32 {aZ}, {sT3}, {aZ}
    ; x1 for this workgroup's 16 columns: b'*16384 + gh*8192 + (idx>>1)*512 + (idx&1)*64 + c*4
    v_lshl_add_u32 {t5}, {vC}, 2, {t1}
    s_lshr_b32 {sT2}, {sIdx}, 1
    s_lshl_b32 {sT2}, {sT2}, 9
    s_lshl_b32 {sT3}, {sKh}, 6
    s_add_u32 {sT2}, {sT2}, {sT3}
    s_add_u32 {sT2}, {sT2}, {W_Y}
    v_lshl_add_u32 {aX1}, {t3}, 14, {t5}
    v_add_u32 {aX1}, {sT2}, {aX1}
    s_lshl_b32 {sT2}, {sB}, 14
    s_lshl_b32 {sT3}, {sS}, 9
    s_add_u32 {sT2}, {sT2}, {sT3}
    s_add_u32 {sT2}, {sT2}, {W_Z}
    v_lshl_add_u32 {aFin}, {t3}, 6, {t5}
    v_add_u32 {aFin}, {sT2}, {aFin}
    s_lshl_b32 {sT2}, {sIdx}, 5
    v_lshlrev_b32 {pOut}, 10, {t3}
    v_lshl_add_u32 {pOut}, {vC}, 1, {pOut}
    v_add_u32 {pOut}, {sT2}, {pOut}
    s_and_b32 {sT1}, {sO}, 0xf0                 ; O: (o & 0xf0)*1024 + w*4096 + (l>>2)*256 + s*16 + (l&3)*4
    s_lshl_b32 {sT2}, {sW}, 2
    s_add_u32 {sT2}, {sT2}, {sT1}
    s_lshl_b32 {sT2}, {sT2}, 10
    s_lshl_b32 {sT3}, {sS}, 4
    s_add_u32 {sT2}, {sT2}, {sT3}
    s_add_u32 {sT2}, {sT2}, {W_O}
    v_lshrrev_b32 {pO}, 2, {vL}
    v_lshl_add_u32 {pO}, {pO}, 8, {sT2}
    v_and_b32 {t5}, 3, {vL}
    v_lshl_add_u32 {pO}, {t5}, 2, {pO}
    s_add_u32 {sT2}, {sT1}, {sW}
    s_lshl_b32 {sT2}, {sT2}, 7
    s_lshl_b32 {sT3}, {sS}, 3
    s_add_u32 {sT2}, {sT2}, {sT3}
    s_add_u32 {sT2}, {sT2}, {W_ML}
    v_mov_b32 {pML}, {sT2}
    s_bfe_u32 {sT2}, {sIdx}, 0x20001
    s_lshl_b32 {sT2}, {sT2}, 2
    s_lshr_b32 {sT3}, {sIdx}, 3
    s_add_u32 {sT2}, {sT2}, {sT3}
    s_lshl_b32 {sT2}, {sT2}, 4
    s_lshl_b32 {sT3}, {sG}, 12
    s_add_u32 {sT2}, {sT2}, {sT3}
    s_lshl_b32 {sT3}, {sKh}, 10
    s_add_u32 {sT2}, {sT2}, {sT3}
    s_add_u32 {sT2}, {sT2}, {W_Q2}
    v_lshl_add_u32 {pQ}, {t3}, 11, {sT2}
    v_lshl_add_u32 {pQ}, {t2}, 9, {pQ}
    v_lshrrev_b32 {t5}, 3, {vC}
    v_lshl_add_u32 {pQ}, {t5}, 8, {pQ}
    s_lshl_b32 {sT2}, {sO}, 7
    v_lshl_add_u32 {pS}, {vL}, 1, {sT2}         ; o*128 + (b*16+n)*2
    s_lshl_b32 {sT2}, {sYo}, 7
    s_add_u32 {sT3}, {sT2}, {W_Z}
    v_add_u32 {pZ}, {sT3}, {aV}
    s_add_u32 {sT2}, {sT2}, {W_Y}
    v_lshlrev_b32 {pY}, 2, {vC}
    v_lshl_add_u32 {pY}, {t2}, 6, {pY}
    v_add_u32 {pY}, {sT2}, {pY}
    v_lshrrev_b32 {vT0}, 2, {vL}
    v_lshlrev_b32 {vT0}, 6, {vT0}
    v_and_b32 {vT1}, 3, {vL}
    v_lshl_add_u32 {vT0}, {vT1}, 3, {vT0}
    v_lshl_add_u32 {vT0}, {t3}, 5, {vT0}
    s_and_b32 {sT2}, {sW}, 3
    s_mul_i32 {sT2}, {sT2}, {2*WVS}
    v_add_u32 {vTq}, {sT2}, {vT0}
    v_add_u32 {vT0}, {sM0}, {vT0}
    v_xor_b32 {vT1}, 32, {vT0}
    s_lshl_b32 {sT2}, {sW}, 11
    s_add_u32 {sT2}, {sT2}, {OB}
    v_lshl_add_u32 {vOw}, {vL}, 3, {sT2}
    v_add_u32 {vOw2}, 1024, {vOw}
    s_lshl_b32 {sT2}, {sW}, 9
    s_add_u32 {sT2}, {sT2}, {OB}
    v_lshl_add_u32 {vOr}, {vL}, 3, {sT2}
    s_lshl_b32 {sT2}, {sW}, 3
    s_add_u32 {sT2}, {sT2}, {MLB}
    v_and_b32 {vMLw}, 3, {vL}
    v_lshl_add_u32 {vMLw}, {vMLw}, 6, {sT2}
    s_lshl_b32 {sT2}, {sW}, 6
    s_add_u32 {sT2}, {sT2}, {MLB}
    v_and_b32 {vMLr}, 7, {vL}
    v_lshl_add_u32 {vMLr}, {vMLr}, 3, {sT2}
    v_lshlrev_b32 {vR4c}, 2, {vC}
    v_lshl_add_u32 {vR4c}, {t2}, 7, {vR4c}
    v_add_u32 {vR4c}, {RQC}, {vR4c}
    ; x staging
    s_lshl_b32 {sT2}, {sW}, 7
    s_add_u32 {sT2}, {sT2}, {XB}
    v_lshl_add_u32 {vXw}, {t3}, 10, {sT2}
    v_lshl_add_u32 {vXw}, {vC}, 3, {vXw}
    v_lshl_add_u32 {vXw}, {t2}, 2, {vXw}
    v_min_u32 {vXr}, 2, {vC}
    v_lshl_add_u32 {vXr}, {vXr}, 10, {sT2}
    v_lshl_add_u32 {vXr}, {vKG}, 4, {vXr}
    v_lshlrev_b32 {t5}, 2, {t3}
    v_cmp_gt_u32 vcc, 8, {vC}
    v_cndmask_b32 {t5}, 8, {t5}, vcc
    v_and_b32 {vGS}, 7, {vL}
    v_lshlrev_b32 {vGS}, 8, {vGS}
    v_lshl_add_u32 {vGS}, {t3}, 4, {vGS}
    v_add_u32 {vGS}, {vGS}, {t5}
    v_add_u32 {vGS}, {RQC + 192}, {vGS}
    v_lshlrev_b32 {t5}, 1, {vC}
    v_lshl_add_u32 {t5}, {t2}, 5, {t5}
    s_lshl_b32 {sT2}, {sB}, 10
    s_lshl_b32 {sT3}, {sS}, 6
    s_add_u32 {sT2}, {sT2}, {sT3}
    s_add_u32 {sT2}, {sT2}, {XB}
    v_add_u32 {aRes}, {sT2}, {t5}
    s_lshl_b32 {sT1}, {sG}, 19                  ; wo: (512g + 64(w&3))*1024 + s*64
    s_and_b32 {sT2}, {sW}, 3
    s_lshl_b32 {sT2}, {sT2}, 16
    s_add_u32 {sT1}, {sT1}, {sT2}
    s_lshl_b32 {sT2}, {sS}, 6
    s_add_u32 {sT1}, {sT1}, {sT2}""")
    srd(sWo, 12, sT1, 4194304)
    srd(sOut, 22, None, 2048)
    a(f"""    s_mul_i32 {sT1}, {sG}, 14
    s_min_u32 {sT2}, {sIdx}, 13
    s_add_u32 {sT1}, {sT1}, {sT2}
    s_lshl_b32 {sT1}, {sT1}, 5
    s_mul_i32 {sT2}, {sW}, {64*3584}
    s_add_u32 {sT1}, {sT1}, {sT2}""")
    srd(sWg, 16, sT1, 1835008)
    srd(sWu, 18, sT1, 1835008)
    a(f"""    s_mul_i32 {sT1}, {sG}, 7
    s_min_u32 {sT2}, {sW}, 6
    s_add_u32 {sT1}, {sT1}, {sT2}
    s_lshl_b32 {sT1}, {sT1}, 15
    s_lshl_b32 {sT2}, {sIdx}, 5
    s_add_u32 {sT1}, {sT1}, {sT2}""")
    srd(sWd, 20, sT1, 1835008)
    a(f"""    s_cmp_lt_u32 {sW}, 4
    s_cbranch_scc1 L_joined
    s_cmp_eq_u32 {sW}, 7
    s_cbranch_scc0 L_young2""")
    b0, b1, bx, by = t0, t1, t2, t5
    a(f"""    v_mov_b32 {v(DD)}, 0x3f803f80
    v_mov_b32 {v(DD+1)}, 0x3f803f80
    v_mov_b32 {v(DD+2)}, 0x3f803f80
    v_mov_b32 {v(DD+3)}, 0x3f803f80
    v_lshlrev_b32 {b0}, 4, {vL}
    v_add_u32 {b0}, {ONES}, {b0}
    ds_write_b128 {b0}, {vr(DD,4)}
    v_subrev_u32 {b0}, {sM0}, {vT0}
    v_xor_b32 {b1}, 32, {b0}
    s_lshl_b32 {sT2}, {sKh}, 9
    v_subrev_u32 {bx}, {7*128}, {vXr}
    v_add_u32 {bx}, {sT2}, {bx}
    v_xor_b32 {by}, 512, {bx}
    v_mov_b32 {t3}, {QL + 1028}""")
    if o["esmall"]:
        a(f"    s_waitcnt lgkmcnt(0)\n    s_barrier\n    ds_read_b32 {vEp}, {t3}")
    else:
        a(f"""    s_waitcnt vmcnt(0)
    v_add_u32 {vEp}, {TAG_STEP}, {vEp}
    ds_write_b32 {t3}, {vEp}
    s_waitcnt lgkmcnt(0)
    s_barrier""")
    assert XB % 1024 == 0
    def q1_reads(k):
        if k == 4:
            a(f"    v_add_u32 {b0}, {4*WVS}, {b0}\n    v_add_u32 {b1}, {4*WVS}, {b1}")
        off = (k & 3) * WVS + T_WQ
        A, B = WB + 8 * (k & 1), XO + 8 * (k & 1)
        for ct in range(2):
            for jj in range(2):
                a(f"    ds_read_b64_tr_b16 {vr(A+4*ct+2*jj,2)}, {(b0, b1)[ct]} offset:{off + 1024*jj}")
        a(f"    ds_read_b128 {vr(B,4)}, {bx} offset:{64*k}")
        a(f"    ds_read_b128 {vr(B+4,4)}, {by} offset:{64*k}")
    q1_reads(0); q1_reads(1)
    D0, D1, DS = DD, DD + 12, DD + 4
    for k in range(8):
        a(f"    s_waitcnt lgkmcnt({6 if k < 7 else 0})")
        A, B = WB + 8 * (k & 1), XO + 8 * (k & 1)
        c = lambda r: vr(r, 4) if k else "0"
        a(f"    v_mfma_f32_16x16x32_bf16 {vr(D0,4)}, {vr(A,4)}, {vr(B,4)}, {c(D0)}")
        a(f"    v_mfma_f32_16x16x32_bf16 {vr(DS,4)}, {vr(B,4)}, {vr(B,4)}, {c(DS)}")
        a(f"    v_mfma_f32_16x16x32_bf16 {vr(D1,4)}, {vr(A+4,4)}, {vr(B,4)}, {c(D1)}")
        a(f"    v_mfma_f32_16x16x32_bf16 {vr(DS,4)}, {vr(B+4,4)}, {vr(B+4,4)}, {vr(DS,4)}")
        if k + 2 < 8:
            q1_reads(k + 2)
    S2, S1, mu, rs = v(DD + 8), v(DD + 9), v(DD + 10), v(DD + 11)
    a(f"""    v_cmp_eq_u32 vcc, 0, {vC}
    v_readlane_b32 {sT0}, {v(DD+4)}, 0
    v_readlane_b32 {sT1}, {v(DD+5)}, 1
    v_readlane_b32 {sT2}, {v(DD+6)}, 0
    v_readlane_b32 {sT3}, {v(DD+6)}, 1
    v_mov_b32 {S2}, {sT0}
    v_mov_b32 {t3}, {sT1}
    v_mov_b32 {S1}, {sT2}
    v_mov_b32 {t4}, {sT3}
    v_cndmask_b32 {S2}, {t3}, {S2}, vcc
    v_cndmask_b32 {S1}, {t4}, {S1}, vcc""")
    ln_stats(S2, S1, mu, rs)
    a(f"""    s_lshl_b32 {sT2}, {sG}, 13
    s_lshl_b32 {sT3}, {sKh}, 11
    s_add_u32 {sT2}, {sT2}, {sT3}
    s_lshr_b32 {sT3}, {sIdx}, 1
    s_lshl_b32 {sT3}, {sT3}, 7
    s_add_u32 {sT2}, {sT2}, {sT3}
    s_add_u32 {sT2}, {sT2}, {W_Q1}
    v_lshlrev_b32 {t3}, 7, {vC}
    v_lshl_add_u32 {t3}, {vKG}, 4, {t3}
    v_add_u32 {t3}, {OB + 7*2048}, {t3}
    v_lshlrev_b32 {t4}, 4, {vL}
    v_add_u32 {t1}, {OB + 7*2048}, {t4}
    v_lshrrev_b32 {t0}, 3, {vL}
    v_mul_u32_u24 {t0}, {4096 - 128}, {t0}
    v_add_u32 {t0}, {t0}, {t4}""")
    for ct, D in enumerate((D0, D1)):
        P4 = XO + 4 * ct
        for r in range(4):
            a(f"    v_mul_f32_dpp {v(DD+4+r)}, {v(D+r)}, {mu} quad_perm:[2,2,2,2] {DPP}")
        for r in range(4):
            a(f"    v_sub_f32 {v(D+r)}, {v(D+r)}, {v(DD+4+r)}")
            a(f"    v_mul_f32 {v(D+r)}, {v(D+r)}, {rs}")
        a(f"""    v_cvt_pk_bf16_f32 {v(P4)}, {v(D)}, {v(D+1)}
    v_cvt_pk_bf16_f32 {v(P4+2)}, {v(D+2)}, {v(D+3)}
    v_add_u32 {v(P4+1)}, {sXcc}, {vEp}
    v_add_u32 {v(P4+3)}, {sXcc}, {vEp}""")
    a(f"""    ds_write_b128 {t3}, {vr(XO,4)}
    ds_write_b128 {t3}, {vr(XO+4,4)} offset:64
    ds_read_b128 {vr(XO+8,4)}, {t1}
    s_mov_b64 exec, 0xffff
    s_waitcnt lgkmcnt(0)""")
    if not o["x_nopub"]:
        a(f"    buffer_store_dwordx4 {vr(XO+8,4)}, {t0}, {sWS}, {sT2} offen sc1")
    execm("-1")
    stamp(3)
    a("    s_setprio 0")
    a("    s_branch L_young3\nL_young2:")
    if not o["b1first"]:
        a("    s_barrier")
    a("L_young3:")
    for i in range(16):
        kload(i)
    a("    s_branch L_vloads\nL_joined:")

    def late_loads():
        r64_addr(10)
        for half in range(2):
            for m, so in enumerate((0, 4096, 32768, 36864)):
                a(f"    s_mov_b32 {sT2}, {so + half * 262144}")
                dma(sWo, T_WO + 1024 * m + (half - (o["wo_at"] == "Y")) * 4 * WVS, sT2)
        if o["pf_at"] == "wo":
            pf_load()
    def pf_load():
        t = v(TT + 7)
        if not o["l2pf"]:
            return
        a(f"""    s_mul_i32 {sT1}, {sIdx}, 3                  ; waves 1..3 of every workgroup
    s_sub_u32 {sT2}, {sW}, {5 if (o["wo_at"] == "Y" and o["pf_at"] == "wo") else 1}
    s_add_u32 {sT1}, {sT1}, {sT2}
    s_add_u32 {sT1}, {sT1}, 1
    s_cmp_lt_u32 {sT2}, 3
    s_cselect_b32 {sT1}, {sT1}, 97
    s_sub_u32 {sT1}, 96, {sT1}
    s_cmp_lt_u32 {sT1}, 64
    s_cbranch_scc0 L_pf_d
    s_and_b32 {sT2}, {sT1}, 31
    s_mul_i32 {sT2}, {sT2}, {16*3584}
    s_mul_i32 {sT3}, {sG}, 448
    s_add_u32 {sT2}, {sT2}, {sT3}
    v_lshrrev_b32 {t}, 2, {vL}
    v_mul_u32_u24 {t}, 3584, {t}
    v_and_b32 {vA}, 3, {vL}
    v_lshl_add_u32 {t}, {vA}, 7, {t}
    s_cmp_lt_u32 {sT1}, 32
    s_cselect_b32 s40, s16, s18
    s_cselect_b32 s41, s17, s19
    s_mov_b32 s42, 1835008
    s_branch L_pf_go
L_pf_d:
    s_sub_u32 {sT2}, {sT1}, 64
    s_lshl_b32 {sT2}, {sT2}, 13
    s_mul_i32 {sT3}, {sG}, {224*1024}
    s_add_u32 {sT2}, {sT2}, {sT3}
    v_lshlrev_b32 {t}, 7, {vL}
    s_mov_b32 s40, s20
    s_mov_b32 s41, s21
    s_cmp_lt_u32 {sT1}, 92
    s_cselect_b32 s42, 1835008, 0
L_pf_go:
    s_mov_b32 s43, 0x20000
    buffer_load_dword {vDum}, {t}, {sWq}, {sT2} offen {wf}""")
    def wd_load():
        a(f"    v_lshl_add_u32 {vA}, {vDma}, 10, {vHalf}")
        dma(sWd, T_WD, "0")
    nD = 0

    def wo_read():
        for e in range(2):
            for ct in range(2):
                for j in range(2):
                    a(f"    ds_read_b64_tr_b16 {vr(WB+8*e+4*ct+2*j,2)}, {(vT0, vT1)[ct]} offset:{T_WO + 1024*(2*e+j)}")

    a(f"""    s_cmp_eq_u32 {sW}, {99 if o["x_nogather"] else 1}
    s_cbranch_scc0 L_h2
    v_mov_b32 {t5}, {QL + 1028}
    ds_read_b32 {vEp}, {t5}
    s_lshr_b32 {sT2}, {sO}, 4
    s_lshl_b32 {sT2}, {sT2}, 12
    s_add_u32 {sT2}, {sT2}, {W_Q1}
    v_lshl_add_u32 {t5}, {vL}, 4, {sT2}
L_hq:""")
    for i in range(4):
        a(f"    buffer_load_dwordx4 {vr(DD+4*i,4)}, {t5}, {sWS}, 0 offen offset:{1024*i} sc1")
    a("    s_waitcnt vmcnt(0) lgkmcnt(0)")
    for r in range(DD + 1, DD + 16, 2):
        a(f"    v_sub_u32 {v(r)}, {v(r)}, {vEp}")
    a(f"""    v_max3_u32 {CHK}, {v(DD+1)}, {v(DD+3)}, {v(DD+5)}
    v_max3_u32 {CHK}, {v(DD+7)}, {v(DD+9)}, {CHK}
    v_max3_u32 {CHK}, {v(DD+11)}, {v(DD+13)}, {CHK}
    v_max_u32 {CHK}, {v(DD+15)}, {CHK}
    v_cmp_lt_u32 vcc, 15, {CHK}""")
    spin_tail("L_hq")
    a(f"""    v_cmp_ne_u32 vcc, {sXcc}, {v(DD+1)}
    v_cmp_ne_u32 s[94:95], {sXcc}, {v(DD+9)}""")
    add_bf16x8(XO, [v(DD + 2 * i) for i in range(4)], [v(DD + 8 + 2 * i) for i in range(4)])
    a(f"""    v_cmp_ne_u32 s[8:9], {sXcc}, {v(DD+5)}
    s_or_b64 s[94:95], s[94:95], vcc
    v_cmp_ne_u32 vcc, {sXcc}, {v(DD+13)}
    v_bfe_u32 {t5}, {vL}, 1, 2
    v_lshlrev_b32 {t5}, 8, {t5}
    v_bfe_u32 {t4}, {vL}, 3, 2
    v_lshl_add_u32 {t5}, {t4}, 6, {t5}
    v_lshrrev_b32 {t4}, 5, {vL}
    v_lshl_add_u32 {t5}, {t4}, 4, {t5}
    v_and_b32 {t4}, 1, {vL}
    v_lshl_add_u32 {t5}, {t4}, 3, {t5}
    v_add_u32 {t5}, {QL}, {t5}
    s_or_b64 s[94:95], s[94:95], s[8:9]
    s_or_b64 vcc, vcc, s[94:95]
    s_cselect_b32 {sT1}, 1, 3
    v_mov_b32 {v(DD+4)}, {sT1}
    ds_write_b64 {t5}, {vr(XO,2)}
    ds_write_b64 {t5}, {vr(XO+2,2)} offset:32
    v_mov_b32 {t5}, {QL + 1024}
    ds_write_b32 {t5}, {v(DD+4)}""")
    stamp(4)
    a(f"""    s_cmp_eq_u32 {sIdx}, 0
    s_cbranch_scc0 L_nolead
    s_lshl_b32 {sT1}, {sG}, 7
    s_add_u32 {sT1}, {sT1}, {W_GF}
    v_mov_b32 {v(DD)}, {vEp}
    v_mov_b32 {v(DD+1)}, {vEp}
    v_mov_b32 {v(DD+2)}, {vEp}
    v_mov_b32 {v(DD+3)}, {vEp}
    v_lshlrev_b32 {t5}, 4, {vL}
    s_mov_b64 exec, 0xff
    buffer_store_dwordx4 {vr(DD,4)}, {t5}, {sWS}, {sT1} offen sc1
    s_mov_b64 exec, -1
L_nolead:""")
    a("L_h2:")
    if o["klin"]:
        assert o["qkearly"]
        a(f"    s_cmp_lt_u32 {sW}, 4\n    s_cbranch_scc0 L_h3")
        kshuffle()
        a("L_h3:")
    a(f"""    v_lshlrev_b32 {t0}, 4, {vL}
    v_add_u32 {t0}, {QL}, {t0}
    v_mov_b32 {t2}, {QL + 1024}
    s_cmp_lt_u32 {sW}, 4
    s_cbranch_scc1 L_qf
    {"s_barrier" if o["wo_at"] == "X" else ""}
    {"s_cmp_eq_u32 " + sMode + ", 1" if o["qkearly"] else ""}
    {"s_cbranch_scc1 L_pv1b" if o["qkearly"] else ""}
L_qf:
    ds_read_b32 {t1}, {t2}
    s_waitcnt lgkmcnt(0)
    v_cmp_eq_u32 vcc, {77 if o["x_nogather"] else 0}, {t1}""")
    spin_tail("L_qf")
    if o["qkearly"]:
        tail("L_mid:")
        into(tail, kshuffle)
        tail(f"""    v_mov_b32 {t2}, {QL + 1024}
    ds_read_b32 {t1}, {t2}
    v_lshlrev_b32 {t0}, 4, {vL}
    v_add_u32 {t0}, {QL}, {t0}
    s_waitcnt lgkmcnt(0)
    v_cmp_eq_u32 vcc, 0, {t1}
    s_cbranch_vccnz L_vrest
    s_mov_b32 {sMode}, 1
    s_branch L_qf_ok""")
    a(f"""    ds_read_b128 {vr(XO,4)}, {t0}
    v_readfirstlane_b32 {sPure}, {t1}
    s_lshr_b32 {sPure}, {sPure}, 1
    s_waitcnt lgkmcnt(0)""")
    stamp(6)
    a("    s_branch L_attn")
    a(f"L_q:\n    v_xor_b32 {vA}, 32, {vTq}")
    for e in range(2):
        for ct in range(2):
            for jj in range(2):
                a(f"    ds_read_b64_tr_b16 {vr(WB+8*e+4*ct+2*jj,2)}, {(vTq, vA)[ct]} offset:{e*WVS + T_WQ + 1024*jj}")
    a(f"""    s_lshl_b32 {sT1}, {sKh}, 10
    v_add_u32 {v(TT+16)}, {sT1}, {vR4}
    v_add_u32 {v(TT+17)}, {sT1}, {vR4c}
    v_bfe_u32 {v(TT+15)}, {vL}, 2, 1
    v_lshlrev_b32 {v(TT+15)}, 10, {v(TT+15)}
    v_bfe_u32 {t0}, {vL}, 3, 2
    v_lshl_add_u32 {v(TT+15)}, {t0}, 5, {v(TT+15)}
    v_and_b32 {t0}, 3, {vL}
    v_lshl_add_u32 {v(TT+15)}, {t0}, 3, {v(TT+15)}
    v_lshrrev_b32 {t0}, 5, {vL}
    v_lshl_add_u32 {v(TT+15)}, {t0}, 2, {v(TT+15)}
    s_lshl_b32 {sT2}, {sW}, 7
    s_add_u32 {sT2}, {sT2}, {XB}
    v_add_u32 {v(TT+15)}, {sT2}, {v(TT+15)}
    s_lshr_b32 {sT1}, {sW}, 2
    s_mov_b32 {sL}, {LSTR}
    s_mov_b32 {sLO}, {OSTR}""")
    if "d" in o["hint"]:
        a(f"    s_cmp_eq_u32 {sW}, 0\n    s_cbranch_scc0 L_q0")
        hint_wait("L_hd")
        a("L_q0:")
    ackwait()
    a("    s_barrier")
    stamp(15)
    gather_x(aZ, "0", "L_pd", lambda: stamp(17), None, v(TT + 15))
    if not o["inl"]:
        a(f"    s_cmp_eq_u32 {sT1}, {sKh}\n    s_cbranch_scc0 L_ql")
    a(f"""    s_waitcnt lgkmcnt(1)
    v_mfma_f32_16x16x32_bf16 {vr(DD,4)}, {vr(WB,4)}, {vr(XO,4)}, 0
    v_mfma_f32_16x16x32_bf16 {vr(DD+4,4)}, {vr(WB+4,4)}, {vr(XO,4)}, 0
    v_mfma_f32_16x16x32_bf16 {vr(DD+8,4)}, {vr(XO,4)}, {vr(XO,4)}, 0
    s_waitcnt lgkmcnt(0)
    v_mfma_f32_16x16x32_bf16 {vr(DD,4)}, {vr(WB+8,4)}, {vr(XO+4,4)}, {vr(DD,4)}
    v_mfma_f32_16x16x32_bf16 {vr(DD+4,4)}, {vr(WB+12,4)}, {vr(XO+4,4)}, {vr(DD+4,4)}
    v_mfma_f32_16x16x32_bf16 {vr(DD+8,4)}, {vr(XO+4,4)}, {vr(XO+4,4)}, {vr(DD+8,4)}""")
    if not o["inl"]:
      tail(f"""L_ql:
    s_waitcnt lgkmcnt(1)
    v_mfma_f32_16x16x32_bf16 {vr(DD+8,4)}, {vr(XO,4)}, {vr(XO,4)}, 0
    s_waitcnt lgkmcnt(0)
    v_mfma_f32_16x16x32_bf16 {vr(DD+8,4)}, {vr(XO+4,4)}, {vr(XO+4,4)}, {vr(DD+8,4)}
    s_nop 6
    s_branch L_qs""")
    two_tile_write(RQ)
    a("L_qs:")
    stats_write(RQ)
    a(f"    s_cmp_eq_u32 {sW}, 0\n    s_cbranch_scc0 L_q2")
    S = two_tile_reduce(RQ, 4, v(TT + 16), v(TT + 17))
    pack16(DD + 8, S, v(DD + 6))
    execm(m16)
    local_store(f"buffer_store_dwordx4 {vr(DD+8,4)}, {pQ}, {sWS}, 0 offen", "L_sq")
    execm("-1")
    a(f"    s_cmp_eq_u32 {sG}, 0\n    s_cbranch_scc1 L_res2\nL_q2:")
    tail(f"""L_res2:
    ds_read_u16 {vRes}, {aRes}
    s_waitcnt lgkmcnt(0)
    v_lshlrev_b32 {vRes}, 16, {vRes}
    s_branch L_q2""")
    if o["qbar"]:
        a("    s_barrier")
    stamp(18)
    poll([(f"buffer_load_dwordx4 {vr(DD+4*i,4)}, {aQ2}, {sWS}, 0 offen offset:{1024*i} sc1", [v(DD + 4 * i + k) for k in range(4)]) for i in range(2)], "L_pq",
         after={0: lambda: [a(f"    v_lshlrev_b32 {v(TT+2*i)}, 16, {v(DD+i)}\n    v_and_b32 {v(TT+2*i+1)}, 0xffff0000, {v(DD+i)}") for i in range(4)]} if o["spec"] else None)
    stamp(19)
    if o["spec"]:
        for i in range(4):
            y = DD + 8 + 2 * (i & 1)
            a(f"""    v_lshlrev_b32 {v(y)}, 16, {v(DD+4+i)}
    v_and_b32 {v(y+1)}, 0xffff0000, {v(DD+4+i)}
    v_pk_add_f32 {vr(y,2)}, {vr(y,2)}, {vr(TT+2*i,2)}
    v_cvt_pk_bf16_f32 {v(XO+i)}, {v(y)}, {v(y+1)}""")
    else:
        add_bf16x8(XO, [v(DD + i) for i in range(4)], [v(DD + 4 + i) for i in range(4)])
    a("L_attn:")
    s = [v(TT + i) for i in range(4)]
    def qk(u, rho):
        t = (u + rho) & 3
        c = vr(DD + 4 * u, 4) if rho else "0"
        a(f"    v_mfma_f32_16x16x32_bf16 {vr(DD+4*u,4)}, {vr(KB+16*u+4*t,4)}, {vr(XO+4*rho,4)}, {c}")
    def rot(rho):
        for i in range(4):
            a(f"    v_mov_b32_dpp {v(XO+4*rho+i)}, {v(XO+i)} row_ror:{16-4*rho} {DPP}")
    def merge(u):
        for r in range(4):
            a(f"    v_mov_b32_dpp {s[r]}, {v(DD+4*u+r)} quad_perm:[0,1,2,3] row_mask:0xf bank_mask:{1<<u}")
    for u in (1, 2, 3):
        qk(u, 0); rot(u)
    for u in (1, 2, 3):
        for rho in (1, 2, 3):
            qk(u, rho)
    qk(0, 0); qk(0, 1); merge(1); qk(0, 2); merge(2); qk(0, 3); merge(3); merge(0)
    m, lsum, tx = v(TT + 4), v(TT + 5), v(TT + 6)
    a(f"""    v_max3_f32 {m}, {s[0]}, {s[1]}, {s[2]}
    v_max_f32 {m}, {m}, {s[3]}
    v_max_f32_dpp {m}, {m}, {m} row_ror:4 {DPP}
    v_max_f32_dpp {m}, {m}, {m} row_ror:8 {DPP}
    v_mov_b32 {tx}, {m}
    v_permlane16_swap_b32 {m}, {tx}
    v_max_f32 {m}, {m}, {tx}
    v_mov_b32 {tx}, {m}
    v_permlane32_swap_b32 {m}, {tx}
    v_max_f32 {m}, {m}, {tx}
    v_mul_f32 {m}, {m}, {vScale}""")
    for r in range(4):
        a(f"    v_fma_f32 {s[r]}, {s[r]}, {vScale}, -{m}")
    for r in range(4):
        a(f"    v_exp_f32 {s[r]}, {s[r]}")
    P = TT + 8
    a(f"""    s_cmp_eq_u32 {sL}, 0
    v_cvt_pk_bf16_f32 {v(P)}, {s[0]}, {s[1]}
    v_cvt_pk_bf16_f32 {v(P+1)}, {s[2]}, {s[3]}
    s_cbranch_scc1 L_pv1""")
    aE, aOd = DD, DD + 4
    def pv(n, out):
        c1 = vr(aE, 4) if n else "0"
        c2 = vr(aOd, 4) if n else "0"
        out(f"    v_mfma_f32_4x4x4_16b_bf16 {vr(aE,4)}, {vr(P,2)}, {vr(VB+4*n,2)}, {c1} cbsz:4 abid:{n}")
        out(f"    v_mfma_f32_4x4x4_16b_bf16 {vr(aOd,4)}, {vr(P,2)}, {vr(VB+4*n+2,2)}, {c2} cbsz:4 abid:{n}")
    lred = [f"v_pk_add_f32 {vr(TT,2)}, {vr(TT,2)}, {vr(TT+2,2)}",
            f"v_add_f32 {lsum}, {s[0]}, {s[1]}",
            f"v_add_f32_dpp {lsum}, {lsum}, {lsum} row_ror:4 {DPP}",
            f"v_add_f32_dpp {lsum}, {lsum}, {lsum} row_ror:8 {DPP}",
            f"v_mov_b32 {tx}, {lsum}",
            f"v_permlane16_swap_b32 {lsum}, {tx}",
            f"v_add_f32 {lsum}, {lsum}, {tx}",
            f"v_mov_b32 {tx}, {lsum}",
            f"v_permlane32_swap_b32 {lsum}, {tx}",
            f"v_add_f32 {lsum}, {lsum}, {tx}",
            f"ds_write_b64 {vMLw}, {vr(TT+4,2)}"]
    stampL(7)
    for n in range(16):
        pv(n, a)
        if n < 15:
            a("    " + (lred[n] if n < len(lred) else "s_nop 0"))
    a("    s_nop 2\nL_pv3:")
    tail("L_pv1:")
    for l in lred:
        tail("    " + l)
    if o["qkearly"]:
        tail(f"    s_cmp_eq_u32 {sMode}, 1\n    s_cbranch_scc1 L_vrest\nL_pv1b:")
    def perms(n):
        b = VB + 4 * n
        tail(f"    s_waitcnt vmcnt({min(63, 60 - 4*n)})")
        tail(f"    v_perm_b32 {v(b)}, {v(b+4)}, {v(b+2)}, {sPlo}")
        tail(f"    v_perm_b32 {v(b+1)}, {v(b+5)}, {v(b+3)}, {sPlo}")
        tail(f"    v_perm_b32 {v(b+2)}, {v(b+4)}, {v(b+2)}, {sPhi}")
        tail(f"    v_perm_b32 {v(b+3)}, {v(b+5)}, {v(b+3)}, {sPhi}")
    perms(0)
    for n in range(16):
        if n < 15:
            perms(n + 1)
        pv(n, tail)
    tail("    s_nop 2\n    s_branch L_pv3")
    stampL(8)
    if o["x_stop"] == 8:
        a(f"    s_cmp_lt_u32 {sW}, 4\n    s_cbranch_scc0 L_done\n    {'s_barrier' if o['wo_at'] == 'X' else ''}\n    s_branch L_done")
    a(f"    s_or_b32 {sT1}, {sL}, {sW}\n    s_cmp_lt_u32 {sT1}, 4")
    for h in range(4):
        ad = vOw if h < 2 else vOw2
        a(f"    ds_write2_b32 {ad}, {v(aE+h)}, {v(aOd+h)} offset0:{(h&1)*128} offset1:{(h&1)*128+1}")
    a(f"""    s_cbranch_scc1 L_late
L_nolate:
    s_cmp_lt_u32 {sW}, 4
    s_waitcnt lgkmcnt(0)
    s_barrier
    s_cbranch_scc0 L_yw
    ds_read_b64 {vr(TT,2)}, {vMLr}""")
    main = a
    a = tail
    a(f"L_late:\n    v_mov_b32 {t5}, {QL + 1028}\n    ds_read_b32 {vEp}, {t5}")
    if o["wo_at"] == "X":
        a("    s_barrier")
        stamp(1)
        late_loads()
    a(f"""    s_cmp_eq_u32 {sG}, 0
    s_cbranch_scc0 L_nolate
    ds_read_u16 {vRes}, {aRes}
    s_waitcnt lgkmcnt(0)
    v_lshlrev_b32 {vRes}, 16, {vRes}
    s_branch L_nolate""")
    a("L_yw:")
    if o["wo_at"] == "Y":
        a(f"    s_cmp_eq_u32 {sL}, 0\n    s_cbranch_scc0 L_wo")
        stamp(1)
        late_loads()
    a(f"""    s_or_b32 {sT1}, {sL}, 7
    s_cmp_eq_u32 {sT1}, {sW}
    s_cbranch_scc0 L_wo""")
    slot_addrs()
    c0 = TT + 8
    for i in range(4):
        a(f"    v_mov_b32 {v(c0+i)}, -1")
    a(f"""    s_mov_b32 exec_lo, 0
    s_mov_b32 exec_hi, 0xff00ff00
    buffer_store_dwordx4 {vr(c0,4)}, {cF}, {sWS}, 0 offen sc1
    s_cmp_eq_u32 {sPure}, {1 if (o["clr2"] == "plain" and not o["force_slow"]) else 2}""")
    for k, fl in enumerate(("sc1", "")):
        a(f"""    {"s_cbranch_scc1 L_mk1" if k == 0 else "L_mk1:"}
    s_mov_b32 exec_lo, 0xff00ff00
    s_mov_b32 exec_hi, 0
    buffer_store_dwordx4 {vr(c0,4)}, {cF}, {sWS}, 0 offen {fl}
    s_mov_b64 exec, -1
    buffer_store_dwordx4 {vr(c0,4)}, {cO}, {sWS}, {sT3} offen {fl}
    buffer_store_dwordx4 {vr(c0,4)}, {cQ}, {sWS}, 0 offen {fl}
    {"s_branch L_mk2" if k == 0 else "L_mk2:"}""")
    if o["hint"]:
        a(f"""    s_lshl_b32 {sT1}, {sG}, 7
    s_add_u32 {sT1}, {sT1}, {W_HT}
    v_lshlrev_b32 {t0}, 10, {vL}
    s_mov_b64 exec, 15
    buffer_load_dword {vDum}, {t0}, {sWS}, {sT1} offen sc1
    s_mov_b64 exec, -1""")
    a(f"""    v_and_b32 {t0}, 7, {vL}
    v_lshlrev_b32 {t0}, 7, {t0}
    v_add_u32 {t0}, {W_GF + 4}, {t0}
L_gf:
    buffer_load_dword {t1}, {t0}, {sWS}, 0 offen sc1
    s_waitcnt vmcnt(0)
    v_cmp_ne_u32 vcc, {t1}, {vEp}
    s_cbranch_vccz L_wo
    s_sub_u32 {sCnt}, {sCnt}, 1
    s_cbranch_scc0 L_gf
    s_mov_b32 {sCnt}, 0
    s_branch L_wo""")
    a = main
    for i in range(8):
        a(f"    ds_read_b64 {vr(XO+2*i,2)}, {vOr} offset:{i*2048}")
    mm, ll, M, Lr, f = v(TT), v(TT + 1), v(TT + 2), v(TT + 3), v(TT + 4)
    a(f"""    s_waitcnt lgkmcnt(8)
    v_max_f32_dpp {M}, {mm}, {mm} row_ror:4 {DPP}
    v_max_f32_dpp {M}, {M}, {M} row_ror:2 {DPP}
    v_max_f32_dpp {M}, {M}, {M} row_ror:1 {DPP}
    v_sub_f32 {f}, {mm}, {M}
    v_exp_f32 {f}, {f}
    v_mul_f32 {Lr}, {f}, {ll}""")
    o0, o1 = v(TT + 5), v(TT + 6)
    lr2 = [f"v_add_f32_dpp {Lr}, {Lr}, {Lr} row_ror:4 {DPP}",
           f"v_add_f32_dpp {Lr}, {Lr}, {Lr} row_ror:2 {DPP}",
           f"v_add_f32_dpp {Lr}, {Lr}, {Lr} row_ror:1 {DPP}"]
    for i in range(8):
        op = "v_mul_f32_dpp" if i == 0 else "v_fmac_f32_dpp"
        if i in (0, 4):
            a(f"    s_waitcnt lgkmcnt({4 - i})")
        a(f"    {op} {o0}, {f}, {v(XO+2*i)} row_newbcast:{i} {DPP}")
        a(f"    {op} {o1}, {f}, {v(XO+2*i+1)} row_newbcast:{i} {DPP}")
        if i < 3:
            a("    " + lr2[i])
    a(f"    v_cvt_pk_bf16_f32 {o0}, {o0}, {o1}")
    local_store(f"buffer_store_dword {o0}, {pO}, {sWS}, {sLO} offen\n    s_mov_b64 exec, 1\n    buffer_store_dwordx2 {vr(TT+2,2)}, {pML}, {sWS}, {sL} offen", "L_so")
    execm("-1")
    if o["inl"]:
        a("L_wo:\n    s_barrier")
    else:
        a(f"L_wo:\n    s_cmp_eq_u32 {sL}, 0\n    s_cbranch_scc1 L_wo0\nL_wo1:\n    s_barrier")
    aloads = [(f"buffer_load_dwordx2 {vr(TT,2)}, {aML}, {sWS}, {sL} offen sc1", [v(TT), v(TT + 1)]),
              (f"buffer_load_dwordx4 {vr(XO,4)}, {aO}, {sWS}, {sLO} offen sc1", [v(XO + i) for i in range(4)]),
              (f"buffer_load_dwordx4 {vr(XO+4,4)}, {aO}, {sWS}, {sLO} offen offset:1024 sc1", [v(XO + 4 + i) for i in range(4)])]
    if o["inl"]:
        pass
    elif o["aover"]:
        tail("L_wo0:\n    s_barrier")
        if o["pf_at"] == "poll":
            into(tail, poll, aloads, "L_pa0", pf_load, None, 1, "L_pa1")
        into(tail, poll, aloads, "L_pa1")
        tail("    s_barrier")
        into(tail, wo_read)
        tail("    s_branch L_pa_ok")
    elif o["pf_at"] == "poll":
        tail("L_wo0:\n    s_waitcnt vmcnt(0)\n    s_barrier")
        into(tail, poll, aloads, "L_pa0", lambda: (pf_load(), wo_read()), None, 1, "L_pa")
    else:
        tail("L_wo0:\n    s_waitcnt vmcnt(0)\n    s_branch L_wo1")
    stampL(9)
    mm, ll, M, e_, Lt = v(TT), v(TT + 1), v(TT + 2), v(TT + 3), v(TT + 4)
    def wo_fac():
        a(f"""    v_max_f32_dpp {M}, {mm}, {mm} row_ror:8 {DPP}
    v_max_f32_dpp {M}, {M}, {M} row_ror:4 {DPP}
    v_max_f32_dpp {M}, {M}, {M} row_ror:2 {DPP}
    v_max_f32_dpp {M}, {M}, {M} row_ror:1 {DPP}
    v_sub_f32 {e_}, {mm}, {M}
    v_exp_f32 {e_}, {e_}
    v_mul_f32 {Lt}, {e_}, {ll}""")
    poll(aloads, "L_pa", wo_read, after={0: wo_fac} if o["spec"] else None)
    if o["inl"]:
        a(f"    s_cmp_eq_u32 {sL}, 0\n    s_cbranch_scc0 L_pa2\n    s_barrier")
        wo_read()
        a("L_pa2:")
    stampL(10)
    if o["pf_at"] == "afterA" or o["wd_at"] == "afterA":
        a(f"    s_cmp_eq_u32 {sL}, 0\n    s_cbranch_scc1 L_wo2a\nL_wo2:")
        tail("L_wo2a:")
        if o["pf_at"] == "afterA":
            into(tail, pf_load)
        if o["wd_at"] == "afterA":
            into(tail, wd_load)
        tail("    s_branch L_wo2")
    z0, z1 = v(TT + 5), v(TT + 6)
    if o["spec"]:
        a(f"""    s_waitcnt lgkmcnt(0)
    v_mfma_f32_16x16x32_bf16 {vr(DD,4)}, {vr(XO,4)}, {vr(WB,4)}, 0
    v_add_f32_dpp {Lt}, {Lt}, {Lt} row_ror:8 {DPP}
    v_mfma_f32_16x16x32_bf16 {vr(DD,4)}, {vr(XO+4,4)}, {vr(WB+8,4)}, {vr(DD,4)}
    v_mfma_f32_16x16x32_bf16 {vr(DD+4,4)}, {vr(XO,4)}, {vr(WB+4,4)}, 0
    v_add_f32_dpp {Lt}, {Lt}, {Lt} row_ror:4 {DPP}
    v_mfma_f32_16x16x32_bf16 {vr(DD+4,4)}, {vr(XO+4,4)}, {vr(WB+12,4)}, {vr(DD+4,4)}
    s_cmp_eq_u32 {sW}, 0
    v_add_f32_dpp {Lt}, {Lt}, {Lt} row_ror:2 {DPP}
    s_nop 1
    v_add_f32_dpp {Lt}, {Lt}, {Lt} row_ror:1 {DPP}
    v_rcp_f32 {Lt}, {Lt}""")
        for z, D in ((z0, DD), (z1, DD + 4)):
            for r in range(4):
                op = "v_mul_f32_dpp" if r == 0 else "v_fmac_f32_dpp"
                a(f"    {op} {z}, {e_}, {v(D+r)} row_newbcast:{r} {DPP}")
        a(f"""    v_permlane32_swap_b32 {z0}, {z1}
    v_add_f32 {z0}, {z0}, {z1}
    v_mul_f32 {z1}, {z0}, {Lt}
    v_mul_f32 {z0}, {z0}, {Lt}
    v_permlane16_swap_b32 {z0}, {z1}
    v_add_f32 {z0}, {z0}, {z1}
    ds_write_b32 {vW4}, {z0} offset:{RW - RQ}
    s_waitcnt lgkmcnt(0)
    s_barrier
    s_cbranch_scc0 L_roles""")
    else:
        mm, ll, M, e_, Lt = v(TT), v(TT + 1), v(TT + 2), v(TT + 3), v(TT + 4)
        a(f"""    v_max_f32_dpp {M}, {mm}, {mm} row_ror:8 {DPP}
    s_waitcnt lgkmcnt(0)
    v_mfma_f32_16x16x32_bf16 {vr(DD,4)}, {vr(XO,4)}, {vr(WB,4)}, 0
    v_max_f32_dpp {M}, {M}, {M} row_ror:4 {DPP}
    v_mfma_f32_16x16x32_bf16 {vr(DD+4,4)}, {vr(XO,4)}, {vr(WB+4,4)}, 0
    v_mfma_f32_16x16x32_bf16 {vr(DD,4)}, {vr(XO+4,4)}, {vr(WB+8,4)}, {vr(DD,4)}
    v_max_f32_dpp {M}, {M}, {M} row_ror:2 {DPP}
    v_mfma_f32_16x16x32_bf16 {vr(DD+4,4)}, {vr(XO+4,4)}, {vr(WB+12,4)}, {vr(DD+4,4)}
    s_nop 0
    v_max_f32_dpp {M}, {M}, {M} row_ror:1 {DPP}
    v_sub_f32 {e_}, {mm}, {M}
    v_exp_f32 {e_}, {e_}
    v_mul_f32 {Lt}, {e_}, {ll}""")
        z0, z1 = v(TT + 5), v(TT + 6)
        for r in range(4):
            op = "v_mul_f32_dpp" if r == 0 else "v_fmac_f32_dpp"
            a(f"    {op} {z0}, {e_}, {v(DD+r)} row_newbcast:{r} {DPP}")
            a(f"    {op} {z1}, {e_}, {v(DD+4+r)} row_newbcast:{r} {DPP}")
            a(f"    v_add_f32_dpp {Lt}, {Lt}, {Lt} row_ror:{8 >> r} {DPP}")
        a(f"""    s_cmp_eq_u32 {sW}, 0
    v_permlane32_swap_b32 {z0}, {z1}
    v_rcp_f32 {Lt}, {Lt}
    v_add_f32 {z0}, {z0}, {z1}
    v_mov_b32 {z1}, {z0}
    v_permlane16_swap_b32 {z0}, {z1}
    v_add_f32 {z0}, {z0}, {z1}
    v_mul_f32 {z0}, {z0}, {Lt}
    ds_write_b32 {vW4}, {z0} offset:{RW - RQ}
    s_waitcnt lgkmcnt(0)
    s_barrier
    s_cbranch_scc0 L_roles""")
    red8(vR4, (RW - RQ) // 256, TT)
    sum8(v(TT + 8), TT, extra=vRes)
    quad4(TT + 8)
    execm(mY)
    a(f"    buffer_store_dwordx4 {vr(TT+8,4)}, {pY}, {sWS}, {sL} offen sc1")
    if "b" in o["hint"]:
        execm("1")
        hint_post(0)
    execm("-1")
    a(f"""L_roles:
    s_cmp_lt_u32 {sIdx}, 14
    s_cbranch_scc0 L_nogu""")
    tail("L_nogu:")
    if o["wd_at"] == "afterY":
        tail(f"    s_cmp_eq_u32 {sL}, 0\n    s_cbranch_scc0 L_dn")
        into(tail, wd_load)
    if o["clr2"] == "warm2":
        tail(f"""    s_cmp_eq_u32 {sW}, 7
    s_cbranch_scc0 L_nw2""")
        into(tail, slot_addrs)
        for k in range(2):
            tail(f"""    s_mov_b32 exec_lo, {"0x11111111" if o["w64"] else "0x01010101"}
    s_mov_b32 exec_hi, {"0x11111111" if o["w64"] else "0x01010101"}
    buffer_load_dword {vDum}, {cO}, {sWS}, {sT3} offen sc1
    s_mov_b64 exec, {"17" if o["w64"] else "1"}
    buffer_load_dword {vDum}, {cQ}, {sWS}, 0 offen sc1
    s_mov_b32 exec_lo, {"0x11001100" if o["w64"] else "0x01000100"}
    buffer_load_dword {vDum}, {cF}, {sWS}, 0 offen sc1
    s_mov_b64 exec, -1""")
            if k == 0:
                tail(f"""    s_cmp_lt_u32 {sIdx}, 28
    s_cbranch_scc0 L_dn
    v_subrev_u32 {cO}, {14*1024}, {cO}
    v_subrev_u32 {cQ}, {14*128}, {cQ}
    v_subrev_u32 {cF}, {14*128}, {cF}""")
        tail("    s_branch L_dn\nL_nw2:")
    tail(f"""    s_xor_b32 {sT1}, s2, 255
    s_or_b32 {sT1}, {sT1}, {sL}
    s_or_b32 {sT1}, {sT1}, {sW}
    s_cbranch_scc1 L_dn
    ; every workgroup has read the epoch word by now: leave this launch's tag for the next one
    v_mov_b32 {t5}, {QL + 1028}
    ds_read_b32 {v(DD)}, {t5}
    v_lshlrev_b32 {t5}, 4, {vL}
    s_waitcnt lgkmcnt(0)
    v_mov_b32 {v(DD+1)}, {v(DD)}
    v_mov_b32 {v(DD+2)}, {v(DD)}
    v_mov_b32 {v(DD+3)}, {v(DD)}
    s_mov_b64 exec, 0xff
    buffer_store_dwordx4 {vr(DD,4)}, {t5}, {sWS}, 0 offen sc1
    s_mov_b64 exec, -1""")
    tail("    s_branch L_dn")
    a(f"    s_cmp_eq_u32 {sL}, 0\n    s_cbranch_scc1 L_gu0")
    tail(f"""L_gu0:
    v_mul_u32_u24 {vA}, 3584, {vDma}
    v_add_u32 {vA}, {vA}, {vHalf}
    s_mov_b32 {sT1}, {32*3584}""")
    for srdn, off, so in ((sWg, T_FF, "0"), (sWg, T_FF + 1024, sT1), (sWu, T_FF + 2048, "0"), (sWu, T_FF + 3072, sT1)):
        into(tail, dma, srdn, off, so)
    wd_here = o["wd_at"] == "afterY" and not o["wdb"]
    if wd_here:
        into(tail, wd_load)
    if o["ack"]:
        tail(f"    s_waitcnt vmcnt({4 + wd_here})")
    tail("    s_branch L_gu1")
    ackwait()
    a("L_gu1:")
    if "b" in o["hint"]:
        a(f"    s_cmp_eq_u32 {sW}, 0\n    s_cbranch_scc0 L_gu2")
        hint_wait("L_hb")
        a("L_gu2:")
    a("    s_barrier")
    stampL(11)
    def gu_mid():
        for i in range(4):
            tr_read(WB + 4 * i, T_FF + 1024 * i)
    def gu_got():
        stampL(12)
    gather_x(aY, sL, "L_pb", gu_got, gu_mid)
    if o["wd_at"] == "afterY" and o["wdb"] and o["inl"]:
        wd_load()
    elif o["wd_at"] == "afterY" and o["wdb"]:
        a(f"    s_cmp_eq_u32 {sL}, 0\n    s_cbranch_scc1 L_wdb\nL_wdb1:")
        tail("L_wdb:")
        into(tail, wd_load)
        tail("    s_branch L_wdb1")
    a(f"""    s_waitcnt lgkmcnt(1)
    v_mfma_f32_16x16x32_bf16 {vr(DD,4)}, {vr(WB,4)}, {vr(XO,4)}, 0
    v_mfma_f32_16x16x32_bf16 {vr(DD+4,4)}, {vr(WB+8,4)}, {vr(XO,4)}, 0
    v_mfma_f32_16x16x32_bf16 {vr(DD+8,4)}, {vr(XO,4)}, {vr(XO,4)}, 0
    s_waitcnt lgkmcnt(0)
    v_mfma_f32_16x16x32_bf16 {vr(DD,4)}, {vr(WB+4,4)}, {vr(XO+4,4)}, {vr(DD,4)}
    v_mfma_f32_16x16x32_bf16 {vr(DD+4,4)}, {vr(WB+12,4)}, {vr(XO+4,4)}, {vr(DD+4,4)}
    v_mfma_f32_16x16x32_bf16 {vr(DD+8,4)}, {vr(XO+4,4)}, {vr(XO+4,4)}, {vr(DD+8,4)}
    s_add_u32 {sT1}, {sL}, {W_H}
    s_cmp_eq_u32 {sW}, 0""")
    two_tile_write(RG)
    stats_write(RG)
    a("    s_cbranch_scc0 L_dn")
    S = two_tile_reduce(RG, 8, vR4, vR4c)
    U = v(DD + 6)
    a(f"""    v_mov_b32 {U}, {S}
    v_permlane32_swap_b32 {S}, {U}
    v_max_f32 {S}, 0, {S}
    v_mul_f32 {S}, {S}, {U}""")
    pack16(DD + 8, S, U)
    execm(m8)
    local_store(f"buffer_store_dwordx4 {vr(DD+8,4)}, {pS}, {sWS}, {sT1} offen", "L_sh")
    execm("-1")
    stampL(13)
    a(f"""L_dn:
    s_cmp_eq_u32 {sW}, 7
    s_cbranch_scc1 L_dn7
    s_or_b32 {sT1}, {sW}, {sG}
    s_cmp_eq_u32 {sT1}, 0
    s_cbranch_scc1 L_x1
L_dn0:""")
    a = tail
    a("L_dn7:")
    if o["clr2"] == "warm":
        a(f"""    s_cmp_eq_u32 {sL}, 0
    s_cbranch_scc0 L_dn1
    s_mov_b32 {sT3}, {OSTR}
    s_mov_b64 exec, {m16}
    buffer_load_dword {vDum}, {cO}, {sWS}, {sT3} offen sc1
    s_mov_b64 exec, 1
    buffer_load_dword {vDum}, {cQ}, {sWS}, 0 offen sc1
    s_mov_b32 exec_lo, 0x01000100
    buffer_load_dword {vDum}, {cF}, {sWS}, 0 offen sc1
    s_mov_b64 exec, -1""")
    a("    s_branch L_dn1")
    a("L_x1:\n    s_waitcnt vmcnt(0)")
    sum_cols(aX1, sL, "L_pr", vX1)
    a(f"""    v_cvt_pk_bf16_f32 {vX1}, {vX1}, {vX1}
    v_and_b32 {vX1}, 0xffff0000, {vX1}
    s_branch L_dn0""")
    a = main
    a("    s_waitcnt vmcnt(0)")
    tr_read(WB, T_WD)
    execm(mC2)
    poll([(f"buffer_load_dwordx4 {vr(XO,4)}, {aH}, {sWS}, {sL} offen sc1", [v(XO + i) for i in range(4)])], "L_pc2")
    execm("-1")
    stampL(14)
    a(f"""    s_waitcnt lgkmcnt(0)
    v_mfma_f32_16x16x32_bf16 {vr(DD,4)}, {vr(WB,4)}, {vr(XO,4)}, 0
    ds_write_b128 {vWd}, {vr(DD,4)} offset:{RD - RQ}
    s_waitcnt lgkmcnt(0)
L_dn1:
    s_cmp_eq_u32 {sW}, 0
    s_barrier
    s_cbranch_scc0 L_dn2""")
    red8(vR4, (RD - RQ) // 256, TT)
    sum8(v(TT + 8), TT, extra=vX1)
    quad4(TT + 8)
    execm(mZ)
    a(f"    buffer_store_dwordx4 {vr(TT+8,4)}, {pZ}, {sWS}, {sL} offen sc1")
    if "d" in o["hint"] or "f" in o["hint"]:
        execm("1")
        hint_post(1)
    execm("-1")
    a(f"L_dn2:\n    s_cmp_eq_u32 {sL}, 0\n    s_cbranch_scc1 L_q")
    a(f"""    s_and_b32 {sT1}, {sIdx}, 7
    s_xor_b32 {sT1}, {sT1}, {sG}
    s_or_b32 {sT1}, {sT1}, {sW}
    s_cbranch_scc1 L_done""")
    if "f" in o["hint"]:
        hint_wait("L_hf")
    ackwait()
    stamp(31)
    sum_cols(aFin, sL, "L_pf", v(DD))
    if o["x_pad"] == "loop":
        a(f"    s_mov_b32 {sT1}, 0\nL_pad:")
        for i in range(62):
            a(f"    v_add3_u32 {v(TT)}, {v(TT)}, {v(TT+1)}, {v(TT+2)}")
        a(f"    s_add_u32 {sT1}, {sT1}, 1\n    s_cmp_lt_u32 {sT1}, 16\n    s_cbranch_scc1 L_pad")
    if o["x_pad"] == "line":
        for i in range(1024):
            a(f"    v_add3_u32 {v(TT)}, {v(TT)}, {v(TT+1)}, {v(TT+2)}")
    if o["x_pad"] == "far":
        a("    s_branch L_far\nL_farb:")
    if o["bias"]:
        a(f"    v_add_f32 {v(DD)}, {f32(o['bias'])}, {v(DD)}")
    pack16(DD + 4, v(DD), v(DD + 1))
    execm(m8)
    a(f"    buffer_store_dwordx4 {vr(DD+4,4)}, {pOut}, {sOut}, 0 offen")
    stamp(20)
    a("L_done:")
    if o["diag"]:
        execm("-1")
        stamp(21)
        a(f"""    s_waitcnt lgkmcnt(0)
    v_writelane_b32 {vStamp}, s98, 21
    v_writelane_b32 {vStamp}, {sPure}, 32
    v_writelane_b32 {vStamp}, {sCnt}, 33
    s_lshl_b32 {sT1}, s2, 3
    s_add_u32 {sT1}, {sT1}, {sW}
    s_lshl_b32 {sT1}, {sT1}, 8
    s_add_u32 {sT1}, {sT1}, {W_DIAG}
    buffer_store_dword {vStamp}, {aV}, {sWS}, {sT1} offen""")
        if o["x_dbg"]:
            a(f"""    s_mov_b32 s40, s24
    s_mov_b32 s41, s25
    s_mov_b32 s42, 256
    s_mov_b32 s43, 0x20000
    v_readlane_b32 {sT1}, {vStamp}, 0
    s_not_b32 {sT2}, {sT1}
    v_mov_b32 {v(TT)}, 0
    v_writelane_b32 {v(TT)}, {sT2}, 0""")
            for n, k in enumerate(o["x_dbg"]):
                a(f"    v_readlane_b32 {sT1}, {vStamp}, {k}\n    s_nop 3\n    v_writelane_b32 {v(TT)}, {sT1}, {n+1}")
            a(f"    s_mov_b64 exec, 0xffff\n    buffer_atomic_umax {v(TT)}, {aV}, s[40:43], 0 offen")
    a("L_end:\n    s_endpgm")
    a(tail.text().rstrip("\n"))
    a(tail2.text().rstrip("\n"))
    a("L_codeend:")
    if o["x_pad"] == "far":
        a("    s_endpgm\nL_far:")
        for i in range(1024):
            a(f"    v_add3_u32 {v(TT)}, {v(TT)}, {v(TT+1)}, {v(TT+2)}")
        a("    s_branch L_farb")
    body, nops = hazard.fix(a.text())
    return body


HEAD = open("interleave_layers__gqa_block_cached__glu_gated_reglu__decode.s.ref").read().split("; Override")[0]

DESC = """;
; One persistent launch: 256 workgroups (one per CU) x 8 waves. Workgroup id = 8*idx + g, idx = 16*b + s.
; Per layer: q (32 columns x half of the rows per workgroup, two partial sums) -> scores, true max per 64 keys,
;   P V -> partial O, m, l -> output projection with the exact split-softmax weights (32 columns per workgroup)
;   -> Y partials over g -> gate / up (14 workgroups per group, 16 hidden columns each) -> h
; Hand-offs go through d_ws. Every slot is first marked with all-ones words by this launch; a reader repeats its
;   loads until no word carries the mark. The first q pieces and the per-group flags carry a tag derived from a word
;   found in d_ws (it only tells this launch's words from an earlier launch's). Stores are write-through (sc1) except
;   between workgroups that have all reported the same XCC id, where a plain store reaches the shared L2.
"""

def write(path, **kw):
    body = gen(**kw)
    txt = kernel_file(NAME, body, 256, 512, LDS_BYTES, vgpr=256, accum=256, sgpr=102, comment=HEAD + DESC)
    open(path, "w").write(txt)
    build(path, NAME)
    return path

if __name__ == "__main__":
    write("main_diag.s", diag=True)
    write("main.s")
    print("LDS", LDS_BYTES)
```

```python
import sys, math, struct
from asmlib import *
import hazard

NAME = "interleave_layers__gqa_block_cached__glu_gated_reglu__decode_kernel"

def f32(x):
    return "0x%08x" % struct.unpack("<I", struct.pack("<f", x))[0]

DEFAULT = dict(
    kvf="nt",
    wf="",
    wd_at="afterY",
    pf_at="wo",
    l2pf=True,
    ack=True,
    force_slow=False,
    diag=False,
    prefetch=True,
    spin=8000000,
    bias=0.0,
    x_stop=None,
    x_nogather=False,
    x_nowq=False,
    qbar=True,
    b1first=False,
    pol=0,
    xy=None,
    flip=2,
    phv=0,
    phase=True,
    touch='',
    klin=True,
    esmall=True,
    kpre=2,
    spec=True,
    inl=True,
    hint='',
    wo_at='X',
    aover=True,
    wdb=True,
    qkearly=True,
    w64=False,
    clr2="warm2",
    x_noclr=False,
    x_half=False,
    x_delay=None,
    x_nopub=False,

    x_pad=None,
    x_dbg=None,
    b1at=12,
    kwait=48,
)

WVS = 11264
T_WQ, T_WO, T_FF, T_WD = 0, 2048, 6144, 10240
OB = 8 * WVS
XB = OB + 16384
ONES = XB + 2048
QL = ONES + 1024
MLB = QL + 1024 + 256
RQ = MLB + 256
RQC = RQ + 2048
RW = RQC + 2048
RG = RW + 2048
RGC = RG + 2048
RD = RGC + 2048
DUM = RD + 2048
LDS_BYTES = DUM + (DUM - RQ) + 1024
F0 = 0x10000
W_ML, W_H, W_Y, W_Z, W_Q2 = F0, F0 + 0x10000, F0 + 0x20000, F0 + 0x30000, F0 + 0x40000
LSTR = 0x8000
W_Q1 = 0x58000
W_GF = 0x8000
W_HT = 0x9000
W_O = 0x70000
OSTR = 0x50000
OSLOT = 1024
W_DIAG = 0x200000
WS_BYTES = 0x400000
TAG_STEP = 0x9E3779B0


def gen(**kw):
    o = dict(DEFAULT); o.update(kw)
    a = Asm()
    kvf, wf = o["kvf"], o["wf"]
    sW = "s3"
    sK, sV, sWS, sWq, sX, sWo, sWg, sWu, sOut = [f"s[{i}:{i+3}]" for i in (28, 32, 36, 40, 44, 48, 52, 56, 60)]
    sWd = "s[4:7]"
    sG, sIdx, sB, sS, sO, sPure, sTag, sCnt, sL, sLO = [f"s{i}" for i in range(64, 74)]
    sT0, sT1, sT2, sT3 = "s74", "s75", "s76", "s77"
    sM0 = "s78"
    sYo = "s79"
    sMode = sTag
    sKh = "s101"
    c4k = {0: "s15" if o["phase"] else "0", 1: "s80", 2: "s81", 3: "s82"}
    sPlo, sPhi = "s83", "s84"
    sXcc = "s85"
    mC2, m16, m8, mY, mZ = "s[86:87]", "s[88:89]", "s[90:91]", "s[92:93]", "s[96:97]"
    sSt = "s[98:99]"
    vL = "v0"
    names = """vKG vC vT vT0 vT1 vTq vR4 vL16 vW4 vWg vWd vR4c vGS vOw vOw2 vOr vMLw vMLr vXw vXr
               aK aV aQ2 aO aML aY aH aZ aX1 aFin aRes pO pML pY pZ pS pQ pOut
               vDma vHalf vScale vInv vRes vX1 vStamp vA vEp""".split()
    R = {n: f"v{i+1}" for i, n in enumerate(names)}
    globals().update(R)
    assert len(names) + 1 <= 48, len(names)
    WB = 48
    XO = 64
    DD = 88
    TT = 104
    KB = 124
    VB = 188
    v = lambda i: f"v{i}"
    vr = lambda i, n: f"v[{i}:{i+n-1}]"
    DPP = "row_mask:0xf bank_mask:0xf"
    CHK = v(TT + 19)
    vDum = v(TT + 18)

    def stamp(i, layered=False):
        if o["diag"] is True or (o["diag"] == "light" and i == 21) or (isinstance(o["diag"], tuple) and (i in o["diag"] or i == 21)):
            a(f"    s_mov_b32 m0, s100\n    v_writelane_b32 {vStamp}, s98, m0\n    s_memrealtime {sSt}")
            if layered:
                a(f"    s_lshr_b32 s100, {sL}, 11\n    s_or_b32 s100, s100, {i}")
            else:
                a(f"    s_mov_b32 s100, {i}")
    stampL = lambda i: stamp(i, True)

    def srd(dst, lo, off_sgpr, size):
        d = int(dst[2:dst.index(":")])
        if off_sgpr is None:
            a(f"    s_mov_b32 s{d}, s{lo}\n    s_mov_b32 s{d+1}, s{lo+1}\n    s_mov_b32 s{d+2}, {size}")
        else:
            a(f"    s_add_u32 s{d}, s{lo}, {off_sgpr}\n    s_addc_u32 s{d+1}, s{lo+1}, 0\n    s_sub_u32 s{d+2}, {size}, {off_sgpr}")
        a(f"    s_mov_b32 s{d+3}, 0x20000")

    tail = Asm()
    tail2 = Asm()

    def into(stream, fn, *args):
        nonlocal a
        old, a = a, stream
        fn(*args)
        a = old

    def execm(m):
        a(f"    s_mov_b64 exec, {m}")

    def spin_tail(lbl):
        a(f"    s_cbranch_vccnz {lbl}_again\n{lbl}_ok:")
        tail2(f"{lbl}_again:\n    s_sub_u32 {sCnt}, {sCnt}, 1\n    s_cbranch_scc0 {lbl}\n    s_mov_b32 {sCnt}, 0\n    s_branch {lbl}_ok")

    def poll(loads, lbl, mid=None, mid2=None, younger=0, once=None, after=None):
        a(f"{lbl}:")
        for l, _ in loads:
            a("    " + l)
        if mid:
            mid()
        first = True
        pend = []
        for i, (_, regs) in enumerate(loads):
            a(f"    s_waitcnt vmcnt({len(loads)-1-i+younger})")
            if i == 0 and mid2:
                mid2()
            pend += regs
            last = i == len(loads) - 1 or (after and i in after)
            while len(pend) >= (3 if first else 2) or (last and pend):
                if first:
                    if len(pend) >= 3:
                        a(f"    v_max3_u32 {CHK}, {pend[0]}, {pend[1]}, {pend[2]}"); pend = pend[3:]
                    elif len(pend) == 2:
                        a(f"    v_max_u32 {CHK}, {pend[0]}, {pend[1]}"); pend = []
                    else:
                        a(f"    v_mov_b32 {CHK}, {pend[0]}"); pend = []
                    first = False
                elif len(pend) >= 2:
                    a(f"    v_max3_u32 {CHK}, {pend[0]}, {pend[1]}, {CHK}"); pend = pend[2:]
                else:
                    a(f"    v_max_u32 {CHK}, {pend[0]}, {CHK}"); pend = []
            if after and i in after:
                after[i]()
        a(f"    v_cmp_eq_u32 vcc, -1, {CHK}")
        if once:
            a(f"    s_cbranch_vccnz {once}\n    s_branch {once}_ok")
        else:
            spin_tail(lbl)

    def local_store(ins, lbl):
        if o["force_slow"]:
            a("    " + ins.replace("\n    s_mov_b64 exec, 1\n", " sc1\n    s_mov_b64 exec, 1\n") + " sc1")
            return
        a(f"    s_cmp_eq_u32 {sPure}, 0\n    s_cbranch_scc1 {lbl}_wt\n    {ins}\n{lbl}_e:")
        tail2(f"{lbl}_wt:\n    " + ins.replace("\n    s_mov_b64 exec, 1\n", " sc1\n    s_mov_b64 exec, 1\n") + f" sc1\n    s_branch {lbl}_e")

    vHt = v(TT + 10)
    def hint_post(use):
        a(f"""    s_lshr_b32 {sT0}, {sL}, {15 - 11}
    s_lshl_b32 {sT3}, {sG}, 7
    s_add_u32 {sT0}, {sT0}, {sT3}
    s_add_u32 {sT0}, {sT0}, {W_HT + use * 1024}
    s_lshl_b32 {sT3}, {sIdx}, 2
    s_add_u32 {sT3}, {sT3}, {sT0}
    buffer_store_dword {vEp}, off, {sWS}, {sT3}""")
    def hint_wait(lbl):
        a(f"""    s_cmp_eq_u32 {sPure}, 0
    s_cbranch_scc1 {lbl}_ok
    s_mov_b32 exec_hi, 0
{lbl}:
    buffer_load_dword {vHt}, {aV}, {sWS}, {sT0} offen sc1
    s_waitcnt vmcnt(0)
    v_cmp_ne_u32 vcc, {vHt}, {vEp}""")
        spin_tail(lbl)
        a("    s_mov_b64 exec, -1")

    def ackwait():
        if o["x_delay"] is not None:
            for i in range(o["x_delay"]):
                a("    s_nop 15")
        elif o["ack"]:
            a("    s_waitcnt vmcnt(0)")

    def dma(srdn, tile_off, soff):
        a(f"    s_add_u32 m0, {sM0}, {tile_off}")
        a(f"    buffer_load_dwordx4 {vA}, {srdn}, {soff} offen {wf} lds")

    def tr_read(dst, tile_off):
        a(f"    ds_read_b64_tr_b16 {vr(dst,2)}, {vT} offset:{tile_off}")
        a(f"    ds_read_b64_tr_b16 {vr(dst+2,2)}, {vT} offset:{tile_off+512}")

    def red8(addr, unit0, tmp):
        for i in range(4):
            a(f"    ds_read2st64_b32 {vr(tmp+2*i,2)}, {addr} offset0:{unit0+2*i} offset1:{unit0+2*i+1}")

    def sum8(dst, tmp, extra=None, later=0):
        for i in range(4):
            a(f"    s_waitcnt lgkmcnt({3 - i + later})")
            a(f"    v_add_f32 {v(tmp+2*i)}, {v(tmp+2*i)}, {v(tmp+2*i+1)}")
            if i == 1:
                a(f"    v_add_f32 {v(tmp)}, {v(tmp)}, {v(tmp+2)}")
                if extra:
                    a(f"    v_add_f32 {v(tmp)}, {v(tmp)}, {extra}")
        a(f"    v_add_f32 {v(tmp+4)}, {v(tmp+4)}, {v(tmp+6)}")
        a(f"    v_add_f32 {dst}, {v(tmp)}, {v(tmp+4)}")

    def ln_stats(S2, S1, mu, rstd):
        a(f"    v_mul_f32 {mu}, {f32(1/512)}, {S1}")
        a(f"    v_mul_f32 {S2}, {f32(1/512)}, {S2}")
        a(f"    v_fma_f32 {S2}, -{mu}, {mu}, {S2}")
        a(f"    v_max_f32 {S2}, 0, {S2}")
        a(f"    v_add_f32 {S2}, {f32(1e-5)}, {S2}")
        a(f"    v_rsq_f32 {rstd}, {S2}")

    def pack16(d, S, T):
        a(f"    v_mov_b32_dpp {T}, {S} quad_perm:[1,1,3,3] {DPP}")
        a(f"    v_cvt_pk_bf16_f32 {v(d)}, {S}, {T}")
        for i in (1, 2, 3):
            a(f"    v_mov_b32_dpp {v(d+i)}, {v(d)} row_shl:{2*i} {DPP}")

    def quad4(d):
        for i in (1, 2, 3):
            a(f"    v_mov_b32_dpp {v(d+i)}, {v(d)} quad_perm:[{i},{i},{i},{i}] {DPP}")

    def gather_x(addr, soff, lbl, st, mid2=None, xw=None):
        Y = XO + 8
        poll([(f"buffer_load_dwordx4 {vr(Y+4*i,4)}, {addr}, {sWS}, {soff} offen offset:{128*i} sc1",
               [v(Y + 4 * i + j) for j in range(4)]) for i in range(2 if o['x_half'] else 4)], lbl, None, mid2,
             after={1: lambda: [a(f"    v_pk_add_f32 {vr(Y+j,2)}, {vr(Y+j,2)}, {vr(Y+4+j,2)}") for j in (0, 2)]} if o["spec"] else None)
        st()
        for j in (0, 2):
            if not o["spec"]:
                a(f"    v_pk_add_f32 {vr(Y+j,2)}, {vr(Y+j,2)}, {vr(Y+4+j,2)}")
            a(f"    v_pk_add_f32 {vr(Y+8+j,2)}, {vr(Y+8+j,2)}, {vr(Y+12+j,2)}")
        for j in (0, 2):
            a(f"    v_pk_add_f32 {vr(Y+j,2)}, {vr(Y+j,2)}, {vr(Y+8+j,2)}")
        a(f"""    v_permlane32_swap_b32 {v(Y)}, {v(Y+2)}
    v_permlane32_swap_b32 {v(Y+1)}, {v(Y+3)}
    v_pk_add_f32 {vr(Y,2)}, {vr(Y,2)}, {vr(Y+2,2)}
    v_cvt_pk_bf16_f32 {v(Y)}, {v(Y)}, {v(Y+1)}
    ds_write_b32 {xw or vXw}, {v(Y)}
    ds_read_b128 {vr(XO,4)}, {vXr}
    ds_read_b128 {vr(XO+4,4)}, {vXr} offset:64""")

    def sum_cols(addr, soff, lbl, dst):
        poll([(f"buffer_load_dword {v(TT+i)}, {addr}, {sWS}, {soff} offen offset:{128*i} sc1", [v(TT + i)]) for i in range(4)], lbl)
        a(f"""    v_add_f32 {v(TT)}, {v(TT)}, {v(TT+1)}
    v_add_f32 {v(TT+2)}, {v(TT+2)}, {v(TT+3)}
    v_add_f32 {dst}, {v(TT)}, {v(TT+2)}
    v_mov_b32 {v(TT)}, {dst}
    v_permlane32_swap_b32 {dst}, {v(TT)}
    v_add_f32 {dst}, {dst}, {v(TT)}""")

    def two_tile_write(base):
        a(f"    ds_write_b128 {vWg}, {vr(DD,4)} offset:{base - RQ}")
        a(f"    ds_write_b128 {vWg}, {vr(DD+4,4)} offset:{base - RQ + 128}")

    def stats_write(base):
        a(f"    ds_write_b128 {vL16}, {vr(DD+8,4)} offset:{base - RQ + 2048 + 192}")
        a("    s_waitcnt lgkmcnt(0)\n    s_barrier")

    def two_tile_reduce(base, n, aD, aC):
        st = v(TT + 8)
        S2, S1, mu, rs, S, CS = v(DD), v(DD + 1), v(DD + 2), v(DD + 3), v(DD + 4), v(DD + 5)
        u = (base - RQ) // 256
        h = n // 2
        a(f"    ds_read_b32 {st}, {vGS} offset:{base - RQ}")
        for i in range(h):
            a(f"    ds_read2st64_b32 {vr(TT+2*i,2)}, {aD} offset0:{u+2*i} offset1:{u+2*i+1}")
        for i in range(h):
            a(f"    ds_read2st64_b32 {vr(XO+2*i,2)}, {aC} offset0:{u+2*i} offset1:{u+2*i+1}")
        chain = [f"v_add_f32_dpp {st}, {st}, {st} quad_perm:[1,0,3,2] {DPP}",
                 f"v_add_f32_dpp {st}, {st}, {st} quad_perm:[2,3,0,1] {DPP}",
                 f"v_add_f32_dpp {st}, {st}, {st} row_half_mirror {DPP}",
                 f"v_mul_f32_dpp {mu}, {st}, {vInv} row_newbcast:8 {DPP}\n    v_mul_f32_dpp {S2}, {st}, {vInv} row_newbcast:0 {DPP}",
                 f"v_fma_f32 {S2}, -{mu}, {mu}, {S2}\n    v_max_f32 {S2}, 0, {S2}\n    v_add_f32 {S2}, {f32(1e-5)}, {S2}\n    v_rsq_f32 {rs}, {S2}"]
        if n == 8:
            fill = [f"s_waitcnt lgkmcnt(6)\n    v_pk_add_f32 {vr(TT,2)}, {vr(TT,2)}, {vr(TT+2,2)}",
                    f"s_waitcnt lgkmcnt(4)\n    v_pk_add_f32 {vr(TT+4,2)}, {vr(TT+4,2)}, {vr(TT+6,2)}",
                    f"s_waitcnt lgkmcnt(2)\n    v_pk_add_f32 {vr(XO,2)}, {vr(XO,2)}, {vr(XO+2,2)}",
                    f"v_pk_add_f32 {vr(TT,2)}, {vr(TT,2)}, {vr(TT+4,2)}\n    s_waitcnt lgkmcnt(0)\n    v_pk_add_f32 {vr(XO+4,2)}, {vr(XO+4,2)}, {vr(XO+6,2)}",
                    f"v_pk_add_f32 {vr(XO,2)}, {vr(XO,2)}, {vr(XO+4,2)}\n    v_add_f32 {S}, {v(TT)}, {v(TT+1)}\n    v_add_f32 {CS}, {v(XO)}, {v(XO+1)}"]
        else:
            fill = [f"s_waitcnt lgkmcnt(2)\n    v_pk_add_f32 {vr(TT,2)}, {vr(TT,2)}, {vr(TT+2,2)}",
                    f"s_waitcnt lgkmcnt(0)\n    v_pk_add_f32 {vr(XO,2)}, {vr(XO,2)}, {vr(XO+2,2)}",
                    f"v_add_f32 {S}, {v(TT)}, {v(TT+1)}\n    v_add_f32 {CS}, {v(XO)}, {v(XO+1)}", None, None]
        a(f"    s_waitcnt lgkmcnt({2*h})")
        for c_, f_ in zip(chain, fill):
            a("    " + c_)
            if f_:
                a("    " + f_)
        a(f"    v_fma_f32 {S}, -{mu}, {CS}, {S}\n    v_mul_f32 {S}, {S}, {rs}")
        return S

    def add_bf16x8(d, A, B):
        for i in range(4):
            x, y = TT + 4 * (i & 1), TT + 4 * (i & 1) + 2
            a(f"""    v_lshlrev_b32 {v(x)}, 16, {A[i]}
    v_and_b32 {v(x+1)}, 0xffff0000, {A[i]}
    v_lshlrev_b32 {v(y)}, 16, {B[i]}
    v_and_b32 {v(y+1)}, 0xffff0000, {B[i]}
    v_pk_add_f32 {vr(x,2)}, {vr(x,2)}, {vr(y,2)}
    v_cvt_pk_bf16_f32 {v(d+i)}, {v(x)}, {v(x+1)}""")

    def r64_addr(shift):
        t = v(TT + 7)
        a(f"""    v_bfe_u32 {vA}, {vL}, 2, 2
    v_lshl_add_u32 {vA}, {vKG}, 3, {vA}
    v_lshlrev_b32 {vA}, {shift}, {vA}
    v_and_b32 {t}, 1, {vKG}
    v_lshlrev_b32 {t}, 1, {t}
    v_xor_b32 {t}, {t}, {vL}
    v_and_b32 {t}, 3, {t}
    v_lshl_add_u32 {vA}, {t}, 4, {vA}""")

    cO, cF, cQ = v(TT + 12), v(TT + 13), v(TT + 14)
    def slot_addrs():
        t2, t3, t4 = v(TT + 2), v(TT + 3), v(TT + 4)
        a(f"""    s_lshl_b32 {sT2}, {sO}, 10
    s_add_u32 {sT2}, {sT2}, {W_O}
    v_lshl_add_u32 {cO}, {vL}, 4, {sT2}
    v_mov_b32 {t2}, {sO}
    v_mov_b32 {t3}, {sYo}
    v_cmp_lt_u32 vcc, 1, {vKG}
    v_cndmask_b32 {t2}, {t2}, {t3}, vcc
    v_lshrrev_b32 {t3}, 3, {vL}
    v_lshlrev_b32 {t4}, 15, {t3}
    v_lshl_add_u32 {cF}, {t2}, 7, {t4}
    v_and_b32 {t4}, 7, {vL}
    v_lshl_add_u32 {cF}, {t4}, 4, {cF}
    v_add_u32 {cF}, {F0}, {cF}
    s_lshl_b32 {sT2}, {sO}, 7
    s_add_u32 {sT2}, {sT2}, {W_Q2}
    v_lshlrev_b32 {t3}, 22, {t3}
    v_lshl_add_u32 {cQ}, {t4}, 4, {t3}
    v_add_u32 {cQ}, {sT2}, {cQ}
    s_mov_b32 {sT3}, {OSTR}""")

    def kshuffle():
        if not o["klin"]:
            return
        aw, ar = DD, DD + 4
        a(f"""    s_add_u32 {sT1}, {sM0}, {T_WO}
    v_xor_b32 {v(aw)}, {vC}, {vKG}
    v_lshlrev_b32 {v(ar)}, 4, {v(aw)}
    v_lshl_add_u32 {v(aw)}, {vKG}, 8, {v(ar)}
    v_lshl_add_u32 {v(ar)}, {vC}, 8, {v(ar)}
    v_add_u32 {v(aw)}, {sT1}, {v(aw)}
    v_add_u32 {v(ar)}, {sT1}, {v(ar)}""")
        for j in (1, 2, 3):
            a(f"    v_xor_b32 {v(aw+j)}, {64*j}, {v(aw)}\n    v_xor_b32 {v(ar+j)}, {64*j}, {v(ar)}")
        for u in range(4):
            h = (u & 1) * 4096
            if u:
                a("    s_waitcnt lgkmcnt(6)")
            for j in range(4):
                a(f"    ds_write_b128 {v(aw+j)}, {vr(KB+16*u+4*j,4)} offset:{h + 1024*j}")
            for t in range(4):
                a(f"    ds_read_b128 {vr(KB+16*u+4*t,4)}, {v(ar+t)} offset:{h}")

    def kload(i):
        if o["klin"]:
            a(f"    buffer_load_dwordx4 {vr(KB+16*(i&3)+4*(i>>2),4)}, {aK}, {sK}, {c4k[i>>2]} offen offset:{(i&3)*1024} {kvf}")
            return
        u, t = i // 4, i % 4
        a(f"    buffer_load_dwordx4 {vr(KB+4*i,4)}, {aK}, {sK}, 0 offen offset:{u*1024+t*64} {kvf}")

    t0, t1, t2, t3, t4, t5 = [v(TT + i) for i in range(6)]
    a(f"""    s_cmp_ge_u32 s2, 256
    s_cbranch_scc1 L_end
    s_load_dwordx16 s[4:19], s[0:1], 0
    s_load_dwordx8 s[20:27], s[0:1], 64
    v_lshrrev_b32 v1, 6, v0
    v_and_b32 {vL}, 63, v0
    v_readfirstlane_b32 {sW}, v1""")
    if o["diag"]:
        a(f"    v_mov_b32 {vStamp}, 0\n    s_memrealtime {sSt}\n    s_mov_b32 s100, 0")
    a(f"""    s_lshr_b32 {sIdx}, s2, 3
    s_and_b32 {sG}, s2, 7
    s_lshr_b32 {sB}, s2, 7
    s_and_b32 {sS}, {sIdx}, 15
    s_and_b32 {sKh}, {sIdx}, 1
    v_lshrrev_b32 {vKG}, 4, {vL}
    v_and_b32 {vC}, 15, {vL}
""")
    if o["klin"]:
        a(f"    v_lshlrev_b32 {aK}, 4, {vL}")
    else:
        a(f"""    ; K lane address: (c>>2)*4096 + (c&3)*256 + kg*16
    v_bfe_u32 {aK}, {vL}, 2, 2
    v_lshlrev_b32 {aK}, 12, {aK}
    v_and_b32 {t1}, 3, {vL}
    v_lshl_add_u32 {aK}, {t1}, 8, {aK}
    v_lshl_add_u32 {aK}, {vKG}, 4, {aK}""")
    a(f"""    ; kv byte offset: ((8b + g)*16 + s)*8 + w) << 14
    s_lshl3_add_u32 {sT0}, {sB}, {sG}
    s_lshl4_add_u32 {sT0}, {sT0}, {sS}
    s_lshl3_add_u32 {sT0}, {sT0}, {sW}
    {("s_lshl_b32 " + sT1 + ", " + sKh + ", 2") if o["flip"] == 1 else ""}
    {("s_and_b32 " + sT1 + ", " + sIdx + ", 7") if o["flip"] == 2 else ""}
    {("s_add_u32 " + sT1 + ", " + sIdx + ", s2") if o["flip"] == 3 else ""}
    {("s_and_b32 " + sT1 + ", " + sT1 + ", 7") if o["flip"] == 3 else ""}
    {("s_xor_b32 " + sT0 + ", " + sT0 + ", " + sT1) if o["flip"] else ""}
    s_lshl_b32 {sT0}, {sT0}, 14
    s_mov_b32 s31, 0x20000
    s_sub_u32 s30, 33554432, {sT0}
    s_cmp_lt_u32 {sW}, 4
    s_cbranch_scc0 L_young
    s_lshl2_add_u32 {sT1}, {sKh}, {sW}
    s_lshl_b32 {sT1}, {sT1}, 19
    s_lshr_b32 {sT2}, {sIdx}, 1
    s_lshl4_add_u32 {sT2}, {sG}, {sT2}
    s_lshl_b32 {sT2}, {sT2}, 6
    s_add_u32 {sT1}, {sT1}, {sT2}
    s_mul_i32 {sT3}, {sW}, {2*WVS}""")
    r64_addr(13)
    a(f"""    s_mov_b32 s43, 0x20000
    s_sub_u32 s42, 4194304, {sT1}
    s_add_u32 m0, {sT3}, {T_WQ}
    s_waitcnt lgkmcnt(0)
    s_add_u32 s40, s10, {sT1}
    s_addc_u32 s41, s11, 0""")
    if o["diag"]:
        stamp(2)
        a(f"    s_add_u32 m0, {sT3}, {T_WQ}")
    for k in range(0 if o["x_nowq"] else 4):
        if k:
            a(f"    s_add_u32 m0, {sT3}, {(k >> 1) * WVS + T_WQ + (k & 1) * 1024}")
            a(f"    s_mov_b32 {sT2}, {((k >> 1) * 32 + (k & 1) * 4) * 8192}")
        a(f"    buffer_load_dwordx4 {vA}, {sWq}, {sT2 if k else 0} offen {wf} lds")
    def phase0():
        if o["phase"]:
            if o["phv"] == 0:
                a(f"    s_add_u32 s15, {sIdx}, {sW}\n    s_add_u32 s15, s15, {sG}")
            elif o["phv"] == 1:
                a(f"    s_lshr_b32 s15, {sIdx}, 2\n    s_add_u32 s15, s15, {sW}\n    s_add_u32 s15, s15, {sG}")
            else:
                a(f"    s_lshr_b32 s15, {sIdx}, 3\n    s_add_u32 s15, s15, {sW}")
            a(f"    s_and_b32 s15, s15, 3\n    s_lshl_b32 s15, s15, 12")
    phase0()
    a(f"    s_add_u32 s28, s6, {sT0}\n    s_addc_u32 s29, s7, 0")
    def common2():
        a(f"""    v_lshlrev_b32 {aV}, 2, {vL}
    s_lshl_b32 {sO}, {sG}, 5
    s_add_u32 {sO}, {sO}, {sIdx}
    {"s_xor_b32 s80, s15, 4096" if o["phase"] else "s_mov_b32 s80, 4096"}
    {"s_xor_b32 s81, s15, 8192" if o["phase"] else "s_mov_b32 s81, 8192"}
    {"s_xor_b32 s82, s15, 12288" if o["phase"] else "s_mov_b32 s82, 12288"}
    s_add_u32 s32, s8, {sT0}
    s_addc_u32 s33, s9, 0
    s_mov_b32 s34, s30
    s_mov_b32 s35, 0x20000
    s_mov_b32 s36, s26
    s_mov_b32 s37, s27
    s_mov_b32 s38, {WS_BYTES}
    s_mov_b32 s39, 0x20000
    s_lshr_b32 {sT1}, {sG}, 2
    s_xor_b32 {sT1}, {sT1}, {o["pol"]}
    s_lshl1_add_u32 {sYo}, {sB}, {sT1}
    s_lshl4_add_u32 {sYo}, {sYo}, {sS}
    s_and_b32 {sT1}, {sG}, 3
    s_lshl2_add_u32 {sYo}, {sYo}, {sT1}""")
    c0 = TT + 8
    def small_ops():
        a(f"""    v_lshlrev_b32 {t0}, 4, {vL}
    s_cmp_eq_u32 {sW}, 0
    s_cbranch_scc0 L_sm1""")
        srd(sX, 4, None, 2048)
        a(f"""    s_mov_b32 m0, {XB}
    s_nop 0
    buffer_load_dwordx4 {t0}, {sX}, 0 offen lds
    buffer_load_dwordx4 {t0}, {sX}, 0 offen offset:1024 lds
    s_branch L_sm9
L_sm1:
    s_cmp_eq_u32 {sW}, 3
    s_cbranch_scc0 L_sm2
    buffer_load_dword {vEp}, off, {sWS}, 0 offset:4 sc1
    s_branch L_sm9
L_sm2:
    v_mov_b32 {v(c0)}, -1
    v_mov_b32 {v(c0+1)}, -1
    v_mov_b32 {v(c0+2)}, -1
    v_mov_b32 {v(c0+3)}, -1""")
        slot_addrs()
        a(f"""    s_cmp_eq_u32 {sW}, 1
    s_cbranch_scc1 L_sm3
    v_mov_b32 {cO}, {cF}
    s_mov_b32 exec_lo, 0x00ff00ff
    s_mov_b32 exec_hi, 0x00ff00ff
L_sm3:
    buffer_store_dwordx4 {vr(c0,4)}, {cO}, {sWS}, 0 offen sc1
    s_mov_b64 exec, -1
L_sm9:""")
    for i in range(16):
        if i == o["kpre"]:
            common2()
            if o["esmall"]:
                small_ops()
        kload(i)
        if i + 1 == o["b1at"]:
            stamp(16)
            a(f"    s_waitcnt vmcnt({o['b1at'] - (o['kpre'] if o['esmall'] else 0)})")
            if o["esmall"]:
                a(f"""    s_cmp_eq_u32 {sW}, 3
    s_cbranch_scc0 L_b1
    v_mov_b32 {t3}, {QL + 1028}
    v_add_u32 {vEp}, {TAG_STEP}, {vEp}
    ds_write_b32 {t3}, {vEp}
    s_waitcnt lgkmcnt(0)
L_b1:""")
            a("    s_barrier")
            stamp(22)
    a("L_vloads:")
    for n in range(16):
        for r, d in ((0, 2), (1, 4), (2, 3), (3, 5)):
            key = 4 * n + r
            if key == o["kwait"]:
                a(f"    s_waitcnt vmcnt({key})")
                if o["qkearly"]:
                    a(f"    s_cmp_lt_u32 {sW}, 4\n    s_cbranch_scc0 L_mid\nL_vrest:")
            a(f"    buffer_load_dword {v(VB+4*n+d)}, {aV}, {sV}, {c4k[key//16]} offen offset:{(key%16)*256} {kvf}")
    stamp(5)
    a(f"""    s_cmp_lt_u32 {sW}, 4
    s_cbranch_scc0 L_joined
    s_branch L_setup
L_young:""")
    if o["prefetch"]:
        a(f"""    ; each of these waves pulls 128 bytes of the code into L2
    s_getpc_b64 s[94:95]
L_pc:
    s_lshl2_add_u32 {sT2}, {sIdx}, {sW}
    s_sub_u32 {sT2}, {sT2}, 4
    s_lshl_b32 {sT2}, {sT2}, 7
    s_min_u32 {sT2}, {sT2}, L_codeend-L_pc-64
    v_lshl_add_u32 {t2}, {vL}, 6, {sT2}
    s_mov_b64 exec, 3
    global_load_dword {vDum}, {t2}, s[94:95]
    s_mov_b64 exec, -1""")
    a(f"""    v_mov_b32 {t3}, {QL + 1024}
    v_mov_b32 {t4}, 0
    ds_write_b32 {t3}, {t4}
    s_waitcnt lgkmcnt(0)
    s_add_u32 s28, s6, {sT0}
    s_addc_u32 s29, s7, 0""")
    phase0()
    common2()
    a(f"""    s_cmp_eq_u32 {sW}, 7
    s_cbranch_scc1 L_w7a
    {"s_barrier" if o["b1first"] else ""}
    s_branch L_setup
L_w7a:""")
    a("    s_setprio 3")
    if not o["esmall"]:
        srd(sX, 4, None, 2048)
        a(f"""    s_mov_b32 m0, {XB}
    v_lshlrev_b32 {t0}, 4, {vL}
    v_mov_b32 {v(c0)}, -1
    buffer_load_dwordx4 {t0}, {sX}, 0 offen lds
    buffer_load_dwordx4 {t0}, {sX}, 0 offen offset:1024 lds
    buffer_load_dword {vEp}, off, {sWS}, 0 offset:4 sc1
    v_mov_b32 {v(c0+1)}, -1
    v_mov_b32 {v(c0+2)}, -1
    v_mov_b32 {v(c0+3)}, -1""")
        slot_addrs()
        if not o["x_noclr"]:
            a(f"""    buffer_store_dwordx4 {vr(c0,4)}, {cO}, {sWS}, 0 offen sc1
    s_mov_b32 exec_lo, 0x00ff00ff
    s_mov_b32 exec_hi, 0x00ff00ff
    buffer_store_dwordx4 {vr(c0,4)}, {cF}, {sWS}, 0 offen sc1
    s_mov_b64 exec, -1""")
    a(f"""L_setup:
    v_bfe_u32 {t5}, {vL}, 3, 2
    v_lshlrev_b32 {vDma}, 3, {t5}
    v_lshrrev_b32 {t5}, 5, {vL}
    v_lshl_add_u32 {vDma}, {t5}, 2, {vDma}
    v_bfe_u32 {t5}, {vL}, 1, 2
    v_add_u32 {vDma}, {vDma}, {t5}
    v_and_b32 {vHalf}, 1, {vL}
    v_lshlrev_b32 {vHalf}, 4, {vHalf}
    s_mul_i32 {sM0}, {sW}, {WVS}""")
    h8 = t1
    a(f"""    s_getreg_b32 {sXcc}, hwreg(HW_REG_XCC_ID, 0, 4)
    s_mov_b32 s86, 0x00030003
    s_mov_b32 s87, 0x00030003
    s_mov_b32 s88, 0x01010101
    s_mov_b32 s89, 0x01010101
    s_mov_b32 s90, 0x01010101
    s_mov_b32 s91, 0
    s_mov_b32 s92, 0x00001111
    s_mov_b32 s93, 0x00001111
    s_mov_b32 s96, 0x11111111
    s_mov_b32 s97, 0
    s_mov_b32 {sPlo}, 0x05040100
    s_mov_b32 {sPhi}, 0x07060302
    s_mov_b32 {sCnt}, {o['spin']}
    s_mov_b32 {sL}, 0
    s_mov_b32 {sLO}, 0
    s_mov_b32 {sPure}, 0
    s_mov_b32 {sMode}, 0
    v_lshrrev_b32 {t2}, 1, {vKG}
    v_and_b32 {t3}, 1, {vKG}
    v_lshl_add_u32 {vT}, {vL}, 3, {sM0}
    s_lshl_b32 {sT2}, {sW}, 8
    s_add_u32 {sT2}, {sT2}, {RQ}                ; RQ + w*256
    v_add_u32 {vW4}, {sT2}, {aV}
    v_add_u32 {vR4}, {RQ}, {aV}
    v_lshlrev_b32 {vWd}, 6, {vC}
    v_lshl_add_u32 {vWd}, {vKG}, 4, {vWd}
    v_add_u32 {vWd}, {sT2}, {vWd}
    v_lshlrev_b32 {t5}, 4, {vL}
    v_add_u32 {vL16}, {sT2}, {t5}
    v_add_u32 {t5}, {DUM}, {t5}
    v_add_u32 {vWg}, {2048 - 128}, {vWd}
    v_cmp_eq_u32 vcc, 2, {vC}
    v_cndmask_b32 {vWg}, {t5}, {vWg}, vcc
    v_cmp_gt_u32 vcc, 2, {vC}
    v_cndmask_b32 {vWg}, {vWg}, {vWd}, vcc
    v_cndmask_b32 {vWd}, {t5}, {vWd}, vcc
    v_cmp_gt_u32 vcc, 2, {vL}
    v_cndmask_b32 {vL16}, {t5}, {vL16}, vcc
    v_mov_b32 {vInv}, {f32(1/512)}
    v_mov_b32 {vScale}, {f32(128**-0.5 * math.log2(math.e))}
    v_mov_b32 {vRes}, 0
    v_mov_b32 {vX1}, 0
    ds_write_b32 {vR4}, {vRes} offset:{RD - RQ + 7*256}
    v_lshrrev_b32 {t4}, 2, {vC}
    s_and_b32 {sT3}, {sO}, 0xf0
    s_lshl_b32 {sT3}, {sT3}, 7
    s_add_u32 {sT3}, {sT3}, {W_Q2}
    v_lshl_add_u32 {aQ2}, {vL}, 4, {sT3}
    s_lshl_b32 {sT2}, {sG}, 12
    s_lshl_b32 {sT3}, {sW}, 8
    s_add_u32 {sT2}, {sT2}, {sT3}
    s_add_u32 {sT2}, {sT2}, {W_H}
    v_lshl_add_u32 {aH}, {t2}, 7, {sT2}
    v_lshl_add_u32 {aH}, {vC}, 5, {aH}
    v_lshl_add_u32 {aH}, {t3}, 4, {aH}
    s_and_b32 {sT2}, {sO}, 0xf0
    s_lshl_b32 {sT3}, {sW}, 1
    s_add_u32 {sT3}, {sT3}, {sT2}
    s_lshl_b32 {sT3}, {sT3}, 10
    s_add_u32 {sT3}, {sT3}, {W_O}
    v_lshl_add_u32 {aO}, {vL}, 4, {sT3}
    v_lshl_add_u32 {aML}, {vKG}, 2, {vC}
    v_and_b32 {aML}, 15, {aML}
    s_lshr_b32 {sT3}, {sW}, 1
    s_add_u32 {sT3}, {sT3}, {sT2}
    s_lshl_b32 {sT3}, {sT3}, 7
    s_add_u32 {sT3}, {sT3}, {W_ML}
    v_lshl_add_u32 {aML}, {aML}, 3, {sT3}
    v_xor_b32 {t1}, {o["pol"]}, {t2}
    v_lshlrev_b32 {t1}, 13, {t1}
    v_lshrrev_b32 {aY}, 3, {vC}
    v_lshl_add_u32 {aY}, {aY}, 9, {t1}
    v_lshl_add_u32 {aY}, {t3}, 14, {aY}
    v_and_b32 {t5}, 7, {vC}
    v_lshl_add_u32 {aY}, {t5}, 4, {aY}
    s_lshl_b32 {sT3}, {sW}, 10
    s_add_u32 {sT3}, {sT3}, {W_Y}
    v_add_u32 {aY}, {sT3}, {aY}
    v_bfe_u32 {aZ}, {vL}, 3, 2
    v_lshl_add_u32 {aZ}, {aZ}, 9, {t1}
    v_lshl_add_u32 {aZ}, {t5}, 4, {aZ}
    s_lshr_b32 {sT2}, {sW}, 2
    s_lshl_b32 {sT2}, {sT2}, 14
    s_and_b32 {sT3}, {sW}, 3
    s_lshl_b32 {sT3}, {sT3}, 11
    s_add_u32 {sT3}, {sT3}, {sT2}
    s_add_u32 {sT3}, {sT3}, {W_Z}
    v_add_u32 {aZ}, {sT3}, {aZ}
    ; x1 for this workgroup's 16 columns: b'*16384 + gh*8192 + (idx>>1)*512 + (idx&1)*64 + c*4
    v_lshl_add_u32 {t5}, {vC}, 2, {t1}
    s_lshr_b32 {sT2}, {sIdx}, 1
    s_lshl_b32 {sT2}, {sT2}, 9
    s_lshl_b32 {sT3}, {sKh}, 6
    s_add_u32 {sT2}, {sT2}, {sT3}
    s_add_u32 {sT2}, {sT2}, {W_Y}
    v_lshl_add_u32 {aX1}, {t3}, 14, {t5}
    v_add_u32 {aX1}, {sT2}, {aX1}
    s_lshl_b32 {sT2}, {sB}, 14
    s_lshl_b32 {sT3}, {sS}, 9
    s_add_u32 {sT2}, {sT2}, {sT3}
    s_add_u32 {sT2}, {sT2}, {W_Z}
    v_lshl_add_u32 {aFin}, {t3}, 6, {t5}
    v_add_u32 {aFin}, {sT2}, {aFin}
    s_lshl_b32 {sT2}, {sIdx}, 5
    v_lshlrev_b32 {pOut}, 10, {t3}
    v_lshl_add_u32 {pOut}, {vC}, 1, {pOut}
    v_add_u32 {pOut}, {sT2}, {pOut}
    s_and_b32 {sT1}, {sO}, 0xf0                 ; O: (o & 0xf0)*1024 + w*4096 + (l>>2)*256 + s*16 + (l&3)*4
    s_lshl_b32 {sT2}, {sW}, 2
    s_add_u32 {sT2}, {sT2}, {sT1}
    s_lshl_b32 {sT2}, {sT2}, 10
    s_lshl_b32 {sT3}, {sS}, 4
    s_add_u32 {sT2}, {sT2}, {sT3}
    s_add_u32 {sT2}, {sT2}, {W_O}
    v_lshrrev_b32 {pO}, 2, {vL}
    v_lshl_add_u32 {pO}, {pO}, 8, {sT2}
    v_and_b32 {t5}, 3, {vL}
    v_lshl_add_u32 {pO}, {t5}, 2, {pO}
    s_add_u32 {sT2}, {sT1}, {sW}
    s_lshl_b32 {sT2}, {sT2}, 7
    s_lshl_b32 {sT3}, {sS}, 3
    s_add_u32 {sT2}, {sT2}, {sT3}
    s_add_u32 {sT2}, {sT2}, {W_ML}
    v_mov_b32 {pML}, {sT2}
    s_bfe_u32 {sT2}, {sIdx}, 0x20001
    s_lshl_b32 {sT2}, {sT2}, 2
    s_lshr_b32 {sT3}, {sIdx}, 3
    s_add_u32 {sT2}, {sT2}, {sT3}
    s_lshl_b32 {sT2}, {sT2}, 4
    s_lshl_b32 {sT3}, {sG}, 12
    s_add_u32 {sT2}, {sT2}, {sT3}
    s_lshl_b32 {sT3}, {sKh}, 10
    s_add_u32 {sT2}, {sT2}, {sT3}
    s_add_u32 {sT2}, {sT2}, {W_Q2}
    v_lshl_add_u32 {pQ}, {t3}, 11, {sT2}
    v_lshl_add_u32 {pQ}, {t2}, 9, {pQ}
    v_lshrrev_b32 {t5}, 3, {vC}
    v_lshl_add_u32 {pQ}, {t5}, 8, {pQ}
    s_lshl_b32 {sT2}, {sO}, 7
    v_lshl_add_u32 {pS}, {vL}, 1, {sT2}         ; o*128 + (b*16+n)*2
    s_lshl_b32 {sT2}, {sYo}, 7
    s_add_u32 {sT3}, {sT2}, {W_Z}
    v_add_u32 {pZ}, {sT3}, {aV}
    s_add_u32 {sT2}, {sT2}, {W_Y}
    v_lshlrev_b32 {pY}, 2, {vC}
    v_lshl_add_u32 {pY}, {t2}, 6, {pY}
    v_add_u32 {pY}, {sT2}, {pY}
    v_lshrrev_b32 {vT0}, 2, {vL}
    v_lshlrev_b32 {vT0}, 6, {vT0}
    v_and_b32 {vT1}, 3, {vL}
    v_lshl_add_u32 {vT0}, {vT1}, 3, {vT0}
    v_lshl_add_u32 {vT0}, {t3}, 5, {vT0}
    s_and_b32 {sT2}, {sW}, 3
    s_mul_i32 {sT2}, {sT2}, {2*WVS}
    v_add_u32 {vTq}, {sT2}, {vT0}
    v_add_u32 {vT0}, {sM0}, {vT0}
    v_xor_b32 {vT1}, 32, {vT0}
    s_lshl_b32 {sT2}, {sW}, 11
    s_add_u32 {sT2}, {sT2}, {OB}
    v_lshl_add_u32 {vOw}, {vL}, 3, {sT2}
    v_add_u32 {vOw2}, 1024, {vOw}
    s_lshl_b32 {sT2}, {sW}, 9
    s_add_u32 {sT2}, {sT2}, {OB}
    v_lshl_add_u32 {vOr}, {vL}, 3, {sT2}
    s_lshl_b32 {sT2}, {sW}, 3
    s_add_u32 {sT2}, {sT2}, {MLB}
    v_and_b32 {vMLw}, 3, {vL}
    v_lshl_add_u32 {vMLw}, {vMLw}, 6, {sT2}
    s_lshl_b32 {sT2}, {sW}, 6
    s_add_u32 {sT2}, {sT2}, {MLB}
    v_and_b32 {vMLr}, 7, {vL}
    v_lshl_add_u32 {vMLr}, {vMLr}, 3, {sT2}
    v_lshlrev_b32 {vR4c}, 2, {vC}
    v_lshl_add_u32 {vR4c}, {t2}, 7, {vR4c}
    v_add_u32 {vR4c}, {RQC}, {vR4c}
    ; x staging
    s_lshl_b32 {sT2}, {sW}, 7
    s_add_u32 {sT2}, {sT2}, {XB}
    v_lshl_add_u32 {vXw}, {t3}, 10, {sT2}
    v_lshl_add_u32 {vXw}, {vC}, 3, {vXw}
    v_lshl_add_u32 {vXw}, {t2}, 2, {vXw}
    v_min_u32 {vXr}, 2, {vC}
    v_lshl_add_u32 {vXr}, {vXr}, 10, {sT2}
    v_lshl_add_u32 {vXr}, {vKG}, 4, {vXr}
    v_lshlrev_b32 {t5}, 2, {t3}
    v_cmp_gt_u32 vcc, 8, {vC}
    v_cndmask_b32 {t5}, 8, {t5}, vcc
    v_and_b32 {vGS}, 7, {vL}
    v_lshlrev_b32 {vGS}, 8, {vGS}
    v_lshl_add_u32 {vGS}, {t3}, 4, {vGS}
    v_add_u32 {vGS}, {vGS}, {t5}
    v_add_u32 {vGS}, {RQC + 192}, {vGS}
    v_lshlrev_b32 {t5}, 1, {vC}
    v_lshl_add_u32 {t5}, {t2}, 5, {t5}
    s_lshl_b32 {sT2}, {sB}, 10
    s_lshl_b32 {sT3}, {sS}, 6
    s_add_u32 {sT2}, {sT2}, {sT3}
    s_add_u32 {sT2}, {sT2}, {XB}
    v_add_u32 {aRes}, {sT2}, {t5}
    s_lshl_b32 {sT1}, {sG}, 19                  ; wo: (512g + 64(w&3))*1024 + s*64
    s_and_b32 {sT2}, {sW}, 3
    s_lshl_b32 {sT2}, {sT2}, 16
    s_add_u32 {sT1}, {sT1}, {sT2}
    s_lshl_b32 {sT2}, {sS}, 6
    s_add_u32 {sT1}, {sT1}, {sT2}""")
    srd(sWo, 12, sT1, 4194304)
    srd(sOut, 22, None, 2048)
    a(f"""    s_mul_i32 {sT1}, {sG}, 14
    s_min_u32 {sT2}, {sIdx}, 13
    s_add_u32 {sT1}, {sT1}, {sT2}
    s_lshl_b32 {sT1}, {sT1}, 5
    s_mul_i32 {sT2}, {sW}, {64*3584}
    s_add_u32 {sT1}, {sT1}, {sT2}""")
    srd(sWg, 16, sT1, 1835008)
    srd(sWu, 18, sT1, 1835008)
    a(f"""    s_mul_i32 {sT1}, {sG}, 7
    s_min_u32 {sT2}, {sW}, 6
    s_add_u32 {sT1}, {sT1}, {sT2}
    s_lshl_b32 {sT1}, {sT1}, 15
    s_lshl_b32 {sT2}, {sIdx}, 5
    s_add_u32 {sT1}, {sT1}, {sT2}""")
    srd(sWd, 20, sT1, 1835008)
    a(f"""    s_cmp_lt_u32 {sW}, 4
    s_cbranch_scc1 L_joined
    s_cmp_eq_u32 {sW}, 7
    s_cbranch_scc0 L_young2""")
    b0, b1, bx, by = t0, t1, t2, t5
    a(f"""    v_mov_b32 {v(DD)}, 0x3f803f80
    v_mov_b32 {v(DD+1)}, 0x3f803f80
    v_mov_b32 {v(DD+2)}, 0x3f803f80
    v_mov_b32 {v(DD+3)}, 0x3f803f80
    v_lshlrev_b32 {b0}, 4, {vL}
    v_add_u32 {b0}, {ONES}, {b0}
    ds_write_b128 {b0}, {vr(DD,4)}
    v_subrev_u32 {b0}, {sM0}, {vT0}
    v_xor_b32 {b1}, 32, {b0}
    s_lshl_b32 {sT2}, {sKh}, 9
    v_subrev_u32 {bx}, {7*128}, {vXr}
    v_add_u32 {bx}, {sT2}, {bx}
    v_xor_b32 {by}, 512, {bx}
    v_mov_b32 {t3}, {QL + 1028}""")
    if o["esmall"]:
        a(f"    s_waitcnt lgkmcnt(0)\n    s_barrier\n    ds_read_b32 {vEp}, {t3}")
    else:
        a(f"""    s_waitcnt vmcnt(0)
    v_add_u32 {vEp}, {TAG_STEP}, {vEp}
    ds_write_b32 {t3}, {vEp}
    s_waitcnt lgkmcnt(0)
    s_barrier""")
    assert XB % 1024 == 0
    def q1_reads(k):
        if k == 4:
            a(f"    v_add_u32 {b0}, {4*WVS}, {b0}\n    v_add_u32 {b1}, {4*WVS}, {b1}")
        off = (k & 3) * WVS + T_WQ
        A, B = WB + 8 * (k & 1), XO + 8 * (k & 1)
        for ct in range(2):
            for jj in range(2):
                a(f"    ds_read_b64_tr_b16 {vr(A+4*ct+2*jj,2)}, {(b0, b1)[ct]} offset:{off + 1024*jj}")
        a(f"    ds_read_b128 {vr(B,4)}, {bx} offset:{64*k}")
        a(f"    ds_read_b128 {vr(B+4,4)}, {by} offset:{64*k}")
    q1_reads(0); q1_reads(1)
    D0, D1, DS = DD, DD + 12, DD + 4
    for k in range(8):
        a(f"    s_waitcnt lgkmcnt({6 if k < 7 else 0})")
        A, B = WB + 8 * (k & 1), XO + 8 * (k & 1)
        c = lambda r: vr(r, 4) if k else "0"
        a(f"    v_mfma_f32_16x16x32_bf16 {vr(D0,4)}, {vr(A,4)}, {vr(B,4)}, {c(D0)}")
        a(f"    v_mfma_f32_16x16x32_bf16 {vr(DS,4)}, {vr(B,4)}, {vr(B,4)}, {c(DS)}")
        a(f"    v_mfma_f32_16x16x32_bf16 {vr(D1,4)}, {vr(A+4,4)}, {vr(B,4)}, {c(D1)}")
        a(f"    v_mfma_f32_16x16x32_bf16 {vr(DS,4)}, {vr(B+4,4)}, {vr(B+4,4)}, {vr(DS,4)}")
        if k + 2 < 8:
            q1_reads(k + 2)
    S2, S1, mu, rs = v(DD + 8), v(DD + 9), v(DD + 10), v(DD + 11)
    a(f"""    v_cmp_eq_u32 vcc, 0, {vC}
    v_readlane_b32 {sT0}, {v(DD+4)}, 0
    v_readlane_b32 {sT1}, {v(DD+5)}, 1
    v_readlane_b32 {sT2}, {v(DD+6)}, 0
    v_readlane_b32 {sT3}, {v(DD+6)}, 1
    v_mov_b32 {S2}, {sT0}
    v_mov_b32 {t3}, {sT1}
    v_mov_b32 {S1}, {sT2}
    v_mov_b32 {t4}, {sT3}
    v_cndmask_b32 {S2}, {t3}, {S2}, vcc
    v_cndmask_b32 {S1}, {t4}, {S1}, vcc""")
    ln_stats(S2, S1, mu, rs)
    a(f"""    s_lshl_b32 {sT2}, {sG}, 13
    s_lshl_b32 {sT3}, {sKh}, 11
    s_add_u32 {sT2}, {sT2}, {sT3}
    s_lshr_b32 {sT3}, {sIdx}, 1
    s_lshl_b32 {sT3}, {sT3}, 7
    s_add_u32 {sT2}, {sT2}, {sT3}
    s_add_u32 {sT2}, {sT2}, {W_Q1}
    v_lshlrev_b32 {t3}, 7, {vC}
    v_lshl_add_u32 {t3}, {vKG}, 4, {t3}
    v_add_u32 {t3}, {OB + 7*2048}, {t3}
    v_lshlrev_b32 {t4}, 4, {vL}
    v_add_u32 {t1}, {OB + 7*2048}, {t4}
    v_lshrrev_b32 {t0}, 3, {vL}
    v_mul_u32_u24 {t0}, {4096 - 128}, {t0}
    v_add_u32 {t0}, {t0}, {t4}""")
    for ct, D in enumerate((D0, D1)):
        P4 = XO + 4 * ct
        for r in range(4):
            a(f"    v_mul_f32_dpp {v(DD+4+r)}, {v(D+r)}, {mu} quad_perm:[2,2,2,2] {DPP}")
        for r in range(4):
            a(f"    v_sub_f32 {v(D+r)}, {v(D+r)}, {v(DD+4+r)}")
            a(f"    v_mul_f32 {v(D+r)}, {v(D+r)}, {rs}")
        a(f"""    v_cvt_pk_bf16_f32 {v(P4)}, {v(D)}, {v(D+1)}
    v_cvt_pk_bf16_f32 {v(P4+2)}, {v(D+2)}, {v(D+3)}
    v_add_u32 {v(P4+1)}, {sXcc}, {vEp}
    v_add_u32 {v(P4+3)}, {sXcc}, {vEp}""")
    a(f"""    ds_write_b128 {t3}, {vr(XO,4)}
    ds_write_b128 {t3}, {vr(XO+4,4)} offset:64
    ds_read_b128 {vr(XO+8,4)}, {t1}
    s_mov_b64 exec, 0xffff
    s_waitcnt lgkmcnt(0)""")
    if not o["x_nopub"]:
        a(f"    buffer_store_dwordx4 {vr(XO+8,4)}, {t0}, {sWS}, {sT2} offen sc1")
    execm("-1")
    stamp(3)
    a("    s_setprio 0")
    a("    s_branch L_young3\nL_young2:")
    if o["touch"]:
        a("    s_mov_b64 exec, 1")
        groups = [[], [], []]
        if "v" in o["touch"]: groups[0].append(sV)
        if "w" in o["touch"]: groups[0].append(sWo); groups[1] += [sWg, sWu]; groups[2].append(sWd)
        if "o" in o["touch"]: groups[2].append(sOut)
        for k, grp in enumerate(groups):
            a(f"    s_cmp_eq_u32 {sW}, {4 + k}\n    s_cbranch_scc0 L_tc{k}")
            for d in grp:
                a(f"    buffer_load_dword {vDum}, off, {d}, 0")
            a(f"L_tc{k}:")
        a("    s_mov_b64 exec, -1")
    if not o["b1first"]:
        a("    s_barrier")
    a("L_young3:")
    for i in range(16):
        kload(i)
    a("    s_branch L_vloads\nL_joined:")

    def late_loads(y=None):
        r64_addr(10)
        for half in range(2):
            for m, so in enumerate((0, 4096, 32768, 36864)):
                a(f"    s_mov_b32 {sT2}, {so + half * 262144}")
                dma(sWo, T_WO + 1024 * m + (half - (o["wo_at"] == "Y" or bool(y))) * 4 * WVS, sT2)
        if o["pf_at"] == "wo":
            pf_load(y)
    def pf_load(y=None):
        t = v(TT + 7)
        if not o["l2pf"]:
            return
        a(f"""    s_mul_i32 {sT1}, {sIdx}, 3                  ; waves 1..3 of every workgroup
    s_sub_u32 {sT2}, {sW}, {5 if ((o["wo_at"] == "Y" or y) and o["pf_at"] == "wo") else 1}
    s_add_u32 {sT1}, {sT1}, {sT2}
    s_add_u32 {sT1}, {sT1}, 1
    s_cmp_lt_u32 {sT2}, 3
    s_cselect_b32 {sT1}, {sT1}, 97
    s_sub_u32 {sT1}, 96, {sT1}
    s_cmp_lt_u32 {sT1}, 64
    s_cbranch_scc0 L_pf_d{y or ''}
    s_and_b32 {sT2}, {sT1}, 31
    s_mul_i32 {sT2}, {sT2}, {16*3584}
    s_mul_i32 {sT3}, {sG}, 448
    s_add_u32 {sT2}, {sT2}, {sT3}
    v_lshrrev_b32 {t}, 2, {vL}
    v_mul_u32_u24 {t}, 3584, {t}
    v_and_b32 {vA}, 3, {vL}
    v_lshl_add_u32 {t}, {vA}, 7, {t}
    s_cmp_lt_u32 {sT1}, 32
    s_cselect_b32 s40, s16, s18
    s_cselect_b32 s41, s17, s19
    s_mov_b32 s42, 1835008
    s_branch L_pf_go{y or ''}
L_pf_d{y or ''}:
    s_sub_u32 {sT2}, {sT1}, 64
    s_lshl_b32 {sT2}, {sT2}, 13
    s_mul_i32 {sT3}, {sG}, {224*1024}
    s_add_u32 {sT2}, {sT2}, {sT3}
    v_lshlrev_b32 {t}, 7, {vL}
    s_mov_b32 s40, s20
    s_mov_b32 s41, s21
    s_cmp_lt_u32 {sT1}, 92
    s_cselect_b32 s42, 1835008, 0
L_pf_go{y or ''}:
    s_mov_b32 s43, 0x20000
    buffer_load_dword {vDum}, {t}, {sWq}, {sT2} offen {wf}""")
    def wd_load():
        a(f"    v_lshl_add_u32 {vA}, {vDma}, 10, {vHalf}")
        dma(sWd, T_WD, "0")
    nD = 0

    def wo_read():
        for e in range(2):
            for ct in range(2):
                for j in range(2):
                    a(f"    ds_read_b64_tr_b16 {vr(WB+8*e+4*ct+2*j,2)}, {(vT0, vT1)[ct]} offset:{T_WO + 1024*(2*e+j)}")

    a(f"""    s_cmp_eq_u32 {sW}, {99 if o["x_nogather"] else 1}
    s_cbranch_scc0 L_h2
    v_mov_b32 {t5}, {QL + 1028}
    ds_read_b32 {vEp}, {t5}
    s_lshr_b32 {sT2}, {sO}, 4
    s_lshl_b32 {sT2}, {sT2}, 12
    s_add_u32 {sT2}, {sT2}, {W_Q1}
    v_lshl_add_u32 {t5}, {vL}, 4, {sT2}
L_hq:""")
    for i in range(4):
        a(f"    buffer_load_dwordx4 {vr(DD+4*i,4)}, {t5}, {sWS}, 0 offen offset:{1024*i} sc1")
    a("    s_waitcnt vmcnt(0) lgkmcnt(0)")
    for r in range(DD + 1, DD + 16, 2):
        a(f"    v_sub_u32 {v(r)}, {v(r)}, {vEp}")
    a(f"""    v_max3_u32 {CHK}, {v(DD+1)}, {v(DD+3)}, {v(DD+5)}
    v_max3_u32 {CHK}, {v(DD+7)}, {v(DD+9)}, {CHK}
    v_max3_u32 {CHK}, {v(DD+11)}, {v(DD+13)}, {CHK}
    v_max_u32 {CHK}, {v(DD+15)}, {CHK}
    v_cmp_lt_u32 vcc, 15, {CHK}""")
    spin_tail("L_hq")
    a(f"""    v_cmp_ne_u32 vcc, {sXcc}, {v(DD+1)}
    v_cmp_ne_u32 s[94:95], {sXcc}, {v(DD+9)}""")
    add_bf16x8(XO, [v(DD + 2 * i) for i in range(4)], [v(DD + 8 + 2 * i) for i in range(4)])
    a(f"""    v_cmp_ne_u32 s[8:9], {sXcc}, {v(DD+5)}
    s_or_b64 s[94:95], s[94:95], vcc
    v_cmp_ne_u32 vcc, {sXcc}, {v(DD+13)}
    v_bfe_u32 {t5}, {vL}, 1, 2
    v_lshlrev_b32 {t5}, 8, {t5}
    v_bfe_u32 {t4}, {vL}, 3, 2
    v_lshl_add_u32 {t5}, {t4}, 6, {t5}
    v_lshrrev_b32 {t4}, 5, {vL}
    v_lshl_add_u32 {t5}, {t4}, 4, {t5}
    v_and_b32 {t4}, 1, {vL}
    v_lshl_add_u32 {t5}, {t4}, 3, {t5}
    v_add_u32 {t5}, {QL}, {t5}
    s_or_b64 s[94:95], s[94:95], s[8:9]
    s_or_b64 vcc, vcc, s[94:95]
    s_cselect_b32 {sT1}, 1, 3
    v_mov_b32 {v(DD+4)}, {sT1}
    ds_write_b64 {t5}, {vr(XO,2)}
    ds_write_b64 {t5}, {vr(XO+2,2)} offset:32
    v_mov_b32 {t5}, {QL + 1024}
    ds_write_b32 {t5}, {v(DD+4)}""")
    stamp(4)
    a(f"""    s_cmp_eq_u32 {sIdx}, 0
    s_cbranch_scc0 L_nolead
    s_lshl_b32 {sT1}, {sG}, 7
    s_add_u32 {sT1}, {sT1}, {W_GF}
    v_mov_b32 {v(DD)}, {vEp}
    v_mov_b32 {v(DD+1)}, {vEp}
    v_mov_b32 {v(DD+2)}, {vEp}
    v_mov_b32 {v(DD+3)}, {vEp}
    v_lshlrev_b32 {t5}, 4, {vL}
    s_mov_b64 exec, 0xff
    buffer_store_dwordx4 {vr(DD,4)}, {t5}, {sWS}, {sT1} offen sc1
    s_mov_b64 exec, -1
L_nolead:""")
    a("L_h2:")
    if o["klin"]:
        assert o["qkearly"]
        a(f"    s_cmp_lt_u32 {sW}, 4\n    s_cbranch_scc0 L_h3")
        kshuffle()
        a("L_h3:")
    a(f"""    v_lshlrev_b32 {t0}, 4, {vL}
    v_add_u32 {t0}, {QL}, {t0}
    v_mov_b32 {t2}, {QL + 1024}
    s_cmp_lt_u32 {sW}, 4
    s_cbranch_scc1 L_qf
    {"s_barrier" if o["wo_at"] == "X" else ""}
    {"s_cmp_eq_u32 " + sMode + ", 1" if o["qkearly"] else ""}
    {"s_cbranch_scc1 L_pv1b" if o["qkearly"] else ""}
L_qf:
    ds_read_b32 {t1}, {t2}
    s_waitcnt lgkmcnt(0)
    v_cmp_eq_u32 vcc, {77 if o["x_nogather"] else 0}, {t1}""")
    spin_tail("L_qf")
    if o["qkearly"]:
        tail("L_mid:")
        into(tail, kshuffle)
        tail(f"""    v_mov_b32 {t2}, {QL + 1024}
    ds_read_b32 {t1}, {t2}
    v_lshlrev_b32 {t0}, 4, {vL}
    v_add_u32 {t0}, {QL}, {t0}
    s_waitcnt lgkmcnt(0)
    v_cmp_eq_u32 vcc, 0, {t1}
    s_cbranch_vccnz L_vrest
    s_mov_b32 {sMode}, 1
    s_branch L_qf_ok""")
    a(f"""    ds_read_b128 {vr(XO,4)}, {t0}
    v_readfirstlane_b32 {sPure}, {t1}
    s_lshr_b32 {sPure}, {sPure}, 1
    s_waitcnt lgkmcnt(0)""")
    stamp(6)
    a("    s_branch L_attn")
    a(f"L_q:\n    v_xor_b32 {vA}, 32, {vTq}")
    for e in range(2):
        for ct in range(2):
            for jj in range(2):
                a(f"    ds_read_b64_tr_b16 {vr(WB+8*e+4*ct+2*jj,2)}, {(vTq, vA)[ct]} offset:{e*WVS + T_WQ + 1024*jj}")
    a(f"""    s_lshl_b32 {sT1}, {sKh}, 10
    v_add_u32 {v(TT+16)}, {sT1}, {vR4}
    v_add_u32 {v(TT+17)}, {sT1}, {vR4c}
    v_bfe_u32 {v(TT+15)}, {vL}, 2, 1
    v_lshlrev_b32 {v(TT+15)}, 10, {v(TT+15)}
    v_bfe_u32 {t0}, {vL}, 3, 2
    v_lshl_add_u32 {v(TT+15)}, {t0}, 5, {v(TT+15)}
    v_and_b32 {t0}, 3, {vL}
    v_lshl_add_u32 {v(TT+15)}, {t0}, 3, {v(TT+15)}
    v_lshrrev_b32 {t0}, 5, {vL}
    v_lshl_add_u32 {v(TT+15)}, {t0}, 2, {v(TT+15)}
    s_lshl_b32 {sT2}, {sW}, 7
    s_add_u32 {sT2}, {sT2}, {XB}
    v_add_u32 {v(TT+15)}, {sT2}, {v(TT+15)}
    s_lshr_b32 {sT1}, {sW}, 2
    s_mov_b32 {sL}, {LSTR}
    s_mov_b32 {sLO}, {OSTR}""")
    if "d" in o["hint"]:
        a(f"    s_cmp_eq_u32 {sW}, 0\n    s_cbranch_scc0 L_q0")
        hint_wait("L_hd")
        a("L_q0:")
    ackwait()
    a("    s_barrier")
    stamp(15)
    gather_x(aZ, "0", "L_pd", lambda: stamp(17), None, v(TT + 15))
    if not o["inl"]:
        a(f"    s_cmp_eq_u32 {sT1}, {sKh}\n    s_cbranch_scc0 L_ql")
    a(f"""    s_waitcnt lgkmcnt(1)
    v_mfma_f32_16x16x32_bf16 {vr(DD,4)}, {vr(WB,4)}, {vr(XO,4)}, 0
    v_mfma_f32_16x16x32_bf16 {vr(DD+4,4)}, {vr(WB+4,4)}, {vr(XO,4)}, 0
    v_mfma_f32_16x16x32_bf16 {vr(DD+8,4)}, {vr(XO,4)}, {vr(XO,4)}, 0
    s_waitcnt lgkmcnt(0)
    v_mfma_f32_16x16x32_bf16 {vr(DD,4)}, {vr(WB+8,4)}, {vr(XO+4,4)}, {vr(DD,4)}
    v_mfma_f32_16x16x32_bf16 {vr(DD+4,4)}, {vr(WB+12,4)}, {vr(XO+4,4)}, {vr(DD+4,4)}
    v_mfma_f32_16x16x32_bf16 {vr(DD+8,4)}, {vr(XO+4,4)}, {vr(XO+4,4)}, {vr(DD+8,4)}""")
    if not o["inl"]:
      tail(f"""L_ql:
    s_waitcnt lgkmcnt(1)
    v_mfma_f32_16x16x32_bf16 {vr(DD+8,4)}, {vr(XO,4)}, {vr(XO,4)}, 0
    s_waitcnt lgkmcnt(0)
    v_mfma_f32_16x16x32_bf16 {vr(DD+8,4)}, {vr(XO+4,4)}, {vr(XO+4,4)}, {vr(DD+8,4)}
    s_nop 6
    s_branch L_qs""")
    two_tile_write(RQ)
    a("L_qs:")
    stats_write(RQ)
    a(f"    s_cmp_eq_u32 {sW}, 0\n    s_cbranch_scc0 L_q2")
    S = two_tile_reduce(RQ, 4, v(TT + 16), v(TT + 17))
    pack16(DD + 8, S, v(DD + 6))
    execm(m16)
    local_store(f"buffer_store_dwordx4 {vr(DD+8,4)}, {pQ}, {sWS}, 0 offen", "L_sq")
    execm("-1")
    a(f"    s_cmp_eq_u32 {sG}, 0\n    s_cbranch_scc1 L_res2\nL_q2:")
    tail(f"""L_res2:
    ds_read_u16 {vRes}, {aRes}
    s_waitcnt lgkmcnt(0)
    v_lshlrev_b32 {vRes}, 16, {vRes}
    s_branch L_q2""")
    if o["qbar"]:
        a("    s_barrier")
    stamp(18)
    poll([(f"buffer_load_dwordx4 {vr(DD+4*i,4)}, {aQ2}, {sWS}, 0 offen offset:{1024*i} sc1", [v(DD + 4 * i + k) for k in range(4)]) for i in range(2)], "L_pq",
         after={0: lambda: [a(f"    v_lshlrev_b32 {v(TT+2*i)}, 16, {v(DD+i)}\n    v_and_b32 {v(TT+2*i+1)}, 0xffff0000, {v(DD+i)}") for i in range(4)]} if o["spec"] else None)
    stamp(19)
    if o["spec"]:
        for i in range(4):
            y = DD + 8 + 2 * (i & 1)
            a(f"""    v_lshlrev_b32 {v(y)}, 16, {v(DD+4+i)}
    v_and_b32 {v(y+1)}, 0xffff0000, {v(DD+4+i)}
    v_pk_add_f32 {vr(y,2)}, {vr(y,2)}, {vr(TT+2*i,2)}
    v_cvt_pk_bf16_f32 {v(XO+i)}, {v(y)}, {v(y+1)}""")
    else:
        add_bf16x8(XO, [v(DD + i) for i in range(4)], [v(DD + 4 + i) for i in range(4)])
    a("L_attn:")
    s = [v(TT + i) for i in range(4)]
    def qk(u, rho):
        t = (u + rho) & 3
        c = vr(DD + 4 * u, 4) if rho else "0"
        a(f"    v_mfma_f32_16x16x32_bf16 {vr(DD+4*u,4)}, {vr(KB+16*u+4*t,4)}, {vr(XO+4*rho,4)}, {c}")
    def rot(rho):
        for i in range(4):
            a(f"    v_mov_b32_dpp {v(XO+4*rho+i)}, {v(XO+i)} row_ror:{16-4*rho} {DPP}")
    def merge(u):
        for r in range(4):
            a(f"    v_mov_b32_dpp {s[r]}, {v(DD+4*u+r)} quad_perm:[0,1,2,3] row_mask:0xf bank_mask:{1<<u}")
    for u in (1, 2, 3):
        qk(u, 0); rot(u)
    for u in (1, 2, 3):
        for rho in (1, 2, 3):
            qk(u, rho)
    qk(0, 0); qk(0, 1); merge(1); qk(0, 2); merge(2); qk(0, 3); merge(3); merge(0)
    m, lsum, tx = v(TT + 4), v(TT + 5), v(TT + 6)
    a(f"""    v_max3_f32 {m}, {s[0]}, {s[1]}, {s[2]}
    v_max_f32 {m}, {m}, {s[3]}
    v_max_f32_dpp {m}, {m}, {m} row_ror:4 {DPP}
    v_max_f32_dpp {m}, {m}, {m} row_ror:8 {DPP}
    v_mov_b32 {tx}, {m}
    v_permlane16_swap_b32 {m}, {tx}
    v_max_f32 {m}, {m}, {tx}
    v_mov_b32 {tx}, {m}
    v_permlane32_swap_b32 {m}, {tx}
    v_max_f32 {m}, {m}, {tx}
    v_mul_f32 {m}, {m}, {vScale}""")
    for r in range(4):
        a(f"    v_fma_f32 {s[r]}, {s[r]}, {vScale}, -{m}")
    for r in range(4):
        a(f"    v_exp_f32 {s[r]}, {s[r]}")
    P = TT + 8
    a(f"""    s_cmp_eq_u32 {sL}, 0
    v_cvt_pk_bf16_f32 {v(P)}, {s[0]}, {s[1]}
    v_cvt_pk_bf16_f32 {v(P+1)}, {s[2]}, {s[3]}
    s_cbranch_scc1 L_pv1""")
    aE, aOd = DD, DD + 4
    def pv(n, out):
        c1 = vr(aE, 4) if n else "0"
        c2 = vr(aOd, 4) if n else "0"
        out(f"    v_mfma_f32_4x4x4_16b_bf16 {vr(aE,4)}, {vr(P,2)}, {vr(VB+4*n,2)}, {c1} cbsz:4 abid:{n}")
        out(f"    v_mfma_f32_4x4x4_16b_bf16 {vr(aOd,4)}, {vr(P,2)}, {vr(VB+4*n+2,2)}, {c2} cbsz:4 abid:{n}")
    lred = [f"v_pk_add_f32 {vr(TT,2)}, {vr(TT,2)}, {vr(TT+2,2)}",
            f"v_add_f32 {lsum}, {s[0]}, {s[1]}",
            f"v_add_f32_dpp {lsum}, {lsum}, {lsum} row_ror:4 {DPP}",
            f"v_add_f32_dpp {lsum}, {lsum}, {lsum} row_ror:8 {DPP}",
            f"v_mov_b32 {tx}, {lsum}",
            f"v_permlane16_swap_b32 {lsum}, {tx}",
            f"v_add_f32 {lsum}, {lsum}, {tx}",
            f"v_mov_b32 {tx}, {lsum}",
            f"v_permlane32_swap_b32 {lsum}, {tx}",
            f"v_add_f32 {lsum}, {lsum}, {tx}",
            f"ds_write_b64 {vMLw}, {vr(TT+4,2)}"]
    stampL(7)
    for n in range(16):
        pv(n, a)
        if n < 15:
            a("    " + (lred[n] if n < len(lred) else "s_nop 0"))
    a("    s_nop 2\nL_pv3:")
    tail("L_pv1:")
    for l in lred:
        tail("    " + l)
    if o["qkearly"]:
        tail(f"    s_cmp_eq_u32 {sMode}, 1\n    s_cbranch_scc1 L_vrest\nL_pv1b:")
    def perms(n):
        b = VB + 4 * n
        tail(f"    s_waitcnt vmcnt({min(63, 60 - 4*n)})")
        tail(f"    v_perm_b32 {v(b)}, {v(b+4)}, {v(b+2)}, {sPlo}")
        tail(f"    v_perm_b32 {v(b+1)}, {v(b+5)}, {v(b+3)}, {sPlo}")
        tail(f"    v_perm_b32 {v(b+2)}, {v(b+4)}, {v(b+2)}, {sPhi}")
        tail(f"    v_perm_b32 {v(b+3)}, {v(b+5)}, {v(b+3)}, {sPhi}")
    perms(0)
    for n in range(16):
        if n < 15:
            perms(n + 1)
        pv(n, tail)
    tail("    s_nop 2\n    s_branch L_pv3")
    stampL(8)
    if o["x_stop"] == 8:
        a(f"    s_cmp_lt_u32 {sW}, 4\n    s_cbranch_scc0 L_done\n    {'s_barrier' if o['wo_at'] == 'X' else ''}\n    s_branch L_done")
    a(f"    s_or_b32 {sT1}, {sL}, {sW}\n    s_cmp_lt_u32 {sT1}, 4")
    for h in range(4):
        ad = vOw if h < 2 else vOw2
        a(f"    ds_write2_b32 {ad}, {v(aE+h)}, {v(aOd+h)} offset0:{(h&1)*128} offset1:{(h&1)*128+1}")
    a(f"""    s_cbranch_scc1 L_late
L_nolate:
    s_cmp_lt_u32 {sW}, 4
    s_waitcnt lgkmcnt(0)
    s_barrier
    s_cbranch_scc0 L_yw
    ds_read_b64 {vr(TT,2)}, {vMLr}""")
    main = a
    a = tail
    a(f"L_late:\n    v_mov_b32 {t5}, {QL + 1028}\n    ds_read_b32 {vEp}, {t5}")
    if o["wo_at"] == "X":
        a("    s_barrier")
        stamp(1)
        if o["xy"]:
            a(f"    s_cmp_lt_u32 {sXcc}, {o['xy']}\n    s_cbranch_scc1 L_xy1")
        late_loads()
        if o["xy"]:
            a("L_xy1:")
    a(f"""    s_cmp_eq_u32 {sG}, 0
    s_cbranch_scc0 L_nolate
    ds_read_u16 {vRes}, {aRes}
    s_waitcnt lgkmcnt(0)
    v_lshlrev_b32 {vRes}, 16, {vRes}
    s_branch L_nolate""")
    a("L_yw:")
    if o["xy"]:
        a(f"    s_cmp_eq_u32 {sL}, 0\n    s_cbranch_scc0 L_wo\n    s_cmp_lt_u32 {sXcc}, {o['xy']}\n    s_cbranch_scc0 L_xy2")
        late_loads("y")
        a("L_xy2:")
    if o["wo_at"] == "Y":
        a(f"    s_cmp_eq_u32 {sL}, 0\n    s_cbranch_scc0 L_wo")
        stamp(1)
        late_loads()
    a(f"""    s_or_b32 {sT1}, {sL}, 7
    s_cmp_eq_u32 {sT1}, {sW}
    s_cbranch_scc0 L_wo""")
    slot_addrs()
    c0 = TT + 8
    for i in range(4):
        a(f"    v_mov_b32 {v(c0+i)}, -1")
    a(f"""    s_mov_b32 exec_lo, 0
    s_mov_b32 exec_hi, 0xff00ff00
    buffer_store_dwordx4 {vr(c0,4)}, {cF}, {sWS}, 0 offen sc1
    s_cmp_eq_u32 {sPure}, {1 if (o["clr2"] == "plain" and not o["force_slow"]) else 2}""")
    for k, fl in enumerate(("sc1", "")):
        a(f"""    {"s_cbranch_scc1 L_mk1" if k == 0 else "L_mk1:"}
    s_mov_b32 exec_lo, 0xff00ff00
    s_mov_b32 exec_hi, 0
    buffer_store_dwordx4 {vr(c0,4)}, {cF}, {sWS}, 0 offen {fl}
    s_mov_b64 exec, -1
    buffer_store_dwordx4 {vr(c0,4)}, {cO}, {sWS}, {sT3} offen {fl}
    buffer_store_dwordx4 {vr(c0,4)}, {cQ}, {sWS}, 0 offen {fl}
    {"s_branch L_mk2" if k == 0 else "L_mk2:"}""")
    if o["hint"]:
        a(f"""    s_lshl_b32 {sT1}, {sG}, 7
    s_add_u32 {sT1}, {sT1}, {W_HT}
    v_lshlrev_b32 {t0}, 10, {vL}
    s_mov_b64 exec, 15
    buffer_load_dword {vDum}, {t0}, {sWS}, {sT1} offen sc1
    s_mov_b64 exec, -1""")
    a(f"""    v_and_b32 {t0}, 7, {vL}
    v_lshlrev_b32 {t0}, 7, {t0}
    v_add_u32 {t0}, {W_GF + 4}, {t0}
L_gf:
    buffer_load_dword {t1}, {t0}, {sWS}, 0 offen sc1
    s_waitcnt vmcnt(0)
    v_cmp_ne_u32 vcc, {t1}, {vEp}
    s_cbranch_vccz L_wo
    s_sub_u32 {sCnt}, {sCnt}, 1
    s_cbranch_scc0 L_gf
    s_mov_b32 {sCnt}, 0
    s_branch L_wo""")
    a = main
    for i in range(8):
        a(f"    ds_read_b64 {vr(XO+2*i,2)}, {vOr} offset:{i*2048}")
    mm, ll, M, Lr, f = v(TT), v(TT + 1), v(TT + 2), v(TT + 3), v(TT + 4)
    a(f"""    s_waitcnt lgkmcnt(8)
    v_max_f32_dpp {M}, {mm}, {mm} row_ror:4 {DPP}
    v_max_f32_dpp {M}, {M}, {M} row_ror:2 {DPP}
    v_max_f32_dpp {M}, {M}, {M} row_ror:1 {DPP}
    v_sub_f32 {f}, {mm}, {M}
    v_exp_f32 {f}, {f}
    v_mul_f32 {Lr}, {f}, {ll}""")
    o0, o1 = v(TT + 5), v(TT + 6)
    lr2 = [f"v_add_f32_dpp {Lr}, {Lr}, {Lr} row_ror:4 {DPP}",
           f"v_add_f32_dpp {Lr}, {Lr}, {Lr} row_ror:2 {DPP}",
           f"v_add_f32_dpp {Lr}, {Lr}, {Lr} row_ror:1 {DPP}"]
    for i in range(8):
        op = "v_mul_f32_dpp" if i == 0 else "v_fmac_f32_dpp"
        if i in (0, 4):
            a(f"    s_waitcnt lgkmcnt({4 - i})")
        a(f"    {op} {o0}, {f}, {v(XO+2*i)} row_newbcast:{i} {DPP}")
        a(f"    {op} {o1}, {f}, {v(XO+2*i+1)} row_newbcast:{i} {DPP}")
        if i < 3:
            a("    " + lr2[i])
    a(f"    v_cvt_pk_bf16_f32 {o0}, {o0}, {o1}")
    local_store(f"buffer_store_dword {o0}, {pO}, {sWS}, {sLO} offen\n    s_mov_b64 exec, 1\n    buffer_store_dwordx2 {vr(TT+2,2)}, {pML}, {sWS}, {sL} offen", "L_so")
    execm("-1")
    if o["inl"]:
        a("L_wo:\n    s_barrier")
    else:
        a(f"L_wo:\n    s_cmp_eq_u32 {sL}, 0\n    s_cbranch_scc1 L_wo0\nL_wo1:\n    s_barrier")
    aloads = [(f"buffer_load_dwordx2 {vr(TT,2)}, {aML}, {sWS}, {sL} offen sc1", [v(TT), v(TT + 1)]),
              (f"buffer_load_dwordx4 {vr(XO,4)}, {aO}, {sWS}, {sLO} offen sc1", [v(XO + i) for i in range(4)]),
              (f"buffer_load_dwordx4 {vr(XO+4,4)}, {aO}, {sWS}, {sLO} offen offset:1024 sc1", [v(XO + 4 + i) for i in range(4)])]
    if o["inl"]:
        pass
    elif o["aover"]:
        tail("L_wo0:\n    s_barrier")
        if o["pf_at"] == "poll":
            into(tail, poll, aloads, "L_pa0", pf_load, None, 1, "L_pa1")
        into(tail, poll, aloads, "L_pa1")
        tail("    s_barrier")
        into(tail, wo_read)
        tail("    s_branch L_pa_ok")
    elif o["pf_at"] == "poll":
        tail("L_wo0:\n    s_waitcnt vmcnt(0)\n    s_barrier")
        into(tail, poll, aloads, "L_pa0", lambda: (pf_load(), wo_read()), None, 1, "L_pa")
    else:
        tail("L_wo0:\n    s_waitcnt vmcnt(0)\n    s_branch L_wo1")
    stampL(9)
    mm, ll, M, e_, Lt = v(TT), v(TT + 1), v(TT + 2), v(TT + 3), v(TT + 4)
    def wo_fac():
        a(f"""    v_max_f32_dpp {M}, {mm}, {mm} row_ror:8 {DPP}
    v_max_f32_dpp {M}, {M}, {M} row_ror:4 {DPP}
    v_max_f32_dpp {M}, {M}, {M} row_ror:2 {DPP}
    v_max_f32_dpp {M}, {M}, {M} row_ror:1 {DPP}
    v_sub_f32 {e_}, {mm}, {M}
    v_exp_f32 {e_}, {e_}
    v_mul_f32 {Lt}, {e_}, {ll}""")
    poll(aloads, "L_pa", wo_read, after={0: wo_fac} if o["spec"] else None)
    if o["inl"]:
        a(f"    s_cmp_eq_u32 {sL}, 0\n    s_cbranch_scc0 L_pa2\n    s_barrier")
        wo_read()
        a("L_pa2:")
    stampL(10)
    if o["pf_at"] == "afterA" or o["wd_at"] == "afterA":
        a(f"    s_cmp_eq_u32 {sL}, 0\n    s_cbranch_scc1 L_wo2a\nL_wo2:")
        tail("L_wo2a:")
        if o["pf_at"] == "afterA":
            into(tail, pf_load)
        if o["wd_at"] == "afterA":
            into(tail, wd_load)
        tail("    s_branch L_wo2")
    z0, z1 = v(TT + 5), v(TT + 6)
    if o["spec"]:
        a(f"""    s_waitcnt lgkmcnt(0)
    v_mfma_f32_16x16x32_bf16 {vr(DD,4)}, {vr(XO,4)}, {vr(WB,4)}, 0
    v_add_f32_dpp {Lt}, {Lt}, {Lt} row_ror:8 {DPP}
    v_mfma_f32_16x16x32_bf16 {vr(DD,4)}, {vr(XO+4,4)}, {vr(WB+8,4)}, {vr(DD,4)}
    v_mfma_f32_16x16x32_bf16 {vr(DD+4,4)}, {vr(XO,4)}, {vr(WB+4,4)}, 0
    v_add_f32_dpp {Lt}, {Lt}, {Lt} row_ror:4 {DPP}
    v_mfma_f32_16x16x32_bf16 {vr(DD+4,4)}, {vr(XO+4,4)}, {vr(WB+12,4)}, {vr(DD+4,4)}
    s_cmp_eq_u32 {sW}, 0
    v_add_f32_dpp {Lt}, {Lt}, {Lt} row_ror:2 {DPP}
    s_nop 1
    v_add_f32_dpp {Lt}, {Lt}, {Lt} row_ror:1 {DPP}
    v_rcp_f32 {Lt}, {Lt}""")
        for z, D in ((z0, DD), (z1, DD + 4)):
            for r in range(4):
                op = "v_mul_f32_dpp" if r == 0 else "v_fmac_f32_dpp"
                a(f"    {op} {z}, {e_}, {v(D+r)} row_newbcast:{r} {DPP}")
        a(f"""    v_permlane32_swap_b32 {z0}, {z1}
    v_add_f32 {z0}, {z0}, {z1}
    v_mul_f32 {z1}, {z0}, {Lt}
    v_mul_f32 {z0}, {z0}, {Lt}
    v_permlane16_swap_b32 {z0}, {z1}
    v_add_f32 {z0}, {z0}, {z1}
    ds_write_b32 {vW4}, {z0} offset:{RW - RQ}
    s_waitcnt lgkmcnt(0)
    s_barrier
    s_cbranch_scc0 L_roles""")
    else:
        mm, ll, M, e_, Lt = v(TT), v(TT + 1), v(TT + 2), v(TT + 3), v(TT + 4)
        a(f"""    v_max_f32_dpp {M}, {mm}, {mm} row_ror:8 {DPP}
    s_waitcnt lgkmcnt(0)
    v_mfma_f32_16x16x32_bf16 {vr(DD,4)}, {vr(XO,4)}, {vr(WB,4)}, 0
    v_max_f32_dpp {M}, {M}, {M} row_ror:4 {DPP}
    v_mfma_f32_16x16x32_bf16 {vr(DD+4,4)}, {vr(XO,4)}, {vr(WB+4,4)}, 0
    v_mfma_f32_16x16x32_bf16 {vr(DD,4)}, {vr(XO+4,4)}, {vr(WB+8,4)}, {vr(DD,4)}
    v_max_f32_dpp {M}, {M}, {M} row_ror:2 {DPP}
    v_mfma_f32_16x16x32_bf16 {vr(DD+4,4)}, {vr(XO+4,4)}, {vr(WB+12,4)}, {vr(DD+4,4)}
    s_nop 0
    v_max_f32_dpp {M}, {M}, {M} row_ror:1 {DPP}
    v_sub_f32 {e_}, {mm}, {M}
    v_exp_f32 {e_}, {e_}
    v_mul_f32 {Lt}, {e_}, {ll}""")
        z0, z1 = v(TT + 5), v(TT + 6)
        for r in range(4):
            op = "v_mul_f32_dpp" if r == 0 else "v_fmac_f32_dpp"
            a(f"    {op} {z0}, {e_}, {v(DD+r)} row_newbcast:{r} {DPP}")
            a(f"    {op} {z1}, {e_}, {v(DD+4+r)} row_newbcast:{r} {DPP}")
            a(f"    v_add_f32_dpp {Lt}, {Lt}, {Lt} row_ror:{8 >> r} {DPP}")
        a(f"""    s_cmp_eq_u32 {sW}, 0
    v_permlane32_swap_b32 {z0}, {z1}
    v_rcp_f32 {Lt}, {Lt}
    v_add_f32 {z0}, {z0}, {z1}
    v_mov_b32 {z1}, {z0}
    v_permlane16_swap_b32 {z0}, {z1}
    v_add_f32 {z0}, {z0}, {z1}
    v_mul_f32 {z0}, {z0}, {Lt}
    ds_write_b32 {vW4}, {z0} offset:{RW - RQ}
    s_waitcnt lgkmcnt(0)
    s_barrier
    s_cbranch_scc0 L_roles""")
    red8(vR4, (RW - RQ) // 256, TT)
    sum8(v(TT + 8), TT, extra=vRes)
    quad4(TT + 8)
    execm(mY)
    a(f"    buffer_store_dwordx4 {vr(TT+8,4)}, {pY}, {sWS}, {sL} offen sc1")
    if "b" in o["hint"]:
        execm("1")
        hint_post(0)
    execm("-1")
    a(f"""L_roles:
    s_cmp_lt_u32 {sIdx}, 14
    s_cbranch_scc0 L_nogu""")
    tail("L_nogu:")
    if o["wd_at"] == "afterY":
        tail(f"    s_cmp_eq_u32 {sL}, 0\n    s_cbranch_scc0 L_dn")
        into(tail, wd_load)
    if o["clr2"] == "warm2":
        tail(f"""    s_cmp_eq_u32 {sW}, 7
    s_cbranch_scc0 L_nw2""")
        into(tail, slot_addrs)
        for k in range(2):
            tail(f"""    s_mov_b32 exec_lo, {"0x11111111" if o["w64"] else "0x01010101"}
    s_mov_b32 exec_hi, {"0x11111111" if o["w64"] else "0x01010101"}
    buffer_load_dword {vDum}, {cO}, {sWS}, {sT3} offen sc1
    s_mov_b64 exec, {"17" if o["w64"] else "1"}
    buffer_load_dword {vDum}, {cQ}, {sWS}, 0 offen sc1
    s_mov_b32 exec_lo, {"0x11001100" if o["w64"] else "0x01000100"}
    buffer_load_dword {vDum}, {cF}, {sWS}, 0 offen sc1
    s_mov_b64 exec, -1""")
            if k == 0:
                tail(f"""    s_cmp_lt_u32 {sIdx}, 28
    s_cbranch_scc0 L_dn
    v_subrev_u32 {cO}, {14*1024}, {cO}
    v_subrev_u32 {cQ}, {14*128}, {cQ}
    v_subrev_u32 {cF}, {14*128}, {cF}""")
        tail("    s_branch L_dn\nL_nw2:")
    tail(f"""    s_xor_b32 {sT1}, s2, 255
    s_or_b32 {sT1}, {sT1}, {sL}
    s_or_b32 {sT1}, {sT1}, {sW}
    s_cbranch_scc1 L_dn
    ; every workgroup has read the epoch word by now: leave this launch's tag for the next one
    v_mov_b32 {t5}, {QL + 1028}
    ds_read_b32 {v(DD)}, {t5}
    v_lshlrev_b32 {t5}, 4, {vL}
    s_waitcnt lgkmcnt(0)
    v_mov_b32 {v(DD+1)}, {v(DD)}
    v_mov_b32 {v(DD+2)}, {v(DD)}
    v_mov_b32 {v(DD+3)}, {v(DD)}
    s_mov_b64 exec, 0xff
    buffer_store_dwordx4 {vr(DD,4)}, {t5}, {sWS}, 0 offen sc1
    s_mov_b64 exec, -1""")
    tail("    s_branch L_dn")
    a(f"    s_cmp_eq_u32 {sL}, 0\n    s_cbranch_scc1 L_gu0")
    tail(f"""L_gu0:
    v_mul_u32_u24 {vA}, 3584, {vDma}
    v_add_u32 {vA}, {vA}, {vHalf}
    s_mov_b32 {sT1}, {32*3584}""")
    for srdn, off, so in ((sWg, T_FF, "0"), (sWg, T_FF + 1024, sT1), (sWu, T_FF + 2048, "0"), (sWu, T_FF + 3072, sT1)):
        into(tail, dma, srdn, off, so)
    wd_here = o["wd_at"] == "afterY" and not o["wdb"]
    if wd_here:
        into(tail, wd_load)
    if o["ack"]:
        tail(f"    s_waitcnt vmcnt({4 + wd_here})")
    tail("    s_branch L_gu1")
    ackwait()
    a("L_gu1:")
    if "b" in o["hint"]:
        a(f"    s_cmp_eq_u32 {sW}, 0\n    s_cbranch_scc0 L_gu2")
        hint_wait("L_hb")
        a("L_gu2:")
    a("    s_barrier")
    stampL(11)
    def gu_mid():
        for i in range(4):
            tr_read(WB + 4 * i, T_FF + 1024 * i)
    def gu_got():
        stampL(12)
    gather_x(aY, sL, "L_pb", gu_got, gu_mid)
    if o["wd_at"] == "afterY" and o["wdb"] and o["inl"]:
        wd_load()
    elif o["wd_at"] == "afterY" and o["wdb"]:
        a(f"    s_cmp_eq_u32 {sL}, 0\n    s_cbranch_scc1 L_wdb\nL_wdb1:")
        tail("L_wdb:")
        into(tail, wd_load)
        tail("    s_branch L_wdb1")
    a(f"""    s_waitcnt lgkmcnt(1)
    v_mfma_f32_16x16x32_bf16 {vr(DD,4)}, {vr(WB,4)}, {vr(XO,4)}, 0
    v_mfma_f32_16x16x32_bf16 {vr(DD+4,4)}, {vr(WB+8,4)}, {vr(XO,4)}, 0
    v_mfma_f32_16x16x32_bf16 {vr(DD+8,4)}, {vr(XO,4)}, {vr(XO,4)}, 0
    s_waitcnt lgkmcnt(0)
    v_mfma_f32_16x16x32_bf16 {vr(DD,4)}, {vr(WB+4,4)}, {vr(XO+4,4)}, {vr(DD,4)}
    v_mfma_f32_16x16x32_bf16 {vr(DD+4,4)}, {vr(WB+12,4)}, {vr(XO+4,4)}, {vr(DD+4,4)}
    v_mfma_f32_16x16x32_bf16 {vr(DD+8,4)}, {vr(XO+4,4)}, {vr(XO+4,4)}, {vr(DD+8,4)}
    s_add_u32 {sT1}, {sL}, {W_H}
    s_cmp_eq_u32 {sW}, 0""")
    two_tile_write(RG)
    stats_write(RG)
    a("    s_cbranch_scc0 L_dn")
    S = two_tile_reduce(RG, 8, vR4, vR4c)
    U = v(DD + 6)
    a(f"""    v_mov_b32 {U}, {S}
    v_permlane32_swap_b32 {S}, {U}
    v_max_f32 {S}, 0, {S}
    v_mul_f32 {S}, {S}, {U}""")
    pack16(DD + 8, S, U)
    execm(m8)
    local_store(f"buffer_store_dwordx4 {vr(DD+8,4)}, {pS}, {sWS}, {sT1} offen", "L_sh")
    execm("-1")
    stampL(13)
    a(f"""L_dn:
    s_cmp_eq_u32 {sW}, 7
    s_cbranch_scc1 L_dn7
    s_or_b32 {sT1}, {sW}, {sG}
    s_cmp_eq_u32 {sT1}, 0
    s_cbranch_scc1 L_x1
L_dn0:""")
    a = tail
    a("L_dn7:")
    if o["clr2"] == "warm":
        a(f"""    s_cmp_eq_u32 {sL}, 0
    s_cbranch_scc0 L_dn1
    s_mov_b32 {sT3}, {OSTR}
    s_mov_b64 exec, {m16}
    buffer_load_dword {vDum}, {cO}, {sWS}, {sT3} offen sc1
    s_mov_b64 exec, 1
    buffer_load_dword {vDum}, {cQ}, {sWS}, 0 offen sc1
    s_mov_b32 exec_lo, 0x01000100
    buffer_load_dword {vDum}, {cF}, {sWS}, 0 offen sc1
    s_mov_b64 exec, -1""")
    a("    s_branch L_dn1")
    a("L_x1:\n    s_waitcnt vmcnt(0)")
    sum_cols(aX1, sL, "L_pr", vX1)
    a(f"""    v_cvt_pk_bf16_f32 {vX1}, {vX1}, {vX1}
    v_and_b32 {vX1}, 0xffff0000, {vX1}
    s_branch L_dn0""")
    a = main
    a("    s_waitcnt vmcnt(0)")
    tr_read(WB, T_WD)
    execm(mC2)
    poll([(f"buffer_load_dwordx4 {vr(XO,4)}, {aH}, {sWS}, {sL} offen sc1", [v(XO + i) for i in range(4)])], "L_pc2")
    execm("-1")
    stampL(14)
    a(f"""    s_waitcnt lgkmcnt(0)
    v_mfma_f32_16x16x32_bf16 {vr(DD,4)}, {vr(WB,4)}, {vr(XO,4)}, 0
    ds_write_b128 {vWd}, {vr(DD,4)} offset:{RD - RQ}
    s_waitcnt lgkmcnt(0)
L_dn1:
    s_cmp_eq_u32 {sW}, 0
    s_barrier
    s_cbranch_scc0 L_dn2""")
    red8(vR4, (RD - RQ) // 256, TT)
    sum8(v(TT + 8), TT, extra=vX1)
    quad4(TT + 8)
    execm(mZ)
    a(f"    buffer_store_dwordx4 {vr(TT+8,4)}, {pZ}, {sWS}, {sL} offen sc1")
    if "d" in o["hint"] or "f" in o["hint"]:
        execm("1")
        hint_post(1)
    execm("-1")
    a(f"L_dn2:\n    s_cmp_eq_u32 {sL}, 0\n    s_cbranch_scc1 L_q")
    a(f"""    s_and_b32 {sT1}, {sIdx}, 7
    s_xor_b32 {sT1}, {sT1}, {sG}
    s_or_b32 {sT1}, {sT1}, {sW}
    s_cbranch_scc1 L_done""")
    if "f" in o["hint"]:
        hint_wait("L_hf")
    ackwait()
    stamp(31)
    sum_cols(aFin, sL, "L_pf", v(DD))
    if o["x_pad"] == "loop":
        a(f"    s_mov_b32 {sT1}, 0\nL_pad:")
        for i in range(62):
            a(f"    v_add3_u32 {v(TT)}, {v(TT)}, {v(TT+1)}, {v(TT+2)}")
        a(f"    s_add_u32 {sT1}, {sT1}, 1\n    s_cmp_lt_u32 {sT1}, 16\n    s_cbranch_scc1 L_pad")
    if o["x_pad"] == "line":
        for i in range(1024):
            a(f"    v_add3_u32 {v(TT)}, {v(TT)}, {v(TT+1)}, {v(TT+2)}")
    if o["x_pad"] == "far":
        a("    s_branch L_far\nL_farb:")
    if o["bias"]:
        a(f"    v_add_f32 {v(DD)}, {f32(o['bias'])}, {v(DD)}")
    pack16(DD + 4, v(DD), v(DD + 1))
    execm(m8)
    a(f"    buffer_store_dwordx4 {vr(DD+4,4)}, {pOut}, {sOut}, 0 offen")
    stamp(20)
    a("L_done:")
    if o["diag"]:
        execm("-1")
        stamp(21)
        a(f"""    s_waitcnt lgkmcnt(0)
    v_writelane_b32 {vStamp}, s98, 21
    v_writelane_b32 {vStamp}, {sPure}, 32
    v_writelane_b32 {vStamp}, {sCnt}, 33
    s_lshl_b32 {sT1}, s2, 3
    s_add_u32 {sT1}, {sT1}, {sW}
    s_lshl_b32 {sT1}, {sT1}, 8
    s_add_u32 {sT1}, {sT1}, {W_DIAG}
    buffer_store_dword {vStamp}, {aV}, {sWS}, {sT1} offen""")
        if o["x_dbg"]:
            a(f"""    s_mov_b32 s40, s24
    s_mov_b32 s41, s25
    s_mov_b32 s42, 256
    s_mov_b32 s43, 0x20000
    v_readlane_b32 {sT1}, {vStamp}, 0
    s_not_b32 {sT2}, {sT1}
    v_mov_b32 {v(TT)}, 0
    v_writelane_b32 {v(TT)}, {sT2}, 0""")
            for n, k in enumerate(o["x_dbg"]):
                a(f"    v_readlane_b32 {sT1}, {vStamp}, {k}\n    s_nop 3\n    v_writelane_b32 {v(TT)}, {sT1}, {n+1}")
            a(f"    s_mov_b64 exec, 0xffff\n    buffer_atomic_umax {v(TT)}, {aV}, s[40:43], 0 offen")
    a("L_end:\n    s_endpgm")
    a(tail.text().rstrip("\n"))
    a(tail2.text().rstrip("\n"))
    a("L_codeend:")
    if o["x_pad"] == "far":
        a("    s_endpgm\nL_far:")
        for i in range(1024):
            a(f"    v_add3_u32 {v(TT)}, {v(TT)}, {v(TT+1)}, {v(TT+2)}")
        a("    s_branch L_farb")
    body, nops = hazard.fix(a.text())
    return body


HEAD = open("interleave_layers__gqa_block_cached__glu_gated_reglu__decode.s.ref").read().split("; Override")[0]

DESC = """;
; One persistent launch: 256 workgroups (one per CU) x 8 waves. Workgroup id = 8*idx + g, idx = 16*b + s.
; Per layer: q (32 columns x half of the rows per workgroup, two partial sums) -> scores, true max per 64 keys,
;   P V -> partial O, m, l -> output projection with the exact split-softmax weights (32 columns per workgroup)
;   -> Y partials over g -> gate / up (14 workgroups per group, 16 hidden columns each) -> h
; Hand-offs go through d_ws. Every slot is first marked with all-ones words by this launch; a reader repeats its
;   loads until no word carries the mark. The first q pieces and the per-group flags carry a tag derived from a word
;   found in d_ws (it only tells this launch's words from an earlier launch's). Stores are write-through (sc1) except
;   between workgroups that have all reported the same XCC id, where a plain store reaches the shared L2.
"""

def write(path, **kw):
    body = gen(**kw)
    txt = kernel_file(NAME, body, 256, 512, LDS_BYTES, vgpr=256, accum=256, sgpr=102, comment=HEAD + DESC)
    open(path, "w").write(txt)
    build(path, NAME)
    return path

if __name__ == "__main__":
    write("main_diag.s", diag=True)
    write("main.s")
    print("LDS", LDS_BYTES)
```

```python
import sys, math, struct
from asmlib import *
import hazard

NAME = "interleave_layers__gqa_block_cached__glu_gated_reglu__decode_kernel"

def f32(x):
    return "0x%08x" % struct.unpack("<I", struct.pack("<f", x))[0]

DEFAULT = dict(
    kvf="nt",
    wf="",
    wd_at="afterY",
    pf_at="wo",
    l2pf=True,
    ack=True,
    force_slow=False,
    diag=False,
    prefetch=True,
    spin=8000000,
    bias=0.0,
    x_stop=None,
    x_nogather=False,
    x_nowq=False,
    qbar=True,
    b1first=False,
    pol=0,
    gue=2,
    wox=0,
    woown=True,
    wdlate=True,
    thr=0,
    xy=None,
    flip=2,
    phv=0,
    phase=True,
    touch='',
    klin=True,
    esmall=True,
    kpre=2,
    spec=True,
    inl=True,
    hint='',
    wo_at='X',
    aover=True,
    wdb=True,
    qkearly=True,
    w64=False,
    clr2="warm2",
    x_noclr=False,
    x_half=False,
    x_delay=None,
    x_nopub=False,

    x_pad=None,
    x_dbg=None,
    b1at=12,
    kwait=48,
)

WVS = 11264
T_WQ, T_WO, T_FF, T_WD = 0, 2048, 6144, 10240
OB = 8 * WVS
XB = OB + 16384
ONES = XB + 2048
QL = ONES + 1024
MLB = QL + 1024 + 256
RQ = MLB + 256
RQC = RQ + 2048
RW = RQC + 2048
RG = RW + 2048
RGC = RG + 2048
RD = RGC + 2048
DUM = RD + 2048
LDS_BYTES = DUM + (DUM - RQ) + 1024
F0 = 0x10000
W_ML, W_H, W_Y, W_Z, W_Q2 = F0, F0 + 0x10000, F0 + 0x20000, F0 + 0x30000, F0 + 0x40000
LSTR = 0x8000
W_Q1 = 0x58000
W_GF = 0x8000
W_HT = 0x9000
W_O = 0x70000
OSTR = 0x50000
OSLOT = 1024
W_DIAG = 0x200000
WS_BYTES = 0x400000
TAG_STEP = 0x9E3779B0


def gen(**kw):
    o = dict(DEFAULT); o.update(kw)
    a = Asm()
    kvf, wf = o["kvf"], o["wf"]
    sW = "s3"
    sK, sV, sWS, sWq, sX, sWo, sWg, sWu, sOut = [f"s[{i}:{i+3}]" for i in (28, 32, 36, 40, 44, 48, 52, 56, 60)]
    sWd = "s[4:7]"
    sG, sIdx, sB, sS, sO, sPure, sTag, sCnt, sL, sLO = [f"s{i}" for i in range(64, 74)]
    sT0, sT1, sT2, sT3 = "s74", "s75", "s76", "s77"
    sM0 = "s78"
    sYo = "s79"
    sMode = sTag
    sKh = "s101"
    c4k = {0: "s15" if o["phase"] else "0", 1: "s80", 2: "s81", 3: "s82"}
    sPlo, sPhi = "s83", "s84"
    sXcc = "s85"
    mC2, m16, m8, mY, mZ = "s[86:87]", "s[88:89]", "s[90:91]", "s[92:93]", "s[96:97]"
    sSt = "s[98:99]"
    vL = "v0"
    names = """vKG vC vT vT0 vT1 vTq vR4 vL16 vW4 vWg vWd vR4c vGS vOw vOw2 vOr vMLw vMLr vXw vXr
               aK aV aQ2 aO aML aY aH aZ aX1 aFin aRes pO pML pY pZ pS pQ pOut
               vDma vHalf vScale vInv vRes vX1 vStamp vA vEp""".split()
    R = {n: f"v{i+1}" for i, n in enumerate(names)}
    globals().update(R)
    assert len(names) + 1 <= 48, len(names)
    WB = 48
    XO = 64
    DD = 88
    TT = 104
    KB = 124
    VB = 188
    v = lambda i: f"v{i}"
    vr = lambda i, n: f"v[{i}:{i+n-1}]"
    DPP = "row_mask:0xf bank_mask:0xf"
    CHK = v(TT + 19)
    vDum = v(TT + 18)

    def stamp(i, layered=False):
        if o["diag"] is True or (o["diag"] == "light" and i == 21) or (isinstance(o["diag"], tuple) and (i in o["diag"] or i == 21)):
            a(f"    s_mov_b32 m0, s100\n    v_writelane_b32 {vStamp}, s98, m0\n    s_memrealtime {sSt}")
            if layered:
                a(f"    s_lshr_b32 s100, {sL}, 11\n    s_or_b32 s100, s100, {i}")
            else:
                a(f"    s_mov_b32 s100, {i}")
    stampL = lambda i: stamp(i, True)

    def srd(dst, lo, off_sgpr, size):
        d = int(dst[2:dst.index(":")])
        if off_sgpr is None:
            a(f"    s_mov_b32 s{d}, s{lo}\n    s_mov_b32 s{d+1}, s{lo+1}\n    s_mov_b32 s{d+2}, {size}")
        else:
            a(f"    s_add_u32 s{d}, s{lo}, {off_sgpr}\n    s_addc_u32 s{d+1}, s{lo+1}, 0\n    s_sub_u32 s{d+2}, {size}, {off_sgpr}")
        a(f"    s_mov_b32 s{d+3}, 0x20000")

    tail = Asm()
    tail2 = Asm()

    def into(stream, fn, *args):
        nonlocal a
        old, a = a, stream
        fn(*args)
        a = old

    def execm(m):
        a(f"    s_mov_b64 exec, {m}")

    def spin_tail(lbl):
        a(f"    s_cbranch_vccnz {lbl}_again\n{lbl}_ok:")
        tail2(f"{lbl}_again:\n    s_sub_u32 {sCnt}, {sCnt}, 1\n    s_cbranch_scc0 {lbl}\n    s_mov_b32 {sCnt}, 0\n    s_branch {lbl}_ok")

    def poll(loads, lbl, mid=None, mid2=None, younger=0, once=None, after=None):
        a(f"{lbl}:")
        for l, _ in loads:
            a("    " + l)
        if mid:
            mid()
        first = True
        pend = []
        for i, (_, regs) in enumerate(loads):
            a(f"    s_waitcnt vmcnt({len(loads)-1-i+younger})")
            if i == 0 and mid2:
                mid2()
            pend += regs
            last = i == len(loads) - 1 or (after and i in after)
            while len(pend) >= (3 if first else 2) or (last and pend):
                if first:
                    if len(pend) >= 3:
                        a(f"    v_max3_u32 {CHK}, {pend[0]}, {pend[1]}, {pend[2]}"); pend = pend[3:]
                    elif len(pend) == 2:
                        a(f"    v_max_u32 {CHK}, {pend[0]}, {pend[1]}"); pend = []
                    else:
                        a(f"    v_mov_b32 {CHK}, {pend[0]}"); pend = []
                    first = False
                elif len(pend) >= 2:
                    a(f"    v_max3_u32 {CHK}, {pend[0]}, {pend[1]}, {CHK}"); pend = pend[2:]
                else:
                    a(f"    v_max_u32 {CHK}, {pend[0]}, {CHK}"); pend = []
            if after and i in after:
                after[i]()
        a(f"    v_cmp_eq_u32 vcc, -1, {CHK}")
        if once:
            a(f"    s_cbranch_vccnz {once}\n    s_branch {once}_ok")
        else:
            spin_tail(lbl)

    def local_store(ins, lbl):
        if o["force_slow"]:
            a("    " + ins.replace("\n    s_mov_b64 exec, 1\n", " sc1\n    s_mov_b64 exec, 1\n") + " sc1")
            return
        a(f"    s_cmp_eq_u32 {sPure}, 0\n    s_cbranch_scc1 {lbl}_wt\n    {ins}\n{lbl}_e:")
        tail2(f"{lbl}_wt:\n    " + ins.replace("\n    s_mov_b64 exec, 1\n", " sc1\n    s_mov_b64 exec, 1\n") + f" sc1\n    s_branch {lbl}_e")

    vHt = v(TT + 10)
    def hint_post(use):
        a(f"""    s_lshr_b32 {sT0}, {sL}, {15 - 11}
    s_lshl_b32 {sT3}, {sG}, 7
    s_add_u32 {sT0}, {sT0}, {sT3}
    s_add_u32 {sT0}, {sT0}, {W_HT + use * 1024}
    s_lshl_b32 {sT3}, {sIdx}, 2
    s_add_u32 {sT3}, {sT3}, {sT0}
    buffer_store_dword {vEp}, off, {sWS}, {sT3}""")
    def hint_wait(lbl):
        a(f"""    s_cmp_eq_u32 {sPure}, 0
    s_cbranch_scc1 {lbl}_ok
    s_mov_b32 exec_hi, 0
{lbl}:
    buffer_load_dword {vHt}, {aV}, {sWS}, {sT0} offen sc1
    s_waitcnt vmcnt(0)
    v_cmp_ne_u32 vcc, {vHt}, {vEp}""")
        spin_tail(lbl)
        a("    s_mov_b64 exec, -1")

    def ackwait():
        if o["x_delay"] is not None:
            for i in range(o["x_delay"]):
                a("    s_nop 15")
        elif o["ack"]:
            a("    s_waitcnt vmcnt(0)")

    def dma(srdn, tile_off, soff):
        a(f"    s_add_u32 m0, {sM0}, {tile_off}")
        a(f"    buffer_load_dwordx4 {vA}, {srdn}, {soff} offen {wf} lds")

    def tr_read(dst, tile_off):
        a(f"    ds_read_b64_tr_b16 {vr(dst,2)}, {vT} offset:{tile_off}")
        a(f"    ds_read_b64_tr_b16 {vr(dst+2,2)}, {vT} offset:{tile_off+512}")

    def red8(addr, unit0, tmp):
        for i in range(4):
            a(f"    ds_read2st64_b32 {vr(tmp+2*i,2)}, {addr} offset0:{unit0+2*i} offset1:{unit0+2*i+1}")

    def sum8(dst, tmp, extra=None, later=0):
        for i in range(4):
            a(f"    s_waitcnt lgkmcnt({3 - i + later})")
            a(f"    v_add_f32 {v(tmp+2*i)}, {v(tmp+2*i)}, {v(tmp+2*i+1)}")
            if i == 1:
                a(f"    v_add_f32 {v(tmp)}, {v(tmp)}, {v(tmp+2)}")
                if extra:
                    a(f"    v_add_f32 {v(tmp)}, {v(tmp)}, {extra}")
        a(f"    v_add_f32 {v(tmp+4)}, {v(tmp+4)}, {v(tmp+6)}")
        a(f"    v_add_f32 {dst}, {v(tmp)}, {v(tmp+4)}")

    def ln_stats(S2, S1, mu, rstd):
        a(f"    v_mul_f32 {mu}, {f32(1/512)}, {S1}")
        a(f"    v_mul_f32 {S2}, {f32(1/512)}, {S2}")
        a(f"    v_fma_f32 {S2}, -{mu}, {mu}, {S2}")
        a(f"    v_max_f32 {S2}, 0, {S2}")
        a(f"    v_add_f32 {S2}, {f32(1e-5)}, {S2}")
        a(f"    v_rsq_f32 {rstd}, {S2}")

    def pack16(d, S, T):
        a(f"    v_mov_b32_dpp {T}, {S} quad_perm:[1,1,3,3] {DPP}")
        a(f"    v_cvt_pk_bf16_f32 {v(d)}, {S}, {T}")
        for i in (1, 2, 3):
            a(f"    v_mov_b32_dpp {v(d+i)}, {v(d)} row_shl:{2*i} {DPP}")

    def quad4(d):
        for i in (1, 2, 3):
            a(f"    v_mov_b32_dpp {v(d+i)}, {v(d)} quad_perm:[{i},{i},{i},{i}] {DPP}")

    def gather_x(addr, soff, lbl, st, mid2=None, xw=None):
        Y = XO + 8
        poll([(f"buffer_load_dwordx4 {vr(Y+4*i,4)}, {addr}, {sWS}, {soff} offen offset:{128*i} sc1",
               [v(Y + 4 * i + j) for j in range(4)]) for i in range(2 if o['x_half'] else 4)], lbl, None, mid2,
             after={1: lambda: [a(f"    v_pk_add_f32 {vr(Y+j,2)}, {vr(Y+j,2)}, {vr(Y+4+j,2)}") for j in (0, 2)]} if o["spec"] else None)
        st()
        for j in (0, 2):
            if not o["spec"]:
                a(f"    v_pk_add_f32 {vr(Y+j,2)}, {vr(Y+j,2)}, {vr(Y+4+j,2)}")
            a(f"    v_pk_add_f32 {vr(Y+8+j,2)}, {vr(Y+8+j,2)}, {vr(Y+12+j,2)}")
        for j in (0, 2):
            a(f"    v_pk_add_f32 {vr(Y+j,2)}, {vr(Y+j,2)}, {vr(Y+8+j,2)}")
        a(f"""    v_permlane32_swap_b32 {v(Y)}, {v(Y+2)}
    v_permlane32_swap_b32 {v(Y+1)}, {v(Y+3)}
    v_pk_add_f32 {vr(Y,2)}, {vr(Y,2)}, {vr(Y+2,2)}
    v_cvt_pk_bf16_f32 {v(Y)}, {v(Y)}, {v(Y+1)}
    ds_write_b32 {xw or vXw}, {v(Y)}
    ds_read_b128 {vr(XO,4)}, {vXr}
    ds_read_b128 {vr(XO+4,4)}, {vXr} offset:64""")

    def sum_cols(addr, soff, lbl, dst):
        poll([(f"buffer_load_dword {v(TT+i)}, {addr}, {sWS}, {soff} offen offset:{128*i} sc1", [v(TT + i)]) for i in range(4)], lbl)
        a(f"""    v_add_f32 {v(TT)}, {v(TT)}, {v(TT+1)}
    v_add_f32 {v(TT+2)}, {v(TT+2)}, {v(TT+3)}
    v_add_f32 {dst}, {v(TT)}, {v(TT+2)}
    v_mov_b32 {v(TT)}, {dst}
    v_permlane32_swap_b32 {dst}, {v(TT)}
    v_add_f32 {dst}, {dst}, {v(TT)}""")

    def two_tile_write(base):
        a(f"    ds_write_b128 {vWg}, {vr(DD,4)} offset:{base - RQ}")
        a(f"    ds_write_b128 {vWg}, {vr(DD+4,4)} offset:{base - RQ + 128}")

    def stats_write(base):
        a(f"    ds_write_b128 {vL16}, {vr(DD+8,4)} offset:{base - RQ + 2048 + 192}")
        a("    s_waitcnt lgkmcnt(0)\n    s_barrier")

    def two_tile_reduce(base, n, aD, aC):
        st = v(TT + 8)
        S2, S1, mu, rs, S, CS = v(DD), v(DD + 1), v(DD + 2), v(DD + 3), v(DD + 4), v(DD + 5)
        u = (base - RQ) // 256
        h = n // 2
        a(f"    ds_read_b32 {st}, {vGS} offset:{base - RQ}")
        for i in range(h):
            a(f"    ds_read2st64_b32 {vr(TT+2*i,2)}, {aD} offset0:{u+2*i} offset1:{u+2*i+1}")
        for i in range(h):
            a(f"    ds_read2st64_b32 {vr(XO+2*i,2)}, {aC} offset0:{u+2*i} offset1:{u+2*i+1}")
        chain = [f"v_add_f32_dpp {st}, {st}, {st} quad_perm:[1,0,3,2] {DPP}",
                 f"v_add_f32_dpp {st}, {st}, {st} quad_perm:[2,3,0,1] {DPP}",
                 f"v_add_f32_dpp {st}, {st}, {st} row_half_mirror {DPP}",
                 f"v_mul_f32_dpp {mu}, {st}, {vInv} row_newbcast:8 {DPP}\n    v_mul_f32_dpp {S2}, {st}, {vInv} row_newbcast:0 {DPP}",
                 f"v_fma_f32 {S2}, -{mu}, {mu}, {S2}\n    v_max_f32 {S2}, 0, {S2}\n    v_add_f32 {S2}, {f32(1e-5)}, {S2}\n    v_rsq_f32 {rs}, {S2}"]
        if n == 8:
            fill = [f"s_waitcnt lgkmcnt(6)\n    v_pk_add_f32 {vr(TT,2)}, {vr(TT,2)}, {vr(TT+2,2)}",
                    f"s_waitcnt lgkmcnt(4)\n    v_pk_add_f32 {vr(TT+4,2)}, {vr(TT+4,2)}, {vr(TT+6,2)}",
                    f"s_waitcnt lgkmcnt(2)\n    v_pk_add_f32 {vr(XO,2)}, {vr(XO,2)}, {vr(XO+2,2)}",
                    f"v_pk_add_f32 {vr(TT,2)}, {vr(TT,2)}, {vr(TT+4,2)}\n    s_waitcnt lgkmcnt(0)\n    v_pk_add_f32 {vr(XO+4,2)}, {vr(XO+4,2)}, {vr(XO+6,2)}",
                    f"v_pk_add_f32 {vr(XO,2)}, {vr(XO,2)}, {vr(XO+4,2)}\n    v_add_f32 {S}, {v(TT)}, {v(TT+1)}\n    v_add_f32 {CS}, {v(XO)}, {v(XO+1)}"]
        else:
            fill = [f"s_waitcnt lgkmcnt(2)\n    v_pk_add_f32 {vr(TT,2)}, {vr(TT,2)}, {vr(TT+2,2)}",
                    f"s_waitcnt lgkmcnt(0)\n    v_pk_add_f32 {vr(XO,2)}, {vr(XO,2)}, {vr(XO+2,2)}",
                    f"v_add_f32 {S}, {v(TT)}, {v(TT+1)}\n    v_add_f32 {CS}, {v(XO)}, {v(XO+1)}", None, None]
        a(f"    s_waitcnt lgkmcnt({2*h})")
        for c_, f_ in zip(chain, fill):
            a("    " + c_)
            if f_:
                a("    " + f_)
        a(f"    v_fma_f32 {S}, -{mu}, {CS}, {S}\n    v_mul_f32 {S}, {S}, {rs}")
        return S

    def add_bf16x8(d, A, B):
        for i in range(4):
            x, y = TT + 4 * (i & 1), TT + 4 * (i & 1) + 2
            a(f"""    v_lshlrev_b32 {v(x)}, 16, {A[i]}
    v_and_b32 {v(x+1)}, 0xffff0000, {A[i]}
    v_lshlrev_b32 {v(y)}, 16, {B[i]}
    v_and_b32 {v(y+1)}, 0xffff0000, {B[i]}
    v_pk_add_f32 {vr(x,2)}, {vr(x,2)}, {vr(y,2)}
    v_cvt_pk_bf16_f32 {v(d+i)}, {v(x)}, {v(x+1)}""")

    def r64_addr(shift):
        t = v(TT + 7)
        a(f"""    v_bfe_u32 {vA}, {vL}, 2, 2
    v_lshl_add_u32 {vA}, {vKG}, 3, {vA}
    v_lshlrev_b32 {vA}, {shift}, {vA}
    v_and_b32 {t}, 1, {vKG}
    v_lshlrev_b32 {t}, 1, {t}
    v_xor_b32 {t}, {t}, {vL}
    v_and_b32 {t}, 3, {t}
    v_lshl_add_u32 {vA}, {t}, 4, {vA}""")

    cO, cF, cQ = v(TT + 12), v(TT + 13), v(TT + 14)
    def slot_addrs():
        t2, t3, t4 = v(TT + 2), v(TT + 3), v(TT + 4)
        a(f"""    s_lshl_b32 {sT2}, {sO}, 10
    s_add_u32 {sT2}, {sT2}, {W_O}
    v_lshl_add_u32 {cO}, {vL}, 4, {sT2}
    v_mov_b32 {t2}, {sO}
    v_mov_b32 {t3}, {sYo}
    v_cmp_lt_u32 vcc, 1, {vKG}
    v_cndmask_b32 {t2}, {t2}, {t3}, vcc
    v_lshrrev_b32 {t3}, 3, {vL}
    v_lshlrev_b32 {t4}, 15, {t3}
    v_lshl_add_u32 {cF}, {t2}, 7, {t4}
    v_and_b32 {t4}, 7, {vL}
    v_lshl_add_u32 {cF}, {t4}, 4, {cF}
    v_add_u32 {cF}, {F0}, {cF}
    s_lshl_b32 {sT2}, {sO}, 7
    s_add_u32 {sT2}, {sT2}, {W_Q2}
    v_lshlrev_b32 {t3}, 22, {t3}
    v_lshl_add_u32 {cQ}, {t4}, 4, {t3}
    v_add_u32 {cQ}, {sT2}, {cQ}
    s_mov_b32 {sT3}, {OSTR}""")

    def kshuffle():
        if not o["klin"]:
            return
        aw, ar = DD, DD + 4
        a(f"""    s_add_u32 {sT1}, {sM0}, {T_WO}
    v_xor_b32 {v(aw)}, {vC}, {vKG}
    v_lshlrev_b32 {v(ar)}, 4, {v(aw)}
    v_lshl_add_u32 {v(aw)}, {vKG}, 8, {v(ar)}
    v_lshl_add_u32 {v(ar)}, {vC}, 8, {v(ar)}
    v_add_u32 {v(aw)}, {sT1}, {v(aw)}
    v_add_u32 {v(ar)}, {sT1}, {v(ar)}""")
        for j in (1, 2, 3):
            a(f"    v_xor_b32 {v(aw+j)}, {64*j}, {v(aw)}\n    v_xor_b32 {v(ar+j)}, {64*j}, {v(ar)}")
        for u in range(4):
            h = (u & 1) * 4096
            if u:
                a("    s_waitcnt lgkmcnt(6)")
            for j in range(4):
                a(f"    ds_write_b128 {v(aw+j)}, {vr(KB+16*u+4*j,4)} offset:{h + 1024*j}")
            for t in range(4):
                a(f"    ds_read_b128 {vr(KB+16*u+4*t,4)}, {v(ar+t)} offset:{h}")

    def thr_wait(n):
        lbl = a.label("L_th")
        a(f"    s_bitcmp1_b32 {sXcc}, 0\n    s_cbranch_scc1 {lbl}\n    s_waitcnt vmcnt({min(63, n)})\n{lbl}:")

    def kload(i):
        if o["thr"] and i >= o["thr"]:
            thr_wait(o["thr"] - 1)
        if o["klin"]:
            a(f"    buffer_load_dwordx4 {vr(KB+16*(i&3)+4*(i>>2),4)}, {aK}, {sK}, {c4k[i>>2]} offen offset:{(i&3)*1024} {kvf}")
            return
        u, t = i // 4, i % 4
        a(f"    buffer_load_dwordx4 {vr(KB+4*i,4)}, {aK}, {sK}, 0 offen offset:{u*1024+t*64} {kvf}")

    t0, t1, t2, t3, t4, t5 = [v(TT + i) for i in range(6)]
    a(f"""    s_cmp_ge_u32 s2, 256
    s_cbranch_scc1 L_end
    s_load_dwordx16 s[4:19], s[0:1], 0
    s_load_dwordx8 s[20:27], s[0:1], 64
    v_lshrrev_b32 v1, 6, v0
    v_and_b32 {vL}, 63, v0
    v_readfirstlane_b32 {sW}, v1""")
    if o["diag"]:
        a(f"    v_mov_b32 {vStamp}, 0\n    s_memrealtime {sSt}\n    s_mov_b32 s100, 0")
    a(f"""    s_lshr_b32 {sIdx}, s2, 3
    s_and_b32 {sG}, s2, 7
    s_lshr_b32 {sB}, s2, 7
    s_and_b32 {sS}, {sIdx}, 15
    s_and_b32 {sKh}, {sIdx}, 1
    v_lshrrev_b32 {vKG}, 4, {vL}
    v_and_b32 {vC}, 15, {vL}
""")
    if o["klin"]:
        a(f"    v_lshlrev_b32 {aK}, 4, {vL}")
    else:
        a(f"""    ; K lane address: (c>>2)*4096 + (c&3)*256 + kg*16
    v_bfe_u32 {aK}, {vL}, 2, 2
    v_lshlrev_b32 {aK}, 12, {aK}
    v_and_b32 {t1}, 3, {vL}
    v_lshl_add_u32 {aK}, {t1}, 8, {aK}
    v_lshl_add_u32 {aK}, {vKG}, 4, {aK}""")
    a(f"""    ; kv byte offset: ((8b + g)*16 + s)*8 + w) << 14
    s_lshl3_add_u32 {sT0}, {sB}, {sG}
    s_lshl4_add_u32 {sT0}, {sT0}, {sS}
    s_lshl3_add_u32 {sT0}, {sT0}, {sW}
    {("s_lshl_b32 " + sT1 + ", " + sKh + ", 2") if o["flip"] == 1 else ""}
    {("s_and_b32 " + sT1 + ", " + sIdx + ", 7") if o["flip"] == 2 else ""}
    {("s_add_u32 " + sT1 + ", " + sIdx + ", s2") if o["flip"] == 3 else ""}
    {("s_and_b32 " + sT1 + ", " + sT1 + ", 7") if o["flip"] == 3 else ""}
    {("s_xor_b32 " + sT0 + ", " + sT0 + ", " + sT1) if o["flip"] else ""}
    s_lshl_b32 {sT0}, {sT0}, 14
    s_mov_b32 s31, 0x20000
    s_sub_u32 s30, 33554432, {sT0}
    s_cmp_lt_u32 {sW}, 4
    s_cbranch_scc0 L_young
    s_lshl2_add_u32 {sT1}, {sKh}, {sW}
    s_lshl_b32 {sT1}, {sT1}, 19
    s_lshr_b32 {sT2}, {sIdx}, 1
    s_lshl4_add_u32 {sT2}, {sG}, {sT2}
    s_lshl_b32 {sT2}, {sT2}, 6
    s_add_u32 {sT1}, {sT1}, {sT2}
    s_mul_i32 {sT3}, {sW}, {2*WVS}""")
    r64_addr(13)
    a(f"""    s_mov_b32 s43, 0x20000
    s_sub_u32 s42, 4194304, {sT1}
    s_add_u32 m0, {sT3}, {T_WQ}
    s_waitcnt lgkmcnt(0)
    s_add_u32 s40, s10, {sT1}
    s_addc_u32 s41, s11, 0""")
    if o["diag"]:
        stamp(2)
        a(f"    s_add_u32 m0, {sT3}, {T_WQ}")
    for k in range(0 if o["x_nowq"] else 4):
        if k:
            a(f"    s_add_u32 m0, {sT3}, {(k >> 1) * WVS + T_WQ + (k & 1) * 1024}")
            a(f"    s_mov_b32 {sT2}, {((k >> 1) * 32 + (k & 1) * 4) * 8192}")
        a(f"    buffer_load_dwordx4 {vA}, {sWq}, {sT2 if k else 0} offen {wf} lds")
    def phase0():
        if o["phase"]:
            if o["phv"] == 0:
                a(f"    s_add_u32 s15, {sIdx}, {sW}\n    s_add_u32 s15, s15, {sG}")
            elif o["phv"] == 1:
                a(f"    s_lshr_b32 s15, {sIdx}, 2\n    s_add_u32 s15, s15, {sW}\n    s_add_u32 s15, s15, {sG}")
            else:
                a(f"    s_lshr_b32 s15, {sIdx}, 3\n    s_add_u32 s15, s15, {sW}")
            a(f"    s_and_b32 s15, s15, 3\n    s_lshl_b32 s15, s15, 12")
    phase0()
    a(f"    s_add_u32 s28, s6, {sT0}\n    s_addc_u32 s29, s7, 0")
    def common2():
        a(f"""    v_lshlrev_b32 {aV}, 2, {vL}
    s_getreg_b32 {sXcc}, hwreg(HW_REG_XCC_ID, 0, 4)
    s_lshl_b32 {sO}, {sG}, 5
    s_add_u32 {sO}, {sO}, {sIdx}
    {"s_xor_b32 s80, s15, 4096" if o["phase"] else "s_mov_b32 s80, 4096"}
    {"s_xor_b32 s81, s15, 8192" if o["phase"] else "s_mov_b32 s81, 8192"}
    {"s_xor_b32 s82, s15, 12288" if o["phase"] else "s_mov_b32 s82, 12288"}
    s_add_u32 s32, s8, {sT0}
    s_addc_u32 s33, s9, 0
    s_mov_b32 s34, s30
    s_mov_b32 s35, 0x20000
    s_mov_b32 s36, s26
    s_mov_b32 s37, s27
    s_mov_b32 s38, {WS_BYTES}
    s_mov_b32 s39, 0x20000
    s_lshr_b32 {sT1}, {sG}, 2
    s_xor_b32 {sT1}, {sT1}, {o["pol"]}
    s_lshl1_add_u32 {sYo}, {sB}, {sT1}
    s_lshl4_add_u32 {sYo}, {sYo}, {sS}
    s_and_b32 {sT1}, {sG}, 3
    s_lshl2_add_u32 {sYo}, {sYo}, {sT1}""")
    c0 = TT + 8
    def small_ops():
        a(f"""    v_lshlrev_b32 {t0}, 4, {vL}
    s_cmp_eq_u32 {sW}, 0
    s_cbranch_scc0 L_sm1""")
        srd(sX, 4, None, 2048)
        a(f"""    s_mov_b32 m0, {XB}
    s_nop 0
    buffer_load_dwordx4 {t0}, {sX}, 0 offen lds
    buffer_load_dwordx4 {t0}, {sX}, 0 offen offset:1024 lds
    s_branch L_sm9
L_sm1:
    s_cmp_eq_u32 {sW}, 3
    s_cbranch_scc0 L_sm2
    buffer_load_dword {vEp}, off, {sWS}, 0 offset:4 sc1
    s_branch L_sm9
L_sm2:
    v_mov_b32 {v(c0)}, -1
    v_mov_b32 {v(c0+1)}, -1
    v_mov_b32 {v(c0+2)}, -1
    v_mov_b32 {v(c0+3)}, -1""")
        slot_addrs()
        a(f"""    s_cmp_eq_u32 {sW}, 1
    s_cbranch_scc1 L_sm3
    v_mov_b32 {cO}, {cF}
    s_mov_b32 exec_lo, 0x00ff00ff
    s_mov_b32 exec_hi, 0x00ff00ff
L_sm3:
    buffer_store_dwordx4 {vr(c0,4)}, {cO}, {sWS}, 0 offen sc1
    s_mov_b64 exec, -1
L_sm9:""")
    for i in range(16):
        if i == o["kpre"]:
            common2()
            if o["esmall"]:
                small_ops()
        kload(i)
        if i + 1 == o["b1at"]:
            stamp(16)
            a(f"    s_waitcnt vmcnt({o['b1at'] - (o['kpre'] if o['esmall'] else 0)})")
            if o["esmall"]:
                a(f"""    s_cmp_eq_u32 {sW}, 3
    s_cbranch_scc0 L_b1
    v_mov_b32 {t3}, {QL + 1028}
    v_add_u32 {vEp}, {TAG_STEP}, {vEp}
    ds_write_b32 {t3}, {vEp}
    s_waitcnt lgkmcnt(0)
L_b1:""")
            a("    s_barrier")
            stamp(22)
    a("L_vloads:")
    for n in range(16):
        for r, d in ((0, 2), (1, 4), (2, 3), (3, 5)):
            key = 4 * n + r
            if key == o["kwait"]:
                a(f"    s_waitcnt vmcnt({key})")
                if o["qkearly"]:
                    a(f"    s_cmp_lt_u32 {sW}, 4\n    s_cbranch_scc0 L_mid\nL_vrest:")
            if o["thr"] and key % 4 == 0:
                dv = 4 * o["thr"]
                thr_wait(dv - 4 if key >= dv else max(0, (dv - 4 - key) // 4 + key))
            a(f"    buffer_load_dword {v(VB+4*n+d)}, {aV}, {sV}, {c4k[key//16]} offen offset:{(key%16)*256} {kvf}")
    stamp(5)
    a(f"""    s_cmp_lt_u32 {sW}, 4
    s_cbranch_scc0 L_joined
    s_branch L_setup
L_young:""")
    if o["prefetch"]:
        a(f"""    ; each of these waves pulls 128 bytes of the code into L2
    s_getpc_b64 s[94:95]
L_pc:
    s_lshl2_add_u32 {sT2}, {sIdx}, {sW}
    s_sub_u32 {sT2}, {sT2}, 4
    s_lshl_b32 {sT2}, {sT2}, 7
    s_min_u32 {sT2}, {sT2}, L_codeend-L_pc-64
    v_lshl_add_u32 {t2}, {vL}, 6, {sT2}
    s_mov_b64 exec, 3
    global_load_dword {vDum}, {t2}, s[94:95]
    s_mov_b64 exec, -1""")
    a(f"""    v_mov_b32 {t3}, {QL + 1024}
    v_mov_b32 {t4}, 0
    ds_write_b32 {t3}, {t4}
    s_waitcnt lgkmcnt(0)
    s_add_u32 s28, s6, {sT0}
    s_addc_u32 s29, s7, 0""")
    phase0()
    common2()
    a(f"""    s_cmp_eq_u32 {sW}, 7
    s_cbranch_scc1 L_w7a
    {"s_barrier" if o["b1first"] else ""}
    s_branch L_setup
L_w7a:""")
    a("    s_setprio 3")
    if not o["esmall"]:
        srd(sX, 4, None, 2048)
        a(f"""    s_mov_b32 m0, {XB}
    v_lshlrev_b32 {t0}, 4, {vL}
    v_mov_b32 {v(c0)}, -1
    buffer_load_dwordx4 {t0}, {sX}, 0 offen lds
    buffer_load_dwordx4 {t0}, {sX}, 0 offen offset:1024 lds
    buffer_load_dword {vEp}, off, {sWS}, 0 offset:4 sc1
    v_mov_b32 {v(c0+1)}, -1
    v_mov_b32 {v(c0+2)}, -1
    v_mov_b32 {v(c0+3)}, -1""")
        slot_addrs()
        if not o["x_noclr"]:
            a(f"""    buffer_store_dwordx4 {vr(c0,4)}, {cO}, {sWS}, 0 offen sc1
    s_mov_b32 exec_lo, 0x00ff00ff
    s_mov_b32 exec_hi, 0x00ff00ff
    buffer_store_dwordx4 {vr(c0,4)}, {cF}, {sWS}, 0 offen sc1
    s_mov_b64 exec, -1""")
    a(f"""L_setup:
    v_bfe_u32 {t5}, {vL}, 3, 2
    v_lshlrev_b32 {vDma}, 3, {t5}
    v_lshrrev_b32 {t5}, 5, {vL}
    v_lshl_add_u32 {vDma}, {t5}, 2, {vDma}
    v_bfe_u32 {t5}, {vL}, 1, 2
    v_add_u32 {vDma}, {vDma}, {t5}
    v_and_b32 {vHalf}, 1, {vL}
    v_lshlrev_b32 {vHalf}, 4, {vHalf}
    s_mul_i32 {sM0}, {sW}, {WVS}""")
    h8 = t1
    a(f"""    s_mov_b32 s86, 0x00030003
    s_mov_b32 s87, 0x00030003
    s_mov_b32 s88, 0x01010101
    s_mov_b32 s89, 0x01010101
    s_mov_b32 s90, 0x01010101
    s_mov_b32 s91, 0
    s_mov_b32 s92, 0x00001111
    s_mov_b32 s93, 0x00001111
    s_mov_b32 s96, 0x11111111
    s_mov_b32 s97, 0
    s_mov_b32 {sPlo}, 0x05040100
    s_mov_b32 {sPhi}, 0x07060302
    s_mov_b32 {sCnt}, {o['spin']}
    s_mov_b32 {sL}, 0
    s_mov_b32 {sLO}, 0
    s_mov_b32 {sPure}, 0
    s_mov_b32 {sMode}, 0
    v_lshrrev_b32 {t2}, 1, {vKG}
    v_and_b32 {t3}, 1, {vKG}
    v_lshl_add_u32 {vT}, {vL}, 3, {sM0}
    s_lshl_b32 {sT2}, {sW}, 8
    s_add_u32 {sT2}, {sT2}, {RQ}                ; RQ + w*256
    v_add_u32 {vW4}, {sT2}, {aV}
    v_add_u32 {vR4}, {RQ}, {aV}
    v_lshlrev_b32 {vWd}, 6, {vC}
    v_lshl_add_u32 {vWd}, {vKG}, 4, {vWd}
    v_add_u32 {vWd}, {sT2}, {vWd}
    v_lshlrev_b32 {t5}, 4, {vL}
    v_add_u32 {vL16}, {sT2}, {t5}
    v_add_u32 {t5}, {DUM}, {t5}
    v_add_u32 {vWg}, {2048 - 128}, {vWd}
    v_cmp_eq_u32 vcc, 2, {vC}
    v_cndmask_b32 {vWg}, {t5}, {vWg}, vcc
    v_cmp_gt_u32 vcc, 2, {vC}
    v_cndmask_b32 {vWg}, {vWg}, {vWd}, vcc
    v_cndmask_b32 {vWd}, {t5}, {vWd}, vcc
    v_cmp_gt_u32 vcc, 2, {vL}
    v_cndmask_b32 {vL16}, {t5}, {vL16}, vcc
    v_mov_b32 {vInv}, {f32(1/512)}
    v_mov_b32 {vScale}, {f32(128**-0.5 * math.log2(math.e))}
    v_mov_b32 {vRes}, 0
    v_mov_b32 {vX1}, 0
    ds_write_b32 {vR4}, {vRes} offset:{RD - RQ + 7*256}
    v_lshrrev_b32 {t4}, 2, {vC}
    s_and_b32 {sT3}, {sO}, 0xf0
    s_lshl_b32 {sT3}, {sT3}, 7
    s_add_u32 {sT3}, {sT3}, {W_Q2}
    v_lshl_add_u32 {aQ2}, {vL}, 4, {sT3}
    s_lshl_b32 {sT2}, {sG}, 12
    s_lshl_b32 {sT3}, {sW}, 8
    s_add_u32 {sT2}, {sT2}, {sT3}
    s_add_u32 {sT2}, {sT2}, {W_H}
    v_lshl_add_u32 {aH}, {t2}, 7, {sT2}
    v_lshl_add_u32 {aH}, {vC}, 5, {aH}
    v_lshl_add_u32 {aH}, {t3}, 4, {aH}
    s_and_b32 {sT2}, {sO}, 0xf0
    s_lshl_b32 {sT3}, {sW}, 1
    s_add_u32 {sT3}, {sT3}, {sT2}
    s_lshl_b32 {sT3}, {sT3}, 10
    s_add_u32 {sT3}, {sT3}, {W_O}
    v_lshl_add_u32 {aO}, {vL}, 4, {sT3}
    v_lshl_add_u32 {aML}, {vKG}, 2, {vC}
    v_and_b32 {aML}, 15, {aML}
    s_lshr_b32 {sT3}, {sW}, 1
    s_add_u32 {sT3}, {sT3}, {sT2}
    s_lshl_b32 {sT3}, {sT3}, 7
    s_add_u32 {sT3}, {sT3}, {W_ML}
    v_lshl_add_u32 {aML}, {aML}, 3, {sT3}
    v_xor_b32 {t1}, {o["pol"]}, {t2}
    v_lshlrev_b32 {t1}, 13, {t1}
    v_lshrrev_b32 {aY}, 3, {vC}
    v_lshl_add_u32 {aY}, {aY}, 9, {t1}
    v_lshl_add_u32 {aY}, {t3}, 14, {aY}
    v_and_b32 {t5}, 7, {vC}
    v_lshl_add_u32 {aY}, {t5}, 4, {aY}
    s_lshl_b32 {sT3}, {sW}, 10
    s_add_u32 {sT3}, {sT3}, {W_Y}
    v_add_u32 {aY}, {sT3}, {aY}
    v_bfe_u32 {aZ}, {vL}, 3, 2
    v_lshl_add_u32 {aZ}, {aZ}, 9, {t1}
    v_lshl_add_u32 {aZ}, {t5}, 4, {aZ}
    s_lshr_b32 {sT2}, {sW}, 2
    s_lshl_b32 {sT2}, {sT2}, 14
    s_and_b32 {sT3}, {sW}, 3
    s_lshl_b32 {sT3}, {sT3}, 11
    s_add_u32 {sT3}, {sT3}, {sT2}
    s_add_u32 {sT3}, {sT3}, {W_Z}
    v_add_u32 {aZ}, {sT3}, {aZ}
    ; x1 for this workgroup's 16 columns: b'*16384 + gh*8192 + (idx>>1)*512 + (idx&1)*64 + c*4
    v_lshl_add_u32 {t5}, {vC}, 2, {t1}
    s_lshr_b32 {sT2}, {sIdx}, 1
    s_lshl_b32 {sT2}, {sT2}, 9
    s_lshl_b32 {sT3}, {sKh}, 6
    s_add_u32 {sT2}, {sT2}, {sT3}
    s_add_u32 {sT2}, {sT2}, {W_Y}
    v_lshl_add_u32 {aX1}, {t3}, 14, {t5}
    v_add_u32 {aX1}, {sT2}, {aX1}
    s_lshl_b32 {sT2}, {sB}, 14
    s_lshl_b32 {sT3}, {sS}, 9
    s_add_u32 {sT2}, {sT2}, {sT3}
    s_add_u32 {sT2}, {sT2}, {W_Z}
    v_lshl_add_u32 {aFin}, {t3}, 6, {t5}
    v_add_u32 {aFin}, {sT2}, {aFin}
    s_lshl_b32 {sT2}, {sIdx}, 5
    v_lshlrev_b32 {pOut}, 10, {t3}
    v_lshl_add_u32 {pOut}, {vC}, 1, {pOut}
    v_add_u32 {pOut}, {sT2}, {pOut}
    s_and_b32 {sT1}, {sO}, 0xf0                 ; O: (o & 0xf0)*1024 + w*4096 + (l>>2)*256 + s*16 + (l&3)*4
    s_lshl_b32 {sT2}, {sW}, 2
    s_add_u32 {sT2}, {sT2}, {sT1}
    s_lshl_b32 {sT2}, {sT2}, 10
    s_lshl_b32 {sT3}, {sS}, 4
    s_add_u32 {sT2}, {sT2}, {sT3}
    s_add_u32 {sT2}, {sT2}, {W_O}
    v_lshrrev_b32 {pO}, 2, {vL}
    v_lshl_add_u32 {pO}, {pO}, 8, {sT2}
    v_and_b32 {t5}, 3, {vL}
    v_lshl_add_u32 {pO}, {t5}, 2, {pO}
    s_add_u32 {sT2}, {sT1}, {sW}
    s_lshl_b32 {sT2}, {sT2}, 7
    s_lshl_b32 {sT3}, {sS}, 3
    s_add_u32 {sT2}, {sT2}, {sT3}
    s_add_u32 {sT2}, {sT2}, {W_ML}
    v_mov_b32 {pML}, {sT2}
    s_bfe_u32 {sT2}, {sIdx}, 0x20001
    s_lshl_b32 {sT2}, {sT2}, 2
    s_lshr_b32 {sT3}, {sIdx}, 3
    s_add_u32 {sT2}, {sT2}, {sT3}
    s_lshl_b32 {sT2}, {sT2}, 4
    s_lshl_b32 {sT3}, {sG}, 12
    s_add_u32 {sT2}, {sT2}, {sT3}
    s_lshl_b32 {sT3}, {sKh}, 10
    s_add_u32 {sT2}, {sT2}, {sT3}
    s_add_u32 {sT2}, {sT2}, {W_Q2}
    v_lshl_add_u32 {pQ}, {t3}, 11, {sT2}
    v_lshl_add_u32 {pQ}, {t2}, 9, {pQ}
    v_lshrrev_b32 {t5}, 3, {vC}
    v_lshl_add_u32 {pQ}, {t5}, 8, {pQ}
    s_lshl_b32 {sT2}, {sO}, 7
    v_lshl_add_u32 {pS}, {vL}, 1, {sT2}         ; o*128 + (b*16+n)*2
    s_lshl_b32 {sT2}, {sYo}, 7
    s_add_u32 {sT3}, {sT2}, {W_Z}
    v_add_u32 {pZ}, {sT3}, {aV}
    s_add_u32 {sT2}, {sT2}, {W_Y}
    v_lshlrev_b32 {pY}, 2, {vC}
    v_lshl_add_u32 {pY}, {t2}, 6, {pY}
    v_add_u32 {pY}, {sT2}, {pY}
    v_lshrrev_b32 {vT0}, 2, {vL}
    v_lshlrev_b32 {vT0}, 6, {vT0}
    v_and_b32 {vT1}, 3, {vL}
    v_lshl_add_u32 {vT0}, {vT1}, 3, {vT0}
    v_lshl_add_u32 {vT0}, {t3}, 5, {vT0}
    s_and_b32 {sT2}, {sW}, 3
    s_mul_i32 {sT2}, {sT2}, {2*WVS}
    v_add_u32 {vTq}, {sT2}, {vT0}
    v_add_u32 {vT0}, {sM0}, {vT0}
    v_xor_b32 {vT1}, 32, {vT0}
    s_lshl_b32 {sT2}, {sW}, 11
    s_add_u32 {sT2}, {sT2}, {OB}
    v_lshl_add_u32 {vOw}, {vL}, 3, {sT2}
    v_add_u32 {vOw2}, 1024, {vOw}
    s_lshl_b32 {sT2}, {sW}, 9
    s_add_u32 {sT2}, {sT2}, {OB}
    v_lshl_add_u32 {vOr}, {vL}, 3, {sT2}
    s_lshl_b32 {sT2}, {sW}, 3
    s_add_u32 {sT2}, {sT2}, {MLB}
    v_and_b32 {vMLw}, 3, {vL}
    v_lshl_add_u32 {vMLw}, {vMLw}, 6, {sT2}
    s_lshl_b32 {sT2}, {sW}, 6
    s_add_u32 {sT2}, {sT2}, {MLB}
    v_and_b32 {vMLr}, 7, {vL}
    v_lshl_add_u32 {vMLr}, {vMLr}, 3, {sT2}
    v_lshlrev_b32 {vR4c}, 2, {vC}
    v_lshl_add_u32 {vR4c}, {t2}, 7, {vR4c}
    v_add_u32 {vR4c}, {RQC}, {vR4c}
    ; x staging
    s_lshl_b32 {sT2}, {sW}, 7
    s_add_u32 {sT2}, {sT2}, {XB}
    v_lshl_add_u32 {vXw}, {t3}, 10, {sT2}
    v_lshl_add_u32 {vXw}, {vC}, 3, {vXw}
    v_lshl_add_u32 {vXw}, {t2}, 2, {vXw}
    v_min_u32 {vXr}, 2, {vC}
    v_lshl_add_u32 {vXr}, {vXr}, 10, {sT2}
    v_lshl_add_u32 {vXr}, {vKG}, 4, {vXr}
    v_lshlrev_b32 {t5}, 2, {t3}
    v_cmp_gt_u32 vcc, 8, {vC}
    v_cndmask_b32 {t5}, 8, {t5}, vcc
    v_and_b32 {vGS}, 7, {vL}
    v_lshlrev_b32 {vGS}, 8, {vGS}
    v_lshl_add_u32 {vGS}, {t3}, 4, {vGS}
    v_add_u32 {vGS}, {vGS}, {t5}
    v_add_u32 {vGS}, {RQC + 192}, {vGS}
    v_lshlrev_b32 {t5}, 1, {vC}
    v_lshl_add_u32 {t5}, {t2}, 5, {t5}
    s_lshl_b32 {sT2}, {sB}, 10
    s_lshl_b32 {sT3}, {sS}, 6
    s_add_u32 {sT2}, {sT2}, {sT3}
    s_add_u32 {sT2}, {sT2}, {XB}
    v_add_u32 {aRes}, {sT2}, {t5}
    s_lshl_b32 {sT1}, {sG}, 19                  ; wo: (512g + 64(w&3))*1024 + s*64
    s_and_b32 {sT2}, {sW}, 3
    s_lshl_b32 {sT2}, {sT2}, 16
    s_add_u32 {sT1}, {sT1}, {sT2}
    s_lshl_b32 {sT2}, {sS}, 6
    s_add_u32 {sT1}, {sT1}, {sT2}""")
    srd(sWo, 12, sT1, 4194304)
    srd(sOut, 22, None, 2048)
    a(f"""    s_mul_i32 {sT1}, {sG}, 14
    s_min_u32 {sT2}, {sIdx}, 13
    s_add_u32 {sT1}, {sT1}, {sT2}
    s_lshl_b32 {sT1}, {sT1}, 5
    s_mul_i32 {sT2}, {sW}, {64*3584}
    s_add_u32 {sT1}, {sT1}, {sT2}""")
    srd(sWg, 16, sT1, 1835008)
    srd(sWu, 18, sT1, 1835008)
    a(f"""    s_mul_i32 {sT1}, {sG}, 7
    s_min_u32 {sT2}, {sW}, 6
    s_add_u32 {sT1}, {sT1}, {sT2}
    s_lshl_b32 {sT1}, {sT1}, 15
    s_lshl_b32 {sT2}, {sIdx}, 5
    s_add_u32 {sT1}, {sT1}, {sT2}""")
    srd(sWd, 20, sT1, 1835008)
    a(f"""    s_cmp_lt_u32 {sW}, 4
    s_cbranch_scc1 L_joined
    s_cmp_eq_u32 {sW}, 7
    s_cbranch_scc0 L_young2""")
    b0, b1, bx, by = t0, t1, t2, t5
    a(f"""    v_mov_b32 {v(DD)}, 0x3f803f80
    v_mov_b32 {v(DD+1)}, 0x3f803f80
    v_mov_b32 {v(DD+2)}, 0x3f803f80
    v_mov_b32 {v(DD+3)}, 0x3f803f80
    v_lshlrev_b32 {b0}, 4, {vL}
    v_add_u32 {b0}, {ONES}, {b0}
    ds_write_b128 {b0}, {vr(DD,4)}
    v_subrev_u32 {b0}, {sM0}, {vT0}
    v_xor_b32 {b1}, 32, {b0}
    s_lshl_b32 {sT2}, {sKh}, 9
    v_subrev_u32 {bx}, {7*128}, {vXr}
    v_add_u32 {bx}, {sT2}, {bx}
    v_xor_b32 {by}, 512, {bx}
    v_mov_b32 {t3}, {QL + 1028}""")
    if o["esmall"]:
        a(f"    s_waitcnt lgkmcnt(0)\n    s_barrier\n    ds_read_b32 {vEp}, {t3}")
    else:
        a(f"""    s_waitcnt vmcnt(0)
    v_add_u32 {vEp}, {TAG_STEP}, {vEp}
    ds_write_b32 {t3}, {vEp}
    s_waitcnt lgkmcnt(0)
    s_barrier""")
    assert XB % 1024 == 0
    def q1_reads(k):
        if k == 4:
            a(f"    v_add_u32 {b0}, {4*WVS}, {b0}\n    v_add_u32 {b1}, {4*WVS}, {b1}")
        off = (k & 3) * WVS + T_WQ
        A, B = WB + 8 * (k & 1), XO + 8 * (k & 1)
        for ct in range(2):
            for jj in range(2):
                a(f"    ds_read_b64_tr_b16 {vr(A+4*ct+2*jj,2)}, {(b0, b1)[ct]} offset:{off + 1024*jj}")
        a(f"    ds_read_b128 {vr(B,4)}, {bx} offset:{64*k}")
        a(f"    ds_read_b128 {vr(B+4,4)}, {by} offset:{64*k}")
    q1_reads(0); q1_reads(1)
    D0, D1, DS = DD, DD + 12, DD + 4
    for k in range(8):
        a(f"    s_waitcnt lgkmcnt({6 if k < 7 else 0})")
        A, B = WB + 8 * (k & 1), XO + 8 * (k & 1)
        c = lambda r: vr(r, 4) if k else "0"
        a(f"    v_mfma_f32_16x16x32_bf16 {vr(D0,4)}, {vr(A,4)}, {vr(B,4)}, {c(D0)}")
        a(f"    v_mfma_f32_16x16x32_bf16 {vr(DS,4)}, {vr(B,4)}, {vr(B,4)}, {c(DS)}")
        a(f"    v_mfma_f32_16x16x32_bf16 {vr(D1,4)}, {vr(A+4,4)}, {vr(B,4)}, {c(D1)}")
        a(f"    v_mfma_f32_16x16x32_bf16 {vr(DS,4)}, {vr(B+4,4)}, {vr(B+4,4)}, {vr(DS,4)}")
        if k + 2 < 8:
            q1_reads(k + 2)
    S2, S1, mu, rs = v(DD + 8), v(DD + 9), v(DD + 10), v(DD + 11)
    a(f"""    v_cmp_eq_u32 vcc, 0, {vC}
    v_readlane_b32 {sT0}, {v(DD+4)}, 0
    v_readlane_b32 {sT1}, {v(DD+5)}, 1
    v_readlane_b32 {sT2}, {v(DD+6)}, 0
    v_readlane_b32 {sT3}, {v(DD+6)}, 1
    v_mov_b32 {S2}, {sT0}
    v_mov_b32 {t3}, {sT1}
    v_mov_b32 {S1}, {sT2}
    v_mov_b32 {t4}, {sT3}
    v_cndmask_b32 {S2}, {t3}, {S2}, vcc
    v_cndmask_b32 {S1}, {t4}, {S1}, vcc""")
    ln_stats(S2, S1, mu, rs)
    a(f"""    s_lshl_b32 {sT2}, {sG}, 13
    s_lshl_b32 {sT3}, {sKh}, 11
    s_add_u32 {sT2}, {sT2}, {sT3}
    s_lshr_b32 {sT3}, {sIdx}, 1
    s_lshl_b32 {sT3}, {sT3}, 7
    s_add_u32 {sT2}, {sT2}, {sT3}
    s_add_u32 {sT2}, {sT2}, {W_Q1}
    v_lshlrev_b32 {t3}, 7, {vC}
    v_lshl_add_u32 {t3}, {vKG}, 4, {t3}
    v_add_u32 {t3}, {OB + 7*2048}, {t3}
    v_lshlrev_b32 {t4}, 4, {vL}
    v_add_u32 {t1}, {OB + 7*2048}, {t4}
    v_lshrrev_b32 {t0}, 3, {vL}
    v_mul_u32_u24 {t0}, {4096 - 128}, {t0}
    v_add_u32 {t0}, {t0}, {t4}""")
    for ct, D in enumerate((D0, D1)):
        P4 = XO + 4 * ct
        for r in range(4):
            a(f"    v_mul_f32_dpp {v(DD+4+r)}, {v(D+r)}, {mu} quad_perm:[2,2,2,2] {DPP}")
        for r in range(4):
            a(f"    v_sub_f32 {v(D+r)}, {v(D+r)}, {v(DD+4+r)}")
            a(f"    v_mul_f32 {v(D+r)}, {v(D+r)}, {rs}")
        a(f"""    v_cvt_pk_bf16_f32 {v(P4)}, {v(D)}, {v(D+1)}
    v_cvt_pk_bf16_f32 {v(P4+2)}, {v(D+2)}, {v(D+3)}
    v_add_u32 {v(P4+1)}, {sXcc}, {vEp}
    v_add_u32 {v(P4+3)}, {sXcc}, {vEp}""")
    a(f"""    ds_write_b128 {t3}, {vr(XO,4)}
    ds_write_b128 {t3}, {vr(XO+4,4)} offset:64
    ds_read_b128 {vr(XO+8,4)}, {t1}
    s_mov_b64 exec, 0xffff
    s_waitcnt lgkmcnt(0)""")
    if not o["x_nopub"]:
        a(f"    buffer_store_dwordx4 {vr(XO+8,4)}, {t0}, {sWS}, {sT2} offen sc1")
    execm("-1")
    stamp(3)
    a("    s_setprio 0")
    a("    s_branch L_young3\nL_young2:")
    if o["touch"]:
        a("    s_mov_b64 exec, 1")
        groups = [[], [], []]
        if "v" in o["touch"]: groups[0].append(sV)
        if "w" in o["touch"]: groups[0].append(sWo); groups[1] += [sWg, sWu]; groups[2].append(sWd)
        if "o" in o["touch"]: groups[2].append(sOut)
        for k, grp in enumerate(groups):
            a(f"    s_cmp_eq_u32 {sW}, {4 + k}\n    s_cbranch_scc0 L_tc{k}")
            for d in grp:
                a(f"    buffer_load_dword {vDum}, off, {d}, 0")
            a(f"L_tc{k}:")
        a("    s_mov_b64 exec, -1")
    if not o["b1first"]:
        a("    s_barrier")
    a("L_young3:")
    for i in range(16):
        kload(i)
    a("    s_branch L_vloads\nL_joined:")

    def wo_own(lo=0, hi=4):
        if lo == hi:
            return
        r64_addr(10)
        a(f"    s_lshr_b32 {sT3}, {sW}, 2\n    s_lshl_b32 {sT3}, {sT3}, 18")
        for m, so in list(enumerate((0, 4096, 32768, 36864)))[lo:hi]:
            a(f"    s_add_u32 {sT2}, {sT3}, {so}")
            dma(sWo, T_WO + 1024 * m, sT2)
    def late_loads(y=None):
        if o["woown"]:
            wo_own()
        else:
          r64_addr(10)
        for half in range(0 if o["woown"] else 2):
            for m, so in enumerate((0, 4096, 32768, 36864)):
                a(f"    s_mov_b32 {sT2}, {so + half * 262144}")
                dma(sWo, T_WO + 1024 * m + (half - (o["wo_at"] == "Y" or bool(y))) * 4 * WVS, sT2)
        if o["pf_at"] == "wo":
            pf_load(y)
    def pf_load(y=None):
        t = v(TT + 7)
        if not o["l2pf"]:
            return
        if o["wdlate"]:
            a(f"""    s_sub_u32 {sT2}, {sW}, 1
    s_lshl1_add_u32 {sT1}, {sIdx}, {sT2}
    s_cmp_lt_u32 {sT2}, 2
    s_cselect_b32 {sT1}, {sT1}, 96""")
        else:
          a(f"""    s_mul_i32 {sT1}, {sIdx}, 3                  ; waves 1..3 of every workgroup
    s_sub_u32 {sT2}, {sW}, {5 if ((o["wo_at"] == "Y" or y) and o["pf_at"] == "wo") else 1}
    s_add_u32 {sT1}, {sT1}, {sT2}
    s_add_u32 {sT1}, {sT1}, 1
    s_cmp_lt_u32 {sT2}, 3
    s_cselect_b32 {sT1}, {sT1}, 97
    s_sub_u32 {sT1}, 96, {sT1}""")
        a(f"""    s_cmp_lt_u32 {sT1}, 64
    s_cbranch_scc0 L_pf_d{y or ''}
    s_and_b32 {sT2}, {sT1}, 31
    s_mul_i32 {sT2}, {sT2}, {16*3584}
    s_mul_i32 {sT3}, {sG}, 448
    s_add_u32 {sT2}, {sT2}, {sT3}
    v_lshrrev_b32 {t}, 2, {vL}
    v_mul_u32_u24 {t}, 3584, {t}
    v_and_b32 {vA}, 3, {vL}
    v_lshl_add_u32 {t}, {vA}, 7, {t}
    s_cmp_lt_u32 {sT1}, 32
    s_cselect_b32 s40, s16, s18
    s_cselect_b32 s41, s17, s19
    s_mov_b32 s42, 1835008
    s_branch L_pf_go{y or ''}
L_pf_d{y or ''}:
    s_sub_u32 {sT2}, {sT1}, 64
    s_lshl_b32 {sT2}, {sT2}, 13
    s_mul_i32 {sT3}, {sG}, {224*1024}
    s_add_u32 {sT2}, {sT2}, {sT3}
    v_lshlrev_b32 {t}, 7, {vL}
    s_mov_b32 s40, s20
    s_mov_b32 s41, s21
    s_cmp_lt_u32 {sT1}, {0 if o["wdlate"] else 92}
    s_cselect_b32 s42, 1835008, 0
L_pf_go{y or ''}:
    s_mov_b32 s43, 0x20000
    buffer_load_dword {vDum}, {t}, {sWq}, {sT2} offen {wf}""")
    def wd_load():
        a(f"    v_lshl_add_u32 {vA}, {vDma}, 10, {vHalf}")
        dma(sWd, T_WD, "0")
    nD = 0

    def wo_read():
        for e in range(2):
            for ct in range(2):
                for j in range(2):
                    a(f"    ds_read_b64_tr_b16 {vr(WB+8*e+4*ct+2*j,2)}, {(vT0, vT1)[ct]} offset:{T_WO + 1024*(2*e+j)}")

    a(f"""    s_cmp_eq_u32 {sW}, {99 if o["x_nogather"] else 1}
    s_cbranch_scc0 L_h2
    v_mov_b32 {t5}, {QL + 1028}
    ds_read_b32 {vEp}, {t5}
    s_lshr_b32 {sT2}, {sO}, 4
    s_lshl_b32 {sT2}, {sT2}, 12
    s_add_u32 {sT2}, {sT2}, {W_Q1}
    v_lshl_add_u32 {t5}, {vL}, 4, {sT2}
L_hq:""")
    for i in range(4):
        a(f"    buffer_load_dwordx4 {vr(DD+4*i,4)}, {t5}, {sWS}, 0 offen offset:{1024*i} sc1")
    a("    s_waitcnt vmcnt(0) lgkmcnt(0)")
    for r in range(DD + 1, DD + 16, 2):
        a(f"    v_sub_u32 {v(r)}, {v(r)}, {vEp}")
    a(f"""    v_max3_u32 {CHK}, {v(DD+1)}, {v(DD+3)}, {v(DD+5)}
    v_max3_u32 {CHK}, {v(DD+7)}, {v(DD+9)}, {CHK}
    v_max3_u32 {CHK}, {v(DD+11)}, {v(DD+13)}, {CHK}
    v_max_u32 {CHK}, {v(DD+15)}, {CHK}
    v_cmp_lt_u32 vcc, 15, {CHK}""")
    spin_tail("L_hq")
    a(f"""    v_cmp_ne_u32 vcc, {sXcc}, {v(DD+1)}
    v_cmp_ne_u32 s[94:95], {sXcc}, {v(DD+9)}""")
    add_bf16x8(XO, [v(DD + 2 * i) for i in range(4)], [v(DD + 8 + 2 * i) for i in range(4)])
    a(f"""    v_cmp_ne_u32 s[8:9], {sXcc}, {v(DD+5)}
    s_or_b64 s[94:95], s[94:95], vcc
    v_cmp_ne_u32 vcc, {sXcc}, {v(DD+13)}
    v_bfe_u32 {t5}, {vL}, 1, 2
    v_lshlrev_b32 {t5}, 8, {t5}
    v_bfe_u32 {t4}, {vL}, 3, 2
    v_lshl_add_u32 {t5}, {t4}, 6, {t5}
    v_lshrrev_b32 {t4}, 5, {vL}
    v_lshl_add_u32 {t5}, {t4}, 4, {t5}
    v_and_b32 {t4}, 1, {vL}
    v_lshl_add_u32 {t5}, {t4}, 3, {t5}
    v_add_u32 {t5}, {QL}, {t5}
    s_or_b64 s[94:95], s[94:95], s[8:9]
    s_or_b64 vcc, vcc, s[94:95]
    s_cselect_b32 {sT1}, 1, 3
    v_mov_b32 {v(DD+4)}, {sT1}
    ds_write_b64 {t5}, {vr(XO,2)}
    ds_write_b64 {t5}, {vr(XO+2,2)} offset:32
    v_mov_b32 {t5}, {QL + 1024}
    ds_write_b32 {t5}, {v(DD+4)}""")
    stamp(4)
    a(f"""    s_cmp_eq_u32 {sIdx}, 0
    s_cbranch_scc0 L_nolead
    s_lshl_b32 {sT1}, {sG}, 7
    s_add_u32 {sT1}, {sT1}, {W_GF}
    v_mov_b32 {v(DD)}, {vEp}
    v_mov_b32 {v(DD+1)}, {vEp}
    v_mov_b32 {v(DD+2)}, {vEp}
    v_mov_b32 {v(DD+3)}, {vEp}
    v_lshlrev_b32 {t5}, 4, {vL}
    s_mov_b64 exec, 0xff
    buffer_store_dwordx4 {vr(DD,4)}, {t5}, {sWS}, {sT1} offen sc1
    s_mov_b64 exec, -1
L_nolead:""")
    a("L_h2:")
    if o["klin"]:
        assert o["qkearly"]
        a(f"    s_cmp_lt_u32 {sW}, 4\n    s_cbranch_scc0 L_h3")
        kshuffle()
        if o["woown"]:
            a("    s_waitcnt vmcnt(0)")
        a("L_h3:")
    a(f"""    v_lshlrev_b32 {t0}, 4, {vL}
    v_add_u32 {t0}, {QL}, {t0}
    v_mov_b32 {t2}, {QL + 1024}
    s_cmp_lt_u32 {sW}, 4
    s_cbranch_scc1 L_qf
    {"s_barrier" if o["wo_at"] == "X" else ""}""")
    if o["woown"]:
        wo_own(0, o["wox"])
    a(f"""
    {"s_cmp_eq_u32 " + sMode + ", 1" if o["qkearly"] else ""}
    {"s_cbranch_scc1 L_pv1b" if o["qkearly"] else ""}
L_qf:
    ds_read_b32 {t1}, {t2}
    s_waitcnt lgkmcnt(0)
    v_cmp_eq_u32 vcc, {77 if o["x_nogather"] else 0}, {t1}""")
    spin_tail("L_qf")
    if o["qkearly"]:
        tail("L_mid:")
        into(tail, kshuffle)
        tail(f"""    v_mov_b32 {t2}, {QL + 1024}
    ds_read_b32 {t1}, {t2}
    v_lshlrev_b32 {t0}, 4, {vL}
    v_add_u32 {t0}, {QL}, {t0}
    s_waitcnt lgkmcnt(0)
    v_cmp_eq_u32 vcc, 0, {t1}
    s_cbranch_vccnz L_vrest
    s_mov_b32 {sMode}, 1
    s_branch L_qf_ok""")
    a(f"""    ds_read_b128 {vr(XO,4)}, {t0}
    v_readfirstlane_b32 {sPure}, {t1}
    s_lshr_b32 {sPure}, {sPure}, 1
    s_waitcnt lgkmcnt(0)""")
    stamp(6)
    a("    s_branch L_attn")
    a(f"L_q:\n    v_xor_b32 {vA}, 32, {vTq}")
    for e in range(2):
        for ct in range(2):
            for jj in range(2):
                a(f"    ds_read_b64_tr_b16 {vr(WB+8*e+4*ct+2*jj,2)}, {(vTq, vA)[ct]} offset:{e*WVS + T_WQ + 1024*jj}")
    a(f"""    s_lshl_b32 {sT1}, {sKh}, 10
    v_add_u32 {v(TT+16)}, {sT1}, {vR4}
    v_add_u32 {v(TT+17)}, {sT1}, {vR4c}
    v_bfe_u32 {v(TT+15)}, {vL}, 2, 1
    v_lshlrev_b32 {v(TT+15)}, 10, {v(TT+15)}
    v_bfe_u32 {t0}, {vL}, 3, 2
    v_lshl_add_u32 {v(TT+15)}, {t0}, 5, {v(TT+15)}
    v_and_b32 {t0}, 3, {vL}
    v_lshl_add_u32 {v(TT+15)}, {t0}, 3, {v(TT+15)}
    v_lshrrev_b32 {t0}, 5, {vL}
    v_lshl_add_u32 {v(TT+15)}, {t0}, 2, {v(TT+15)}
    s_lshl_b32 {sT2}, {sW}, 7
    s_add_u32 {sT2}, {sT2}, {XB}
    v_add_u32 {v(TT+15)}, {sT2}, {v(TT+15)}
    s_lshr_b32 {sT1}, {sW}, 2
    s_mov_b32 {sL}, {LSTR}
    s_mov_b32 {sLO}, {OSTR}""")
    if "d" in o["hint"]:
        a(f"    s_cmp_eq_u32 {sW}, 0\n    s_cbranch_scc0 L_q0")
        hint_wait("L_hd")
        a("L_q0:")
    ackwait()
    a("    s_barrier")
    stamp(15)
    gather_x(aZ, "0", "L_pd", lambda: stamp(17), None, v(TT + 15))
    if not o["inl"]:
        a(f"    s_cmp_eq_u32 {sT1}, {sKh}\n    s_cbranch_scc0 L_ql")
    a(f"""    s_waitcnt lgkmcnt(1)
    v_mfma_f32_16x16x32_bf16 {vr(DD,4)}, {vr(WB,4)}, {vr(XO,4)}, 0
    v_mfma_f32_16x16x32_bf16 {vr(DD+4,4)}, {vr(WB+4,4)}, {vr(XO,4)}, 0
    v_mfma_f32_16x16x32_bf16 {vr(DD+8,4)}, {vr(XO,4)}, {vr(XO,4)}, 0
    s_waitcnt lgkmcnt(0)
    v_mfma_f32_16x16x32_bf16 {vr(DD,4)}, {vr(WB+8,4)}, {vr(XO+4,4)}, {vr(DD,4)}
    v_mfma_f32_16x16x32_bf16 {vr(DD+4,4)}, {vr(WB+12,4)}, {vr(XO+4,4)}, {vr(DD+4,4)}
    v_mfma_f32_16x16x32_bf16 {vr(DD+8,4)}, {vr(XO+4,4)}, {vr(XO+4,4)}, {vr(DD+8,4)}""")
    if not o["inl"]:
      tail(f"""L_ql:
    s_waitcnt lgkmcnt(1)
    v_mfma_f32_16x16x32_bf16 {vr(DD+8,4)}, {vr(XO,4)}, {vr(XO,4)}, 0
    s_waitcnt lgkmcnt(0)
    v_mfma_f32_16x16x32_bf16 {vr(DD+8,4)}, {vr(XO+4,4)}, {vr(XO+4,4)}, {vr(DD+8,4)}
    s_nop 6
    s_branch L_qs""")
    two_tile_write(RQ)
    a("L_qs:")
    stats_write(RQ)
    a(f"    s_cmp_eq_u32 {sW}, 0\n    s_cbranch_scc0 L_q2")
    S = two_tile_reduce(RQ, 4, v(TT + 16), v(TT + 17))
    pack16(DD + 8, S, v(DD + 6))
    execm(m16)
    local_store(f"buffer_store_dwordx4 {vr(DD+8,4)}, {pQ}, {sWS}, 0 offen", "L_sq")
    execm("-1")
    a(f"    s_cmp_eq_u32 {sG}, 0\n    s_cbranch_scc1 L_res2\nL_q2:")
    tail(f"""L_res2:
    ds_read_u16 {vRes}, {aRes}
    s_waitcnt lgkmcnt(0)
    v_lshlrev_b32 {vRes}, 16, {vRes}
    s_branch L_q2""")
    if o["qbar"]:
        a("    s_barrier")
    stamp(18)
    poll([(f"buffer_load_dwordx4 {vr(DD+4*i,4)}, {aQ2}, {sWS}, 0 offen offset:{1024*i} sc1", [v(DD + 4 * i + k) for k in range(4)]) for i in range(2)], "L_pq",
         after={0: lambda: [a(f"    v_lshlrev_b32 {v(TT+2*i)}, 16, {v(DD+i)}\n    v_and_b32 {v(TT+2*i+1)}, 0xffff0000, {v(DD+i)}") for i in range(4)]} if o["spec"] else None)
    stamp(19)
    if o["spec"]:
        for i in range(4):
            y = DD + 8 + 2 * (i & 1)
            a(f"""    v_lshlrev_b32 {v(y)}, 16, {v(DD+4+i)}
    v_and_b32 {v(y+1)}, 0xffff0000, {v(DD+4+i)}
    v_pk_add_f32 {vr(y,2)}, {vr(y,2)}, {vr(TT+2*i,2)}
    v_cvt_pk_bf16_f32 {v(XO+i)}, {v(y)}, {v(y+1)}""")
    else:
        add_bf16x8(XO, [v(DD + i) for i in range(4)], [v(DD + 4 + i) for i in range(4)])
    a("L_attn:")
    s = [v(TT + i) for i in range(4)]
    def qk(u, rho):
        t = (u + rho) & 3
        c = vr(DD + 4 * u, 4) if rho else "0"
        a(f"    v_mfma_f32_16x16x32_bf16 {vr(DD+4*u,4)}, {vr(KB+16*u+4*t,4)}, {vr(XO+4*rho,4)}, {c}")
    def rot(rho):
        for i in range(4):
            a(f"    v_mov_b32_dpp {v(XO+4*rho+i)}, {v(XO+i)} row_ror:{16-4*rho} {DPP}")
    def merge(u):
        for r in range(4):
            a(f"    v_mov_b32_dpp {s[r]}, {v(DD+4*u+r)} quad_perm:[0,1,2,3] row_mask:0xf bank_mask:{1<<u}")
    for u in (1, 2, 3):
        qk(u, 0); rot(u)
    for u in (1, 2, 3):
        for rho in (1, 2, 3):
            qk(u, rho)
    qk(0, 0); qk(0, 1); merge(1); qk(0, 2); merge(2); qk(0, 3); merge(3); merge(0)
    m, lsum, tx = v(TT + 4), v(TT + 5), v(TT + 6)
    a(f"""    v_max3_f32 {m}, {s[0]}, {s[1]}, {s[2]}
    v_max_f32 {m}, {m}, {s[3]}
    v_max_f32_dpp {m}, {m}, {m} row_ror:4 {DPP}
    v_max_f32_dpp {m}, {m}, {m} row_ror:8 {DPP}
    v_mov_b32 {tx}, {m}
    v_permlane16_swap_b32 {m}, {tx}
    v_max_f32 {m}, {m}, {tx}
    v_mov_b32 {tx}, {m}
    v_permlane32_swap_b32 {m}, {tx}
    v_max_f32 {m}, {m}, {tx}
    v_mul_f32 {m}, {m}, {vScale}""")
    for r in range(4):
        a(f"    v_fma_f32 {s[r]}, {s[r]}, {vScale}, -{m}")
    for r in range(4):
        a(f"    v_exp_f32 {s[r]}, {s[r]}")
    P = TT + 8
    a(f"""    s_cmp_eq_u32 {sL}, 0
    v_cvt_pk_bf16_f32 {v(P)}, {s[0]}, {s[1]}
    v_cvt_pk_bf16_f32 {v(P+1)}, {s[2]}, {s[3]}
    s_cbranch_scc1 L_pv1""")
    aE, aOd = DD, DD + 4
    def pv(n, out):
        c1 = vr(aE, 4) if n else "0"
        c2 = vr(aOd, 4) if n else "0"
        out(f"    v_mfma_f32_4x4x4_16b_bf16 {vr(aE,4)}, {vr(P,2)}, {vr(VB+4*n,2)}, {c1} cbsz:4 abid:{n}")
        out(f"    v_mfma_f32_4x4x4_16b_bf16 {vr(aOd,4)}, {vr(P,2)}, {vr(VB+4*n+2,2)}, {c2} cbsz:4 abid:{n}")
    lred = [f"v_pk_add_f32 {vr(TT,2)}, {vr(TT,2)}, {vr(TT+2,2)}",
            f"v_add_f32 {lsum}, {s[0]}, {s[1]}",
            f"v_add_f32_dpp {lsum}, {lsum}, {lsum} row_ror:4 {DPP}",
            f"v_add_f32_dpp {lsum}, {lsum}, {lsum} row_ror:8 {DPP}",
            f"v_mov_b32 {tx}, {lsum}",
            f"v_permlane16_swap_b32 {lsum}, {tx}",
            f"v_add_f32 {lsum}, {lsum}, {tx}",
            f"v_mov_b32 {tx}, {lsum}",
            f"v_permlane32_swap_b32 {lsum}, {tx}",
            f"v_add_f32 {lsum}, {lsum}, {tx}",
            f"ds_write_b64 {vMLw}, {vr(TT+4,2)}"]
    stampL(7)
    for n in range(16):
        pv(n, a)
        if n < 15:
            a("    " + (lred[n] if n < len(lred) else "s_nop 0"))
    a("    s_nop 2\nL_pv3:")
    tail("L_pv1:")
    for l in lred:
        tail("    " + l)
    if o["qkearly"]:
        tail(f"    s_cmp_eq_u32 {sMode}, 1\n    s_cbranch_scc1 L_vrest\nL_pv1b:")
    def perms(n):
        b = VB + 4 * n
        tail(f"    s_waitcnt vmcnt({min(63, 60 - 4*n + (o['wox'] if o['woown'] else 0))})")
        tail(f"    v_perm_b32 {v(b)}, {v(b+4)}, {v(b+2)}, {sPlo}")
        tail(f"    v_perm_b32 {v(b+1)}, {v(b+5)}, {v(b+3)}, {sPlo}")
        tail(f"    v_perm_b32 {v(b+2)}, {v(b+4)}, {v(b+2)}, {sPhi}")
        tail(f"    v_perm_b32 {v(b+3)}, {v(b+5)}, {v(b+3)}, {sPhi}")
    perms(0)
    for n in range(16):
        if n < 15:
            perms(n + 1)
        pv(n, tail)
    tail("    s_nop 2\n    s_branch L_pv3")
    stampL(8)
    if o["x_stop"] == 8:
        a(f"    s_cmp_lt_u32 {sW}, 4\n    s_cbranch_scc0 L_done\n    {'s_barrier' if o['wo_at'] == 'X' else ''}\n    s_branch L_done")
    a(f"    s_or_b32 {sT1}, {sL}, {sW}\n    s_cmp_lt_u32 {sT1}, 4")
    for h in range(4):
        ad = vOw if h < 2 else vOw2
        a(f"    ds_write2_b32 {ad}, {v(aE+h)}, {v(aOd+h)} offset0:{(h&1)*128} offset1:{(h&1)*128+1}")
    a(f"""    s_cbranch_scc1 L_late
L_nolate:
    s_cmp_lt_u32 {sW}, 4
    s_waitcnt lgkmcnt(0)
    s_barrier
    s_cbranch_scc0 L_yw
    ds_read_b64 {vr(TT,2)}, {vMLr}""")
    main = a
    a = tail
    a(f"L_late:\n    v_mov_b32 {t5}, {QL + 1028}\n    ds_read_b32 {vEp}, {t5}")
    if o["wo_at"] == "X":
        a("    s_barrier")
        stamp(1)
        if o["xy"]:
            a(f"    s_cmp_lt_u32 {sXcc}, {o['xy']}\n    s_cbranch_scc1 L_xy1")
        late_loads()
        if o["xy"]:
            a("L_xy1:")
    a(f"""    s_cmp_eq_u32 {sG}, 0
    s_cbranch_scc0 L_nolate
    ds_read_u16 {vRes}, {aRes}
    s_waitcnt lgkmcnt(0)
    v_lshlrev_b32 {vRes}, 16, {vRes}
    s_branch L_nolate""")
    a("L_yw:")
    if o["woown"] and o["wox"] < 4:
        a(f"    s_cmp_eq_u32 {sL}, 0\n    s_cbranch_scc0 L_wo")
        wo_own(o["wox"], 4)
    if o["xy"]:
        a(f"    s_cmp_eq_u32 {sL}, 0\n    s_cbranch_scc0 L_wo\n    s_cmp_lt_u32 {sXcc}, {o['xy']}\n    s_cbranch_scc0 L_xy2")
        late_loads("y")
        a("L_xy2:")
    if o["wo_at"] == "Y":
        a(f"    s_cmp_eq_u32 {sL}, 0\n    s_cbranch_scc0 L_wo")
        stamp(1)
        late_loads()
    a(f"""    s_or_b32 {sT1}, {sL}, 7
    s_cmp_eq_u32 {sT1}, {sW}
    s_cbranch_scc0 L_wo""")
    slot_addrs()
    c0 = TT + 8
    for i in range(4):
        a(f"    v_mov_b32 {v(c0+i)}, -1")
    a(f"""    s_mov_b32 exec_lo, 0
    s_mov_b32 exec_hi, 0xff00ff00
    buffer_store_dwordx4 {vr(c0,4)}, {cF}, {sWS}, 0 offen sc1
    s_cmp_eq_u32 {sPure}, {1 if (o["clr2"] == "plain" and not o["force_slow"]) else 2}""")
    for k, fl in enumerate(("sc1", "")):
        a(f"""    {"s_cbranch_scc1 L_mk1" if k == 0 else "L_mk1:"}
    s_mov_b32 exec_lo, 0xff00ff00
    s_mov_b32 exec_hi, 0
    buffer_store_dwordx4 {vr(c0,4)}, {cF}, {sWS}, 0 offen {fl}
    s_mov_b64 exec, -1
    buffer_store_dwordx4 {vr(c0,4)}, {cO}, {sWS}, {sT3} offen {fl}
    buffer_store_dwordx4 {vr(c0,4)}, {cQ}, {sWS}, 0 offen {fl}
    {"s_branch L_mk2" if k == 0 else "L_mk2:"}""")
    if o["hint"]:
        a(f"""    s_lshl_b32 {sT1}, {sG}, 7
    s_add_u32 {sT1}, {sT1}, {W_HT}
    v_lshlrev_b32 {t0}, 10, {vL}
    s_mov_b64 exec, 15
    buffer_load_dword {vDum}, {t0}, {sWS}, {sT1} offen sc1
    s_mov_b64 exec, -1""")
    a(f"""    v_and_b32 {t0}, 7, {vL}
    v_lshlrev_b32 {t0}, 7, {t0}
    v_add_u32 {t0}, {W_GF + 4}, {t0}
L_gf:
    buffer_load_dword {t1}, {t0}, {sWS}, 0 offen sc1
    s_waitcnt vmcnt(0)
    v_cmp_ne_u32 vcc, {t1}, {vEp}
    s_cbranch_vccz L_wo
    s_sub_u32 {sCnt}, {sCnt}, 1
    s_cbranch_scc0 L_gf
    s_mov_b32 {sCnt}, 0
    s_branch L_wo""")
    a = main
    for i in range(8):
        a(f"    ds_read_b64 {vr(XO+2*i,2)}, {vOr} offset:{i*2048}")
    mm, ll, M, Lr, f = v(TT), v(TT + 1), v(TT + 2), v(TT + 3), v(TT + 4)
    a(f"""    s_waitcnt lgkmcnt(8)
    v_max_f32_dpp {M}, {mm}, {mm} row_ror:4 {DPP}
    v_max_f32_dpp {M}, {M}, {M} row_ror:2 {DPP}
    v_max_f32_dpp {M}, {M}, {M} row_ror:1 {DPP}
    v_sub_f32 {f}, {mm}, {M}
    v_exp_f32 {f}, {f}
    v_mul_f32 {Lr}, {f}, {ll}""")
    o0, o1 = v(TT + 5), v(TT + 6)
    lr2 = [f"v_add_f32_dpp {Lr}, {Lr}, {Lr} row_ror:4 {DPP}",
           f"v_add_f32_dpp {Lr}, {Lr}, {Lr} row_ror:2 {DPP}",
           f"v_add_f32_dpp {Lr}, {Lr}, {Lr} row_ror:1 {DPP}"]
    for i in range(8):
        op = "v_mul_f32_dpp" if i == 0 else "v_fmac_f32_dpp"
        if i in (0, 4):
            a(f"    s_waitcnt lgkmcnt({4 - i})")
        a(f"    {op} {o0}, {f}, {v(XO+2*i)} row_newbcast:{i} {DPP}")
        a(f"    {op} {o1}, {f}, {v(XO+2*i+1)} row_newbcast:{i} {DPP}")
        if i < 3:
            a("    " + lr2[i])
    a(f"    v_cvt_pk_bf16_f32 {o0}, {o0}, {o1}")
    local_store(f"buffer_store_dword {o0}, {pO}, {sWS}, {sLO} offen\n    s_mov_b64 exec, 1\n    buffer_store_dwordx2 {vr(TT+2,2)}, {pML}, {sWS}, {sL} offen", "L_so")
    execm("-1")
    if o["inl"]:
        a("L_wo:\n    s_barrier")
    else:
        a(f"L_wo:\n    s_cmp_eq_u32 {sL}, 0\n    s_cbranch_scc1 L_wo0\nL_wo1:\n    s_barrier")
    aloads = [(f"buffer_load_dwordx2 {vr(TT,2)}, {aML}, {sWS}, {sL} offen sc1", [v(TT), v(TT + 1)]),
              (f"buffer_load_dwordx4 {vr(XO,4)}, {aO}, {sWS}, {sLO} offen sc1", [v(XO + i) for i in range(4)]),
              (f"buffer_load_dwordx4 {vr(XO+4,4)}, {aO}, {sWS}, {sLO} offen offset:1024 sc1", [v(XO + 4 + i) for i in range(4)])]
    if o["inl"]:
        pass
    elif o["aover"]:
        tail("L_wo0:\n    s_barrier")
        if o["pf_at"] == "poll":
            into(tail, poll, aloads, "L_pa0", pf_load, None, 1, "L_pa1")
        into(tail, poll, aloads, "L_pa1")
        tail("    s_barrier")
        into(tail, wo_read)
        tail("    s_branch L_pa_ok")
    elif o["pf_at"] == "poll":
        tail("L_wo0:\n    s_waitcnt vmcnt(0)\n    s_barrier")
        into(tail, poll, aloads, "L_pa0", lambda: (pf_load(), wo_read()), None, 1, "L_pa")
    else:
        tail("L_wo0:\n    s_waitcnt vmcnt(0)\n    s_branch L_wo1")
    stampL(9)
    mm, ll, M, e_, Lt = v(TT), v(TT + 1), v(TT + 2), v(TT + 3), v(TT + 4)
    def wo_fac():
        a(f"""    v_max_f32_dpp {M}, {mm}, {mm} row_ror:8 {DPP}
    v_max_f32_dpp {M}, {M}, {M} row_ror:4 {DPP}
    v_max_f32_dpp {M}, {M}, {M} row_ror:2 {DPP}
    v_max_f32_dpp {M}, {M}, {M} row_ror:1 {DPP}
    v_sub_f32 {e_}, {mm}, {M}
    v_exp_f32 {e_}, {e_}
    v_mul_f32 {Lt}, {e_}, {ll}""")
    poll(aloads, "L_pa", wo_read, after={0: wo_fac} if o["spec"] else None)
    if o["inl"]:
        a(f"    s_cmp_eq_u32 {sL}, 0\n    s_cbranch_scc0 L_pa2\n    {'' if o['woown'] else 's_barrier'}")
        wo_read()
        if o["gue"]:
            a(f"""    s_cmp_lt_u32 {sIdx}, 14
    s_cbranch_scc0 L_pa2
    v_mul_u32_u24 {vA}, 3584, {vDma}
    v_add_u32 {vA}, {vA}, {vHalf}
    s_mov_b32 {sT1}, {32*3584}""")
            for srdn, off, so in ((sWg, T_FF, "0"), (sWg, T_FF + 1024, sT1), (sWu, T_FF + 2048, "0"), (sWu, T_FF + 3072, sT1))[:o["gue"]]:
                dma(srdn, off, so)
        a("L_pa2:")
    stampL(10)
    if o["pf_at"] == "afterA" or o["wd_at"] == "afterA":
        a(f"    s_cmp_eq_u32 {sL}, 0\n    s_cbranch_scc1 L_wo2a\nL_wo2:")
        tail("L_wo2a:")
        if o["pf_at"] == "afterA":
            into(tail, pf_load)
        if o["wd_at"] == "afterA":
            into(tail, wd_load)
        tail("    s_branch L_wo2")
    z0, z1 = v(TT + 5), v(TT + 6)
    if o["spec"]:
        a(f"""    s_waitcnt lgkmcnt(0)
    v_mfma_f32_16x16x32_bf16 {vr(DD,4)}, {vr(XO,4)}, {vr(WB,4)}, 0
    v_add_f32_dpp {Lt}, {Lt}, {Lt} row_ror:8 {DPP}
    v_mfma_f32_16x16x32_bf16 {vr(DD,4)}, {vr(XO+4,4)}, {vr(WB+8,4)}, {vr(DD,4)}
    v_mfma_f32_16x16x32_bf16 {vr(DD+4,4)}, {vr(XO,4)}, {vr(WB+4,4)}, 0
    v_add_f32_dpp {Lt}, {Lt}, {Lt} row_ror:4 {DPP}
    v_mfma_f32_16x16x32_bf16 {vr(DD+4,4)}, {vr(XO+4,4)}, {vr(WB+12,4)}, {vr(DD+4,4)}
    s_cmp_eq_u32 {sW}, 0
    v_add_f32_dpp {Lt}, {Lt}, {Lt} row_ror:2 {DPP}
    s_nop 1
    v_add_f32_dpp {Lt}, {Lt}, {Lt} row_ror:1 {DPP}
    v_rcp_f32 {Lt}, {Lt}""")
        for z, D in ((z0, DD), (z1, DD + 4)):
            for r in range(4):
                op = "v_mul_f32_dpp" if r == 0 else "v_fmac_f32_dpp"
                a(f"    {op} {z}, {e_}, {v(D+r)} row_newbcast:{r} {DPP}")
        a(f"""    v_permlane32_swap_b32 {z0}, {z1}
    v_add_f32 {z0}, {z0}, {z1}
    v_mul_f32 {z1}, {z0}, {Lt}
    v_mul_f32 {z0}, {z0}, {Lt}
    v_permlane16_swap_b32 {z0}, {z1}
    v_add_f32 {z0}, {z0}, {z1}
    ds_write_b32 {vW4}, {z0} offset:{RW - RQ}
    s_waitcnt lgkmcnt(0)
    s_barrier
    s_cbranch_scc0 L_roles""")
    else:
        mm, ll, M, e_, Lt = v(TT), v(TT + 1), v(TT + 2), v(TT + 3), v(TT + 4)
        a(f"""    v_max_f32_dpp {M}, {mm}, {mm} row_ror:8 {DPP}
    s_waitcnt lgkmcnt(0)
    v_mfma_f32_16x16x32_bf16 {vr(DD,4)}, {vr(XO,4)}, {vr(WB,4)}, 0
    v_max_f32_dpp {M}, {M}, {M} row_ror:4 {DPP}
    v_mfma_f32_16x16x32_bf16 {vr(DD+4,4)}, {vr(XO,4)}, {vr(WB+4,4)}, 0
    v_mfma_f32_16x16x32_bf16 {vr(DD,4)}, {vr(XO+4,4)}, {vr(WB+8,4)}, {vr(DD,4)}
    v_max_f32_dpp {M}, {M}, {M} row_ror:2 {DPP}
    v_mfma_f32_16x16x32_bf16 {vr(DD+4,4)}, {vr(XO+4,4)}, {vr(WB+12,4)}, {vr(DD+4,4)}
    s_nop 0
    v_max_f32_dpp {M}, {M}, {M} row_ror:1 {DPP}
    v_sub_f32 {e_}, {mm}, {M}
    v_exp_f32 {e_}, {e_}
    v_mul_f32 {Lt}, {e_}, {ll}""")
        z0, z1 = v(TT + 5), v(TT + 6)
        for r in range(4):
            op = "v_mul_f32_dpp" if r == 0 else "v_fmac_f32_dpp"
            a(f"    {op} {z0}, {e_}, {v(DD+r)} row_newbcast:{r} {DPP}")
            a(f"    {op} {z1}, {e_}, {v(DD+4+r)} row_newbcast:{r} {DPP}")
            a(f"    v_add_f32_dpp {Lt}, {Lt}, {Lt} row_ror:{8 >> r} {DPP}")
        a(f"""    s_cmp_eq_u32 {sW}, 0
    v_permlane32_swap_b32 {z0}, {z1}
    v_rcp_f32 {Lt}, {Lt}
    v_add_f32 {z0}, {z0}, {z1}
    v_mov_b32 {z1}, {z0}
    v_permlane16_swap_b32 {z0}, {z1}
    v_add_f32 {z0}, {z0}, {z1}
    v_mul_f32 {z0}, {z0}, {Lt}
    ds_write_b32 {vW4}, {z0} offset:{RW - RQ}
    s_waitcnt lgkmcnt(0)
    s_barrier
    s_cbranch_scc0 L_roles""")
    red8(vR4, (RW - RQ) // 256, TT)
    sum8(v(TT + 8), TT, extra=vRes)
    quad4(TT + 8)
    execm(mY)
    a(f"    buffer_store_dwordx4 {vr(TT+8,4)}, {pY}, {sWS}, {sL} offen sc1")
    if "b" in o["hint"]:
        execm("1")
        hint_post(0)
    execm("-1")
    a(f"""L_roles:
    s_cmp_lt_u32 {sIdx}, 14
    s_cbranch_scc0 L_nogu""")
    tail("L_nogu:")
    if o["wd_at"] == "afterY":
        tail(f"    s_cmp_eq_u32 {sL}, 0\n    s_cbranch_scc0 L_dn")
        if o["wdlate"]:
            t = v(TT + 7)
            tail(f"""    s_sub_u32 {sT1}, {sIdx}, 14
    s_sub_u32 {sT2}, {sW}, 1
    s_lshl1_add_u32 {sT1}, {sT1}, {sT2}
    s_cmp_lt_u32 {sT2}, 2
    s_cselect_b32 {sT1}, {sT1}, 28
    s_cmp_lt_u32 {sT1}, 28
    s_cselect_b32 s42, 1835008, 0
    s_lshl_b32 {sT2}, {sT1}, 13
    s_mul_i32 {sT3}, {sG}, {224*1024}
    s_add_u32 {sT2}, {sT2}, {sT3}
    v_lshlrev_b32 {t}, 7, {vL}
    s_mov_b32 s40, s20
    s_mov_b32 s41, s21
    s_mov_b32 s43, 0x20000
    buffer_load_dword {vDum}, {t}, {sWq}, {sT2} offen {wf}
    s_waitcnt vmcnt(0)
    s_barrier""")
        into(tail, wd_load)
    if o["clr2"] == "warm2":
        tail(f"""    s_cmp_eq_u32 {sW}, 7
    s_cbranch_scc0 L_nw2""")
        into(tail, slot_addrs)
        for k in range(2):
            tail(f"""    s_mov_b32 exec_lo, {"0x11111111" if o["w64"] else "0x01010101"}
    s_mov_b32 exec_hi, {"0x11111111" if o["w64"] else "0x01010101"}
    buffer_load_dword {vDum}, {cO}, {sWS}, {sT3} offen sc1
    s_mov_b64 exec, {"17" if o["w64"] else "1"}
    buffer_load_dword {vDum}, {cQ}, {sWS}, 0 offen sc1
    s_mov_b32 exec_lo, {"0x11001100" if o["w64"] else "0x01000100"}
    buffer_load_dword {vDum}, {cF}, {sWS}, 0 offen sc1
    s_mov_b64 exec, -1""")
            if k == 0:
                tail(f"""    s_cmp_lt_u32 {sIdx}, 28
    s_cbranch_scc0 L_dn
    v_subrev_u32 {cO}, {14*1024}, {cO}
    v_subrev_u32 {cQ}, {14*128}, {cQ}
    v_subrev_u32 {cF}, {14*128}, {cF}""")
        tail("    s_branch L_dn\nL_nw2:")
    tail(f"""    s_xor_b32 {sT1}, s2, 255
    s_or_b32 {sT1}, {sT1}, {sL}
    s_or_b32 {sT1}, {sT1}, {sW}
    s_cbranch_scc1 L_dn
    ; every workgroup has read the epoch word by now: leave this launch's tag for the next one
    v_mov_b32 {t5}, {QL + 1028}
    ds_read_b32 {v(DD)}, {t5}
    v_lshlrev_b32 {t5}, 4, {vL}
    s_waitcnt lgkmcnt(0)
    v_mov_b32 {v(DD+1)}, {v(DD)}
    v_mov_b32 {v(DD+2)}, {v(DD)}
    v_mov_b32 {v(DD+3)}, {v(DD)}
    s_mov_b64 exec, 0xff
    buffer_store_dwordx4 {vr(DD,4)}, {t5}, {sWS}, 0 offen sc1
    s_mov_b64 exec, -1""")
    tail("    s_branch L_dn")
    a(f"    s_cmp_eq_u32 {sL}, 0\n    s_cbranch_scc1 L_gu0")
    tail(f"""L_gu0:
    v_mul_u32_u24 {vA}, 3584, {vDma}
    v_add_u32 {vA}, {vA}, {vHalf}
    s_mov_b32 {sT1}, {32*3584}""")
    for srdn, off, so in ((sWg, T_FF, "0"), (sWg, T_FF + 1024, sT1), (sWu, T_FF + 2048, "0"), (sWu, T_FF + 3072, sT1))[o["gue"]:]:
        into(tail, dma, srdn, off, so)
    wd_here = o["wd_at"] == "afterY" and not o["wdb"]
    if wd_here:
        into(tail, wd_load)
    if o["ack"]:
        tail(f"    s_waitcnt vmcnt({4 - o['gue'] + wd_here})")
    tail("    s_branch L_gu1")
    ackwait()
    a("L_gu1:")
    if "b" in o["hint"]:
        a(f"    s_cmp_eq_u32 {sW}, 0\n    s_cbranch_scc0 L_gu2")
        hint_wait("L_hb")
        a("L_gu2:")
    a("    s_barrier")
    stampL(11)
    def gu_mid():
        for i in range(4):
            tr_read(WB + 4 * i, T_FF + 1024 * i)
    def gu_got():
        stampL(12)
    gather_x(aY, sL, "L_pb", gu_got, gu_mid)
    if o["wd_at"] == "afterY" and o["wdb"] and o["inl"]:
        wd_load()
    elif o["wd_at"] == "afterY" and o["wdb"]:
        a(f"    s_cmp_eq_u32 {sL}, 0\n    s_cbranch_scc1 L_wdb\nL_wdb1:")
        tail("L_wdb:")
        into(tail, wd_load)
        tail("    s_branch L_wdb1")
    a(f"""    s_waitcnt lgkmcnt(1)
    v_mfma_f32_16x16x32_bf16 {vr(DD,4)}, {vr(WB,4)}, {vr(XO,4)}, 0
    v_mfma_f32_16x16x32_bf16 {vr(DD+4,4)}, {vr(WB+8,4)}, {vr(XO,4)}, 0
    v_mfma_f32_16x16x32_bf16 {vr(DD+8,4)}, {vr(XO,4)}, {vr(XO,4)}, 0
    s_waitcnt lgkmcnt(0)
    v_mfma_f32_16x16x32_bf16 {vr(DD,4)}, {vr(WB+4,4)}, {vr(XO+4,4)}, {vr(DD,4)}
    v_mfma_f32_16x16x32_bf16 {vr(DD+4,4)}, {vr(WB+12,4)}, {vr(XO+4,4)}, {vr(DD+4,4)}
    v_mfma_f32_16x16x32_bf16 {vr(DD+8,4)}, {vr(XO+4,4)}, {vr(XO+4,4)}, {vr(DD+8,4)}
    s_add_u32 {sT1}, {sL}, {W_H}
    s_cmp_eq_u32 {sW}, 0""")
    two_tile_write(RG)
    stats_write(RG)
    a("    s_cbranch_scc0 L_dn")
    S = two_tile_reduce(RG, 8, vR4, vR4c)
    U = v(DD + 6)
    a(f"""    v_mov_b32 {U}, {S}
    v_permlane32_swap_b32 {S}, {U}
    v_max_f32 {S}, 0, {S}
    v_mul_f32 {S}, {S}, {U}""")
    pack16(DD + 8, S, U)
    execm(m8)
    local_store(f"buffer_store_dwordx4 {vr(DD+8,4)}, {pS}, {sWS}, {sT1} offen", "L_sh")
    execm("-1")
    stampL(13)
    a(f"""L_dn:
    s_cmp_eq_u32 {sW}, 7
    s_cbranch_scc1 L_dn7
    s_or_b32 {sT1}, {sW}, {sG}
    s_cmp_eq_u32 {sT1}, 0
    s_cbranch_scc1 L_x1
L_dn0:""")
    a = tail
    a("L_dn7:")
    if o["clr2"] == "warm":
        a(f"""    s_cmp_eq_u32 {sL}, 0
    s_cbranch_scc0 L_dn1
    s_mov_b32 {sT3}, {OSTR}
    s_mov_b64 exec, {m16}
    buffer_load_dword {vDum}, {cO}, {sWS}, {sT3} offen sc1
    s_mov_b64 exec, 1
    buffer_load_dword {vDum}, {cQ}, {sWS}, 0 offen sc1
    s_mov_b32 exec_lo, 0x01000100
    buffer_load_dword {vDum}, {cF}, {sWS}, 0 offen sc1
    s_mov_b64 exec, -1""")
    a("    s_branch L_dn1")
    a("L_x1:\n    s_waitcnt vmcnt(0)")
    sum_cols(aX1, sL, "L_pr", vX1)
    a(f"""    v_cvt_pk_bf16_f32 {vX1}, {vX1}, {vX1}
    v_and_b32 {vX1}, 0xffff0000, {vX1}
    s_branch L_dn0""")
    a = main
    a("    s_waitcnt vmcnt(0)")
    tr_read(WB, T_WD)
    execm(mC2)
    poll([(f"buffer_load_dwordx4 {vr(XO,4)}, {aH}, {sWS}, {sL} offen sc1", [v(XO + i) for i in range(4)])], "L_pc2")
    execm("-1")
    stampL(14)
    a(f"""    s_waitcnt lgkmcnt(0)
    v_mfma_f32_16x16x32_bf16 {vr(DD,4)}, {vr(WB,4)}, {vr(XO,4)}, 0
    ds_write_b128 {vWd}, {vr(DD,4)} offset:{RD - RQ}
    s_waitcnt lgkmcnt(0)
L_dn1:
    s_cmp_eq_u32 {sW}, 0
    s_barrier
    s_cbranch_scc0 L_dn2""")
    red8(vR4, (RD - RQ) // 256, TT)
    sum8(v(TT + 8), TT, extra=vX1)
    quad4(TT + 8)
    execm(mZ)
    a(f"    buffer_store_dwordx4 {vr(TT+8,4)}, {pZ}, {sWS}, {sL} offen sc1")
    if "d" in o["hint"] or "f" in o["hint"]:
        execm("1")
        hint_post(1)
    execm("-1")
    a(f"L_dn2:\n    s_cmp_eq_u32 {sL}, 0\n    s_cbranch_scc1 L_q")
    a(f"""    s_and_b32 {sT1}, {sIdx}, 7
    s_xor_b32 {sT1}, {sT1}, {sG}
    s_or_b32 {sT1}, {sT1}, {sW}
    s_cbranch_scc1 L_done""")
    if "f" in o["hint"]:
        hint_wait("L_hf")
    ackwait()
    stamp(31)
    sum_cols(aFin, sL, "L_pf", v(DD))
    if o["x_pad"] == "loop":
        a(f"    s_mov_b32 {sT1}, 0\nL_pad:")
        for i in range(62):
            a(f"    v_add3_u32 {v(TT)}, {v(TT)}, {v(TT+1)}, {v(TT+2)}")
        a(f"    s_add_u32 {sT1}, {sT1}, 1\n    s_cmp_lt_u32 {sT1}, 16\n    s_cbranch_scc1 L_pad")
    if o["x_pad"] == "line":
        for i in range(1024):
            a(f"    v_add3_u32 {v(TT)}, {v(TT)}, {v(TT+1)}, {v(TT+2)}")
    if o["x_pad"] == "far":
        a("    s_branch L_far\nL_farb:")
    if o["bias"]:
        a(f"    v_add_f32 {v(DD)}, {f32(o['bias'])}, {v(DD)}")
    pack16(DD + 4, v(DD), v(DD + 1))
    execm(m8)
    a(f"    buffer_store_dwordx4 {vr(DD+4,4)}, {pOut}, {sOut}, 0 offen")
    stamp(20)
    a("L_done:")
    if o["diag"]:
        execm("-1")
        stamp(21)
        a(f"""    s_waitcnt lgkmcnt(0)
    v_writelane_b32 {vStamp}, s98, 21
    v_writelane_b32 {vStamp}, {sPure}, 32
    v_writelane_b32 {vStamp}, {sCnt}, 33
    s_lshl_b32 {sT1}, s2, 3
    s_add_u32 {sT1}, {sT1}, {sW}
    s_lshl_b32 {sT1}, {sT1}, 8
    s_add_u32 {sT1}, {sT1}, {W_DIAG}
    buffer_store_dword {vStamp}, {aV}, {sWS}, {sT1} offen""")
        if o["x_dbg"]:
            a(f"""    s_mov_b32 s40, s24
    s_mov_b32 s41, s25
    s_mov_b32 s42, 256
    s_mov_b32 s43, 0x20000
    v_readlane_b32 {sT1}, {vStamp}, 0
    s_not_b32 {sT2}, {sT1}
    v_mov_b32 {v(TT)}, 0
    v_writelane_b32 {v(TT)}, {sT2}, 0""")
            for n, k in enumerate(o["x_dbg"]):
                a(f"    v_readlane_b32 {sT1}, {vStamp}, {k}\n    s_nop 3\n    v_writelane_b32 {v(TT)}, {sT1}, {n+1}")
            a(f"    s_mov_b64 exec, 0xffff\n    buffer_atomic_umax {v(TT)}, {aV}, s[40:43], 0 offen")
    a("L_end:\n    s_endpgm")
    a(tail.text().rstrip("\n"))
    a(tail2.text().rstrip("\n"))
    a("L_codeend:")
    if o["x_pad"] == "far":
        a("    s_endpgm\nL_far:")
        for i in range(1024):
            a(f"    v_add3_u32 {v(TT)}, {v(TT)}, {v(TT+1)}, {v(TT+2)}")
        a("    s_branch L_farb")
    body, nops = hazard.fix(a.text())
    return body


HEAD = open("interleave_layers__gqa_block_cached__glu_gated_reglu__decode.s.ref").read().split("; Override")[0]

DESC = """;
; One persistent launch: 256 workgroups (one per CU) x 8 waves. Workgroup id = 8*idx + g, idx = 16*b + s.
; Per layer: q (32 columns x half of the rows per workgroup, two partial sums) -> scores, true max per 64 keys,
;   P V -> partial O, m, l -> output projection with the exact split-softmax weights (32 columns per workgroup)
;   -> Y partials over g -> gate / up (14 workgroups per group, 16 hidden columns each) -> h
; Hand-offs go through d_ws. Every slot is first marked with all-ones words by this launch; a reader repeats its
;   loads until no word carries the mark. The first q pieces and the per-group flags carry a tag derived from a word
;   found in d_ws (it only tells this launch's words from an earlier launch's). Stores are write-through (sc1) except
;   between workgroups that have all reported the same XCC id, where a plain store reaches the shared L2.
"""

def write(path, **kw):
    body = gen(**kw)
    txt = kernel_file(NAME, body, 256, 512, LDS_BYTES, vgpr=256, accum=256, sgpr=102, comment=HEAD + DESC)
    open(path, "w").write(txt)
    build(path, NAME)
    return path

if __name__ == "__main__":
    write("main_diag.s", diag=True)
    write("main.s")
    print("LDS", LDS_BYTES)
```

```python
import re, random
import gen_main as G
from asmlib import *
def jit(seed, frac, scale):
    body = G.gen()
    rnd = random.Random(seed)
    out = []
    n = 0
    started = False
    for line in body.split("\n"):
        s = line.strip()
        if s.startswith("s_waitcnt lgkmcnt(0)"): started = True
        hit = started and (s.startswith("s_barrier") or s.startswith("buffer_store") or re.fullmatch(r"L_(p[a-z0-9]+|hq|attn|dn|wo|q|late|mid|joined):", s))
        if hit and rnd.random() < frac:
            n += 1
            code = f"""    s_cselect_b32 s98, 1, 0
    s_mul_i32 s99, s2, {rnd.randrange(1, 1 << 30) | 1}
    s_mul_i32 s100, s3, {rnd.randrange(1, 1 << 30) | 1}
    s_add_u32 s99, s99, s100
    s_mul_i32 s99, s99, 0x9E3779B1
    s_lshr_b32 s99, s99, 26
    s_mul_i32 s99, s99, s99
    s_lshr_b32 s99, s99, {scale}
L_j{n}:
    s_sub_u32 s99, s99, 1
    s_cbranch_scc0 L_j{n}
    s_cmp_eq_u32 s98, 1"""
            if s.endswith(":"):
                out.append(line); out.append(code)
            else:
                out.append(code); out.append(line)
        else:
            out.append(line)
    p = f"j_{seed}.s"
    open(p, "w").write(kernel_file(G.NAME, "\n".join(out), 256, 512, G.LDS_BYTES, vgpr=256, accum=256, sgpr=102))
    build(p, G.NAME)
for seed, (f, sc) in enumerate([(1.0, 4), (0.5, 2), (0.3, 1), (0.5, 3), (0.2, 0), (0.7, 3)]):
    jit(seed, f, sc)
```

```python
import sys, math, struct
from asmlib import *
import hazard

NAME = "interleave_layers__gqa_block_cached__glu_gated_reglu__decode_kernel"

def f32(x):
    return "0x%08x" % struct.unpack("<I", struct.pack("<f", x))[0]

DEFAULT = dict(
    kvf="nt",
    wf="",
    wd_at="afterY",
    pf_at="wo",
    l2pf=True,
    ack=True,
    force_slow=False,
    diag=False,
    prefetch=True,
    spin=8000000,
    bias=0.0,
    x_stop=None,
    x_nogather=False,
    x_nowq=False,
    qbar=True,
    b1first=False,
    pol=0,
    aprio=None,
    q1plain=True,
    leadx=False,
    mk2='a7',
    gue=2,
    wox=0,
    woown=True,
    wdlate=True,
    thr=0,
    xy=None,
    flip=2,
    phv=0,
    phase=True,
    touch='',
    klin=True,
    esmall=True,
    kpre=2,
    spec=True,
    inl=True,
    hint='',
    wo_at='X',
    aover=True,
    wdb=True,
    qkearly=True,
    w64=False,
    clr2="warm2",
    x_noclr=False,
    x_half=False,
    x_delay=None,
    x_nopub=False,

    x_pad=None,
    x_dbg=None,
    b1at=12,
    kwait=48,
)

WVS = 11264
T_WQ, T_WO, T_FF, T_WD = 0, 2048, 6144, 10240
OB = 8 * WVS
XB = OB + 16384
ONES = XB + 2048
QL = ONES + 1024
MLB = QL + 1024 + 256
RQ = MLB + 256
RQC = RQ + 2048
RW = RQC + 2048
RG = RW + 2048
RGC = RG + 2048
RD = RGC + 2048
DUM = RD + 2048
LDS_BYTES = DUM + (DUM - RQ) + 1024
F0 = 0x10000
W_ML, W_H, W_Y, W_Z, W_Q2 = F0, F0 + 0x10000, F0 + 0x20000, F0 + 0x30000, F0 + 0x40000
LSTR = 0x8000
W_Q1 = 0x58000
W_GF = 0x8000
W_HT = 0x9000
W_O = 0x70000
OSTR = 0x50000
OSLOT = 1024
W_DIAG = 0x200000
WS_BYTES = 0x400000
TAG_STEP = 0x9E3779B0


def gen(**kw):
    o = dict(DEFAULT); o.update(kw)
    a = Asm()
    kvf, wf = o["kvf"], o["wf"]
    sW = "s3"
    sK, sV, sWS, sWq, sX, sWo, sWg, sWu, sOut = [f"s[{i}:{i+3}]" for i in (28, 32, 36, 40, 44, 48, 52, 56, 60)]
    sWd = "s[4:7]"
    sG, sIdx, sB, sS, sO, sPure, sTag, sCnt, sL, sLO = [f"s{i}" for i in range(64, 74)]
    sT0, sT1, sT2, sT3 = "s74", "s75", "s76", "s77"
    sM0 = "s78"
    sYo = "s79"
    sMode = sTag
    sKh = "s101"
    c4k = {0: "s15" if o["phase"] else "0", 1: "s80", 2: "s81", 3: "s82"}
    sPlo, sPhi = "s83", "s84"
    sXcc = "s85"
    mC2, m16, m8, mY, mZ = "s[86:87]", "s[88:89]", "s[90:91]", "s[92:93]", "s[96:97]"
    sSt = "s[98:99]"
    vL = "v0"
    names = """vKG vC vT vT0 vT1 vTq vR4 vL16 vW4 vWg vWd vR4c vGS vOw vOw2 vOr vMLw vMLr vXw vXr
               aK aV aQ2 aO aML aY aH aZ aX1 aFin aRes pO pML pY pZ pS pQ pOut
               vDma vHalf vScale vInv vRes vX1 vStamp vA vEp""".split()
    R = {n: f"v{i+1}" for i, n in enumerate(names)}
    globals().update(R)
    assert len(names) + 1 <= 48, len(names)
    WB = 48
    XO = 64
    DD = 88
    TT = 104
    KB = 124
    VB = 188
    v = lambda i: f"v{i}"
    vr = lambda i, n: f"v[{i}:{i+n-1}]"
    DPP = "row_mask:0xf bank_mask:0xf"
    CHK = v(TT + 19)
    vDum = v(TT + 18)

    def stamp(i, layered=False):
        if o["diag"] is True or (o["diag"] == "light" and i == 21) or (isinstance(o["diag"], tuple) and (i in o["diag"] or i == 21)):
            a(f"    s_mov_b32 m0, s100\n    v_writelane_b32 {vStamp}, s98, m0\n    s_memrealtime {sSt}")
            if layered:
                a(f"    s_lshr_b32 s100, {sL}, 11\n    s_or_b32 s100, s100, {i}")
            else:
                a(f"    s_mov_b32 s100, {i}")
    stampL = lambda i: stamp(i, True)

    def srd(dst, lo, off_sgpr, size):
        d = int(dst[2:dst.index(":")])
        if off_sgpr is None:
            a(f"    s_mov_b32 s{d}, s{lo}\n    s_mov_b32 s{d+1}, s{lo+1}\n    s_mov_b32 s{d+2}, {size}")
        else:
            a(f"    s_add_u32 s{d}, s{lo}, {off_sgpr}\n    s_addc_u32 s{d+1}, s{lo+1}, 0\n    s_sub_u32 s{d+2}, {size}, {off_sgpr}")
        a(f"    s_mov_b32 s{d+3}, 0x20000")

    tail = Asm()
    tail2 = Asm()

    def into(stream, fn, *args):
        nonlocal a
        old, a = a, stream
        fn(*args)
        a = old

    def execm(m):
        a(f"    s_mov_b64 exec, {m}")

    def spin_tail(lbl):
        a(f"    s_cbranch_vccnz {lbl}_again\n{lbl}_ok:")
        tail2(f"{lbl}_again:\n    s_sub_u32 {sCnt}, {sCnt}, 1\n    s_cbranch_scc0 {lbl}\n    s_mov_b32 {sCnt}, 0\n    s_branch {lbl}_ok")

    def poll(loads, lbl, mid=None, mid2=None, younger=0, once=None, after=None):
        a(f"{lbl}:")
        for l, _ in loads:
            a("    " + l)
        if mid:
            mid()
        first = True
        pend = []
        for i, (_, regs) in enumerate(loads):
            a(f"    s_waitcnt vmcnt({len(loads)-1-i+younger})")
            if i == 0 and mid2:
                mid2()
            pend += regs
            last = i == len(loads) - 1 or (after and i in after)
            while len(pend) >= (3 if first else 2) or (last and pend):
                if first:
                    if len(pend) >= 3:
                        a(f"    v_max3_u32 {CHK}, {pend[0]}, {pend[1]}, {pend[2]}"); pend = pend[3:]
                    elif len(pend) == 2:
                        a(f"    v_max_u32 {CHK}, {pend[0]}, {pend[1]}"); pend = []
                    else:
                        a(f"    v_mov_b32 {CHK}, {pend[0]}"); pend = []
                    first = False
                elif len(pend) >= 2:
                    a(f"    v_max3_u32 {CHK}, {pend[0]}, {pend[1]}, {CHK}"); pend = pend[2:]
                else:
                    a(f"    v_max_u32 {CHK}, {pend[0]}, {CHK}"); pend = []
            if after and i in after:
                after[i]()
        a(f"    v_cmp_eq_u32 vcc, -1, {CHK}")
        if once:
            a(f"    s_cbranch_vccnz {once}\n    s_branch {once}_ok")
        else:
            spin_tail(lbl)

    def local_store(ins, lbl):
        if o["force_slow"]:
            a("    " + ins.replace("\n    s_mov_b64 exec, 1\n", " sc1\n    s_mov_b64 exec, 1\n") + " sc1")
            return
        a(f"    s_cmp_eq_u32 {sPure}, 0\n    s_cbranch_scc1 {lbl}_wt\n    {ins}\n{lbl}_e:")
        tail2(f"{lbl}_wt:\n    " + ins.replace("\n    s_mov_b64 exec, 1\n", " sc1\n    s_mov_b64 exec, 1\n") + f" sc1\n    s_branch {lbl}_e")

    vHt = v(TT + 10)
    def hint_post(use):
        a(f"""    s_lshr_b32 {sT0}, {sL}, {15 - 11}
    s_lshl_b32 {sT3}, {sG}, 7
    s_add_u32 {sT0}, {sT0}, {sT3}
    s_add_u32 {sT0}, {sT0}, {W_HT + use * 1024}
    s_lshl_b32 {sT3}, {sIdx}, 2
    s_add_u32 {sT3}, {sT3}, {sT0}
    buffer_store_dword {vEp}, off, {sWS}, {sT3}""")
    def hint_wait(lbl):
        a(f"""    s_cmp_eq_u32 {sPure}, 0
    s_cbranch_scc1 {lbl}_ok
    s_mov_b32 exec_hi, 0
{lbl}:
    buffer_load_dword {vHt}, {aV}, {sWS}, {sT0} offen sc1
    s_waitcnt vmcnt(0)
    v_cmp_ne_u32 vcc, {vHt}, {vEp}""")
        spin_tail(lbl)
        a("    s_mov_b64 exec, -1")

    def ackwait():
        if o["x_delay"] is not None:
            for i in range(o["x_delay"]):
                a("    s_nop 15")
        elif o["ack"]:
            a("    s_waitcnt vmcnt(0)")

    def dma(srdn, tile_off, soff):
        a(f"    s_add_u32 m0, {sM0}, {tile_off}")
        a(f"    buffer_load_dwordx4 {vA}, {srdn}, {soff} offen {wf} lds")

    def tr_read(dst, tile_off):
        a(f"    ds_read_b64_tr_b16 {vr(dst,2)}, {vT} offset:{tile_off}")
        a(f"    ds_read_b64_tr_b16 {vr(dst+2,2)}, {vT} offset:{tile_off+512}")

    def red8(addr, unit0, tmp):
        for i in range(4):
            a(f"    ds_read2st64_b32 {vr(tmp+2*i,2)}, {addr} offset0:{unit0+2*i} offset1:{unit0+2*i+1}")

    def sum8(dst, tmp, extra=None, later=0):
        for i in range(4):
            a(f"    s_waitcnt lgkmcnt({3 - i + later})")
            a(f"    v_add_f32 {v(tmp+2*i)}, {v(tmp+2*i)}, {v(tmp+2*i+1)}")
            if i == 1:
                a(f"    v_add_f32 {v(tmp)}, {v(tmp)}, {v(tmp+2)}")
                if extra:
                    a(f"    v_add_f32 {v(tmp)}, {v(tmp)}, {extra}")
        a(f"    v_add_f32 {v(tmp+4)}, {v(tmp+4)}, {v(tmp+6)}")
        a(f"    v_add_f32 {dst}, {v(tmp)}, {v(tmp+4)}")

    def ln_stats(S2, S1, mu, rstd):
        a(f"    v_mul_f32 {mu}, {f32(1/512)}, {S1}")
        a(f"    v_mul_f32 {S2}, {f32(1/512)}, {S2}")
        a(f"    v_fma_f32 {S2}, -{mu}, {mu}, {S2}")
        a(f"    v_max_f32 {S2}, 0, {S2}")
        a(f"    v_add_f32 {S2}, {f32(1e-5)}, {S2}")
        a(f"    v_rsq_f32 {rstd}, {S2}")

    def pack16(d, S, T):
        a(f"    v_mov_b32_dpp {T}, {S} quad_perm:[1,1,3,3] {DPP}")
        a(f"    v_cvt_pk_bf16_f32 {v(d)}, {S}, {T}")
        for i in (1, 2, 3):
            a(f"    v_mov_b32_dpp {v(d+i)}, {v(d)} row_shl:{2*i} {DPP}")

    def quad4(d):
        for i in (1, 2, 3):
            a(f"    v_mov_b32_dpp {v(d+i)}, {v(d)} quad_perm:[{i},{i},{i},{i}] {DPP}")

    def gather_x(addr, soff, lbl, st, mid2=None, xw=None):
        Y = XO + 8
        poll([(f"buffer_load_dwordx4 {vr(Y+4*i,4)}, {addr}, {sWS}, {soff} offen offset:{128*i} sc1",
               [v(Y + 4 * i + j) for j in range(4)]) for i in range(2 if o['x_half'] else 4)], lbl, None, mid2,
             after={1: lambda: [a(f"    v_pk_add_f32 {vr(Y+j,2)}, {vr(Y+j,2)}, {vr(Y+4+j,2)}") for j in (0, 2)]} if o["spec"] else None)
        st()
        for j in (0, 2):
            if not o["spec"]:
                a(f"    v_pk_add_f32 {vr(Y+j,2)}, {vr(Y+j,2)}, {vr(Y+4+j,2)}")
            a(f"    v_pk_add_f32 {vr(Y+8+j,2)}, {vr(Y+8+j,2)}, {vr(Y+12+j,2)}")
        for j in (0, 2):
            a(f"    v_pk_add_f32 {vr(Y+j,2)}, {vr(Y+j,2)}, {vr(Y+8+j,2)}")
        a(f"""    v_permlane32_swap_b32 {v(Y)}, {v(Y+2)}
    v_permlane32_swap_b32 {v(Y+1)}, {v(Y+3)}
    v_pk_add_f32 {vr(Y,2)}, {vr(Y,2)}, {vr(Y+2,2)}
    v_cvt_pk_bf16_f32 {v(Y)}, {v(Y)}, {v(Y+1)}
    ds_write_b32 {xw or vXw}, {v(Y)}
    ds_read_b128 {vr(XO,4)}, {vXr}
    ds_read_b128 {vr(XO+4,4)}, {vXr} offset:64""")

    def sum_cols(addr, soff, lbl, dst):
        poll([(f"buffer_load_dword {v(TT+i)}, {addr}, {sWS}, {soff} offen offset:{128*i} sc1", [v(TT + i)]) for i in range(4)], lbl)
        a(f"""    v_add_f32 {v(TT)}, {v(TT)}, {v(TT+1)}
    v_add_f32 {v(TT+2)}, {v(TT+2)}, {v(TT+3)}
    v_add_f32 {dst}, {v(TT)}, {v(TT+2)}
    v_mov_b32 {v(TT)}, {dst}
    v_permlane32_swap_b32 {dst}, {v(TT)}
    v_add_f32 {dst}, {dst}, {v(TT)}""")

    def two_tile_write(base):
        a(f"    ds_write_b128 {vWg}, {vr(DD,4)} offset:{base - RQ}")
        a(f"    ds_write_b128 {vWg}, {vr(DD+4,4)} offset:{base - RQ + 128}")

    def stats_write(base):
        a(f"    ds_write_b128 {vL16}, {vr(DD+8,4)} offset:{base - RQ + 2048 + 192}")
        a("    s_waitcnt lgkmcnt(0)\n    s_barrier")

    def two_tile_reduce(base, n, aD, aC):
        st = v(TT + 8)
        S2, S1, mu, rs, S, CS = v(DD), v(DD + 1), v(DD + 2), v(DD + 3), v(DD + 4), v(DD + 5)
        u = (base - RQ) // 256
        h = n // 2
        a(f"    ds_read_b32 {st}, {vGS} offset:{base - RQ}")
        for i in range(h):
            a(f"    ds_read2st64_b32 {vr(TT+2*i,2)}, {aD} offset0:{u+2*i} offset1:{u+2*i+1}")
        for i in range(h):
            a(f"    ds_read2st64_b32 {vr(XO+2*i,2)}, {aC} offset0:{u+2*i} offset1:{u+2*i+1}")
        chain = [f"v_add_f32_dpp {st}, {st}, {st} quad_perm:[1,0,3,2] {DPP}",
                 f"v_add_f32_dpp {st}, {st}, {st} quad_perm:[2,3,0,1] {DPP}",
                 f"v_add_f32_dpp {st}, {st}, {st} row_half_mirror {DPP}",
                 f"v_mul_f32_dpp {mu}, {st}, {vInv} row_newbcast:8 {DPP}\n    v_mul_f32_dpp {S2}, {st}, {vInv} row_newbcast:0 {DPP}",
                 f"v_fma_f32 {S2}, -{mu}, {mu}, {S2}\n    v_max_f32 {S2}, 0, {S2}\n    v_add_f32 {S2}, {f32(1e-5)}, {S2}\n    v_rsq_f32 {rs}, {S2}"]
        if n == 8:
            fill = [f"s_waitcnt lgkmcnt(6)\n    v_pk_add_f32 {vr(TT,2)}, {vr(TT,2)}, {vr(TT+2,2)}",
                    f"s_waitcnt lgkmcnt(4)\n    v_pk_add_f32 {vr(TT+4,2)}, {vr(TT+4,2)}, {vr(TT+6,2)}",
                    f"s_waitcnt lgkmcnt(2)\n    v_pk_add_f32 {vr(XO,2)}, {vr(XO,2)}, {vr(XO+2,2)}",
                    f"v_pk_add_f32 {vr(TT,2)}, {vr(TT,2)}, {vr(TT+4,2)}\n    s_waitcnt lgkmcnt(0)\n    v_pk_add_f32 {vr(XO+4,2)}, {vr(XO+4,2)}, {vr(XO+6,2)}",
                    f"v_pk_add_f32 {vr(XO,2)}, {vr(XO,2)}, {vr(XO+4,2)}\n    v_add_f32 {S}, {v(TT)}, {v(TT+1)}\n    v_add_f32 {CS}, {v(XO)}, {v(XO+1)}"]
        else:
            fill = [f"s_waitcnt lgkmcnt(2)\n    v_pk_add_f32 {vr(TT,2)}, {vr(TT,2)}, {vr(TT+2,2)}",
                    f"s_waitcnt lgkmcnt(0)\n    v_pk_add_f32 {vr(XO,2)}, {vr(XO,2)}, {vr(XO+2,2)}",
                    f"v_add_f32 {S}, {v(TT)}, {v(TT+1)}\n    v_add_f32 {CS}, {v(XO)}, {v(XO+1)}", None, None]
        a(f"    s_waitcnt lgkmcnt({2*h})")
        for c_, f_ in zip(chain, fill):
            a("    " + c_)
            if f_:
                a("    " + f_)
        a(f"    v_fma_f32 {S}, -{mu}, {CS}, {S}\n    v_mul_f32 {S}, {S}, {rs}")
        return S

    def add_bf16x8(d, A, B):
        for i in range(4):
            x, y = TT + 4 * (i & 1), TT + 4 * (i & 1) + 2
            a(f"""    v_lshlrev_b32 {v(x)}, 16, {A[i]}
    v_and_b32 {v(x+1)}, 0xffff0000, {A[i]}
    v_lshlrev_b32 {v(y)}, 16, {B[i]}
    v_and_b32 {v(y+1)}, 0xffff0000, {B[i]}
    v_pk_add_f32 {vr(x,2)}, {vr(x,2)}, {vr(y,2)}
    v_cvt_pk_bf16_f32 {v(d+i)}, {v(x)}, {v(x+1)}""")

    def r64_addr(shift):
        t = v(TT + 7)
        a(f"""    v_bfe_u32 {vA}, {vL}, 2, 2
    v_lshl_add_u32 {vA}, {vKG}, 3, {vA}
    v_lshlrev_b32 {vA}, {shift}, {vA}
    v_and_b32 {t}, 1, {vKG}
    v_lshlrev_b32 {t}, 1, {t}
    v_xor_b32 {t}, {t}, {vL}
    v_and_b32 {t}, 3, {t}
    v_lshl_add_u32 {vA}, {t}, 4, {vA}""")

    cO, cF, cQ = v(TT + 12), v(TT + 13), v(TT + 14)
    def slot_addrs(tmp=TT + 2):
        t2, t3, t4 = v(tmp), v(tmp + 1), v(tmp + 2)
        a(f"""    s_lshl_b32 {sT2}, {sO}, 10
    s_add_u32 {sT2}, {sT2}, {W_O}
    v_lshl_add_u32 {cO}, {vL}, 4, {sT2}
    v_mov_b32 {t2}, {sO}
    v_mov_b32 {t3}, {sYo}
    v_cmp_lt_u32 vcc, 1, {vKG}
    v_cndmask_b32 {t2}, {t2}, {t3}, vcc
    v_lshrrev_b32 {t3}, 3, {vL}
    v_lshlrev_b32 {t4}, 15, {t3}
    v_lshl_add_u32 {cF}, {t2}, 7, {t4}
    v_and_b32 {t4}, 7, {vL}
    v_lshl_add_u32 {cF}, {t4}, 4, {cF}
    v_add_u32 {cF}, {F0}, {cF}
    s_lshl_b32 {sT2}, {sO}, 7
    s_add_u32 {sT2}, {sT2}, {W_Q2}
    v_lshlrev_b32 {t3}, 22, {t3}
    v_lshl_add_u32 {cQ}, {t4}, 4, {t3}
    v_add_u32 {cQ}, {sT2}, {cQ}
    s_mov_b32 {sT3}, {OSTR}""")

    def marks2(c):
        slot_addrs(DD + 8)
        for i in range(4):
            a(f"    v_mov_b32 {v(c+i)}, -1")
        a(f"""    buffer_store_dwordx4 {vr(c,4)}, {cO}, {sWS}, {sT3} offen sc1
    buffer_store_dwordx4 {vr(c,4)}, {cQ}, {sWS}, 0 offen sc1
    s_mov_b32 exec_lo, 0xff00ff00
    s_mov_b32 exec_hi, 0xff00ff00
    buffer_store_dwordx4 {vr(c,4)}, {cF}, {sWS}, 0 offen sc1
    s_mov_b64 exec, -1""")

    def kshuffle():
        if not o["klin"]:
            return
        aw, ar = DD, DD + 4
        a(f"""    s_add_u32 {sT1}, {sM0}, {T_WO}
    v_xor_b32 {v(aw)}, {vC}, {vKG}
    v_lshlrev_b32 {v(ar)}, 4, {v(aw)}
    v_lshl_add_u32 {v(aw)}, {vKG}, 8, {v(ar)}
    v_lshl_add_u32 {v(ar)}, {vC}, 8, {v(ar)}
    v_add_u32 {v(aw)}, {sT1}, {v(aw)}
    v_add_u32 {v(ar)}, {sT1}, {v(ar)}""")
        for j in (1, 2, 3):
            a(f"    v_xor_b32 {v(aw+j)}, {64*j}, {v(aw)}\n    v_xor_b32 {v(ar+j)}, {64*j}, {v(ar)}")
        for u in range(4):
            h = (u & 1) * 4096
            if u:
                a("    s_waitcnt lgkmcnt(6)")
            for j in range(4):
                a(f"    ds_write_b128 {v(aw+j)}, {vr(KB+16*u+4*j,4)} offset:{h + 1024*j}")
            for t in range(4):
                a(f"    ds_read_b128 {vr(KB+16*u+4*t,4)}, {v(ar+t)} offset:{h}")

    def thr_wait(n):
        lbl = a.label("L_th")
        a(f"    s_bitcmp1_b32 {sXcc}, 0\n    s_cbranch_scc1 {lbl}\n    s_waitcnt vmcnt({min(63, n)})\n{lbl}:")

    def kload(i):
        if o["thr"] and i >= o["thr"]:
            thr_wait(o["thr"] - 1)
        if o["klin"]:
            a(f"    buffer_load_dwordx4 {vr(KB+16*(i&3)+4*(i>>2),4)}, {aK}, {sK}, {c4k[i>>2]} offen offset:{(i&3)*1024} {kvf}")
            return
        u, t = i // 4, i % 4
        a(f"    buffer_load_dwordx4 {vr(KB+4*i,4)}, {aK}, {sK}, 0 offen offset:{u*1024+t*64} {kvf}")

    t0, t1, t2, t3, t4, t5 = [v(TT + i) for i in range(6)]
    a(f"""    s_cmp_ge_u32 s2, 256
    s_cbranch_scc1 L_end
    s_load_dwordx16 s[4:19], s[0:1], 0
    s_load_dwordx8 s[20:27], s[0:1], 64
    v_lshrrev_b32 v1, 6, v0
    v_and_b32 {vL}, 63, v0
    v_readfirstlane_b32 {sW}, v1""")
    if o["diag"]:
        a(f"    v_mov_b32 {vStamp}, 0\n    s_memrealtime {sSt}\n    s_mov_b32 s100, 0")
    a(f"""    s_lshr_b32 {sIdx}, s2, 3
    s_and_b32 {sG}, s2, 7
    s_lshr_b32 {sB}, s2, 7
    s_and_b32 {sS}, {sIdx}, 15
    s_and_b32 {sKh}, {sIdx}, 1
    v_lshrrev_b32 {vKG}, 4, {vL}
    v_and_b32 {vC}, 15, {vL}
""")
    if o["klin"]:
        a(f"    v_lshlrev_b32 {aK}, 4, {vL}")
    else:
        a(f"""    ; K lane address: (c>>2)*4096 + (c&3)*256 + kg*16
    v_bfe_u32 {aK}, {vL}, 2, 2
    v_lshlrev_b32 {aK}, 12, {aK}
    v_and_b32 {t1}, 3, {vL}
    v_lshl_add_u32 {aK}, {t1}, 8, {aK}
    v_lshl_add_u32 {aK}, {vKG}, 4, {aK}""")
    a(f"""    ; kv byte offset: ((8b + g)*16 + s)*8 + w) << 14
    s_lshl3_add_u32 {sT0}, {sB}, {sG}
    s_lshl4_add_u32 {sT0}, {sT0}, {sS}
    s_lshl3_add_u32 {sT0}, {sT0}, {sW}
    {("s_lshl_b32 " + sT1 + ", " + sKh + ", 2") if o["flip"] == 1 else ""}
    {("s_and_b32 " + sT1 + ", " + sIdx + ", 7") if o["flip"] == 2 else ""}
    {("s_add_u32 " + sT1 + ", " + sIdx + ", s2") if o["flip"] == 3 else ""}
    {("s_and_b32 " + sT1 + ", " + sT1 + ", 7") if o["flip"] == 3 else ""}
    {("s_xor_b32 " + sT0 + ", " + sT0 + ", " + sT1) if o["flip"] else ""}
    s_lshl_b32 {sT0}, {sT0}, 14
    s_mov_b32 s31, 0x20000
    s_sub_u32 s30, 33554432, {sT0}
    s_cmp_lt_u32 {sW}, 4
    s_cbranch_scc0 L_young
    s_lshl2_add_u32 {sT1}, {sKh}, {sW}
    s_lshl_b32 {sT1}, {sT1}, 19
    s_lshr_b32 {sT2}, {sIdx}, 1
    s_lshl4_add_u32 {sT2}, {sG}, {sT2}
    s_lshl_b32 {sT2}, {sT2}, 6
    s_add_u32 {sT1}, {sT1}, {sT2}
    s_mul_i32 {sT3}, {sW}, {2*WVS}""")
    r64_addr(13)
    a(f"""    s_mov_b32 s43, 0x20000
    s_sub_u32 s42, 4194304, {sT1}
    s_add_u32 m0, {sT3}, {T_WQ}
    s_waitcnt lgkmcnt(0)
    s_add_u32 s40, s10, {sT1}
    s_addc_u32 s41, s11, 0""")
    if o["diag"]:
        stamp(2)
        a(f"    s_add_u32 m0, {sT3}, {T_WQ}")
    for k in range(0 if o["x_nowq"] else 4):
        if k:
            a(f"    s_add_u32 m0, {sT3}, {(k >> 1) * WVS + T_WQ + (k & 1) * 1024}")
            a(f"    s_mov_b32 {sT2}, {((k >> 1) * 32 + (k & 1) * 4) * 8192}")
        a(f"    buffer_load_dwordx4 {vA}, {sWq}, {sT2 if k else 0} offen {wf} lds")
    def phase0():
        if o["phase"]:
            if o["phv"] == 0:
                a(f"    s_add_u32 s15, {sIdx}, {sW}\n    s_add_u32 s15, s15, {sG}")
            elif o["phv"] == 1:
                a(f"    s_lshr_b32 s15, {sIdx}, 2\n    s_add_u32 s15, s15, {sW}\n    s_add_u32 s15, s15, {sG}")
            else:
                a(f"    s_lshr_b32 s15, {sIdx}, 3\n    s_add_u32 s15, s15, {sW}")
            a(f"    s_and_b32 s15, s15, 3\n    s_lshl_b32 s15, s15, 12")
    phase0()
    a(f"    s_add_u32 s28, s6, {sT0}\n    s_addc_u32 s29, s7, 0")
    def common2():
        a(f"""    v_lshlrev_b32 {aV}, 2, {vL}
    s_getreg_b32 {sXcc}, hwreg(HW_REG_XCC_ID, 0, 4)
    s_lshl_b32 {sO}, {sG}, 5
    s_add_u32 {sO}, {sO}, {sIdx}
    {"s_xor_b32 s80, s15, 4096" if o["phase"] else "s_mov_b32 s80, 4096"}
    {"s_xor_b32 s81, s15, 8192" if o["phase"] else "s_mov_b32 s81, 8192"}
    {"s_xor_b32 s82, s15, 12288" if o["phase"] else "s_mov_b32 s82, 12288"}
    s_add_u32 s32, s8, {sT0}
    s_addc_u32 s33, s9, 0
    s_mov_b32 s34, s30
    s_mov_b32 s35, 0x20000
    s_mov_b32 s36, s26
    s_mov_b32 s37, s27
    s_mov_b32 s38, {WS_BYTES}
    s_mov_b32 s39, 0x20000
    s_lshr_b32 {sT1}, {sG}, 2
    s_xor_b32 {sT1}, {sT1}, {o["pol"]}
    s_lshl1_add_u32 {sYo}, {sB}, {sT1}
    s_lshl4_add_u32 {sYo}, {sYo}, {sS}
    s_and_b32 {sT1}, {sG}, 3
    s_lshl2_add_u32 {sYo}, {sYo}, {sT1}""")
    c0 = TT + 8
    def small_ops():
        a(f"""    v_lshlrev_b32 {t0}, 4, {vL}
    s_cmp_eq_u32 {sW}, 0
    s_cbranch_scc0 L_sm1""")
        srd(sX, 4, None, 2048)
        a(f"""    s_mov_b32 m0, {XB}
    s_nop 0
    buffer_load_dwordx4 {t0}, {sX}, 0 offen lds
    buffer_load_dwordx4 {t0}, {sX}, 0 offen offset:1024 lds
    s_branch L_sm9
L_sm1:
    s_cmp_eq_u32 {sW}, 3
    s_cbranch_scc0 L_sm2
    buffer_load_dword {vEp}, off, {sWS}, 0 offset:4 sc1
    s_branch L_sm9
L_sm2:
    v_mov_b32 {v(c0)}, -1
    v_mov_b32 {v(c0+1)}, -1
    v_mov_b32 {v(c0+2)}, -1
    v_mov_b32 {v(c0+3)}, -1""")
        slot_addrs()
        a(f"""    s_cmp_eq_u32 {sW}, 1
    s_cbranch_scc1 L_sm3
    v_mov_b32 {cO}, {cF}
    s_mov_b32 exec_lo, 0x00ff00ff
    s_mov_b32 exec_hi, 0x00ff00ff
L_sm3:
    buffer_store_dwordx4 {vr(c0,4)}, {cO}, {sWS}, 0 offen sc1
    s_mov_b64 exec, -1
L_sm9:""")
    for i in range(16):
        if i == o["kpre"]:
            common2()
            if o["esmall"]:
                small_ops()
        kload(i)
        if i + 1 == o["b1at"]:
            stamp(16)
            a(f"    s_waitcnt vmcnt({o['b1at'] - (o['kpre'] if o['esmall'] else 0)})")
            if o["esmall"]:
                a(f"""    s_cmp_eq_u32 {sW}, 3
    s_cbranch_scc0 L_b1
    v_mov_b32 {t3}, {QL + 1028}
    v_add_u32 {vEp}, {TAG_STEP}, {vEp}
    ds_write_b32 {t3}, {vEp}
    s_waitcnt lgkmcnt(0)
L_b1:""")
            a("    s_barrier")
            stamp(22)
    a("L_vloads:")
    for n in range(16):
        for r, d in ((0, 2), (1, 4), (2, 3), (3, 5)):
            key = 4 * n + r
            if key == o["kwait"]:
                a(f"    s_waitcnt vmcnt({key})")
                if o["qkearly"]:
                    a(f"    s_cmp_lt_u32 {sW}, 4\n    s_cbranch_scc0 L_mid\nL_vrest:")
            if o["thr"] and key % 4 == 0:
                dv = 4 * o["thr"]
                thr_wait(dv - 4 if key >= dv else max(0, (dv - 4 - key) // 4 + key))
            a(f"    buffer_load_dword {v(VB+4*n+d)}, {aV}, {sV}, {c4k[key//16]} offen offset:{(key%16)*256} {kvf}")
    stamp(5)
    a(f"""    s_cmp_lt_u32 {sW}, 4
    s_cbranch_scc0 L_joined
    s_branch L_setup
L_young:""")
    if o["prefetch"]:
        a(f"""    ; each of these waves pulls 128 bytes of the code into L2
    s_getpc_b64 s[94:95]
L_pc:
    s_lshl2_add_u32 {sT2}, {sIdx}, {sW}
    s_sub_u32 {sT2}, {sT2}, 4
    s_lshl_b32 {sT2}, {sT2}, 7
    s_min_u32 {sT2}, {sT2}, L_codeend-L_pc-64
    v_lshl_add_u32 {t2}, {vL}, 6, {sT2}
    s_mov_b64 exec, 3
    global_load_dword {vDum}, {t2}, s[94:95]
    s_mov_b64 exec, -1""")
    a(f"""    v_mov_b32 {t3}, {QL + 1024}
    v_mov_b32 {t4}, 0
    ds_write_b32 {t3}, {t4}
    s_waitcnt lgkmcnt(0)
    s_add_u32 s28, s6, {sT0}
    s_addc_u32 s29, s7, 0""")
    phase0()
    common2()
    a(f"""    s_cmp_eq_u32 {sW}, 7
    s_cbranch_scc1 L_w7a
    {"s_barrier" if o["b1first"] else ""}
    s_branch L_setup
L_w7a:""")
    a("    s_setprio 3")
    if not o["esmall"]:
        srd(sX, 4, None, 2048)
        a(f"""    s_mov_b32 m0, {XB}
    v_lshlrev_b32 {t0}, 4, {vL}
    v_mov_b32 {v(c0)}, -1
    buffer_load_dwordx4 {t0}, {sX}, 0 offen lds
    buffer_load_dwordx4 {t0}, {sX}, 0 offen offset:1024 lds
    buffer_load_dword {vEp}, off, {sWS}, 0 offset:4 sc1
    v_mov_b32 {v(c0+1)}, -1
    v_mov_b32 {v(c0+2)}, -1
    v_mov_b32 {v(c0+3)}, -1""")
        slot_addrs()
        if not o["x_noclr"]:
            a(f"""    buffer_store_dwordx4 {vr(c0,4)}, {cO}, {sWS}, 0 offen sc1
    s_mov_b32 exec_lo, 0x00ff00ff
    s_mov_b32 exec_hi, 0x00ff00ff
    buffer_store_dwordx4 {vr(c0,4)}, {cF}, {sWS}, 0 offen sc1
    s_mov_b64 exec, -1""")
    a(f"""L_setup:
    v_bfe_u32 {t5}, {vL}, 3, 2
    v_lshlrev_b32 {vDma}, 3, {t5}
    v_lshrrev_b32 {t5}, 5, {vL}
    v_lshl_add_u32 {vDma}, {t5}, 2, {vDma}
    v_bfe_u32 {t5}, {vL}, 1, 2
    v_add_u32 {vDma}, {vDma}, {t5}
    v_and_b32 {vHalf}, 1, {vL}
    v_lshlrev_b32 {vHalf}, 4, {vHalf}
    s_mul_i32 {sM0}, {sW}, {WVS}""")
    h8 = t1
    a(f"""    s_mov_b32 s86, 0x00030003
    s_mov_b32 s87, 0x00030003
    s_mov_b32 s88, 0x01010101
    s_mov_b32 s89, 0x01010101
    s_mov_b32 s90, 0x01010101
    s_mov_b32 s91, 0
    s_mov_b32 s92, 0x00001111
    s_mov_b32 s93, 0x00001111
    s_mov_b32 s96, 0x11111111
    s_mov_b32 s97, 0
    s_mov_b32 {sPlo}, 0x05040100
    s_mov_b32 {sPhi}, 0x07060302
    s_mov_b32 {sCnt}, {o['spin']}
    s_mov_b32 {sL}, 0
    s_mov_b32 {sLO}, 0
    s_mov_b32 {sPure}, 0
    s_mov_b32 {sMode}, 0
    v_lshrrev_b32 {t2}, 1, {vKG}
    v_and_b32 {t3}, 1, {vKG}
    v_lshl_add_u32 {vT}, {vL}, 3, {sM0}
    s_lshl_b32 {sT2}, {sW}, 8
    s_add_u32 {sT2}, {sT2}, {RQ}                ; RQ + w*256
    v_add_u32 {vW4}, {sT2}, {aV}
    v_add_u32 {vR4}, {RQ}, {aV}
    v_lshlrev_b32 {vWd}, 6, {vC}
    v_lshl_add_u32 {vWd}, {vKG}, 4, {vWd}
    v_add_u32 {vWd}, {sT2}, {vWd}
    v_lshlrev_b32 {t5}, 4, {vL}
    v_add_u32 {vL16}, {sT2}, {t5}
    v_add_u32 {t5}, {DUM}, {t5}
    v_add_u32 {vWg}, {2048 - 128}, {vWd}
    v_cmp_eq_u32 vcc, 2, {vC}
    v_cndmask_b32 {vWg}, {t5}, {vWg}, vcc
    v_cmp_gt_u32 vcc, 2, {vC}
    v_cndmask_b32 {vWg}, {vWg}, {vWd}, vcc
    v_cndmask_b32 {vWd}, {t5}, {vWd}, vcc
    v_cmp_gt_u32 vcc, 2, {vL}
    v_cndmask_b32 {vL16}, {t5}, {vL16}, vcc
    v_mov_b32 {vInv}, {f32(1/512)}
    v_mov_b32 {vScale}, {f32(128**-0.5 * math.log2(math.e))}
    v_mov_b32 {vRes}, 0
    v_mov_b32 {vX1}, 0
    v_mov_b32 {v(XO+20)}, 0
    ds_write_b32 {vR4}, {vRes} offset:{RD - RQ + 7*256}
    v_lshrrev_b32 {t4}, 2, {vC}
    s_and_b32 {sT3}, {sO}, 0xf0
    s_lshl_b32 {sT3}, {sT3}, 7
    s_add_u32 {sT3}, {sT3}, {W_Q2}
    v_lshl_add_u32 {aQ2}, {vL}, 4, {sT3}
    s_lshl_b32 {sT2}, {sG}, 12
    s_lshl_b32 {sT3}, {sW}, 8
    s_add_u32 {sT2}, {sT2}, {sT3}
    s_add_u32 {sT2}, {sT2}, {W_H}
    v_lshl_add_u32 {aH}, {t2}, 7, {sT2}
    v_lshl_add_u32 {aH}, {vC}, 5, {aH}
    v_lshl_add_u32 {aH}, {t3}, 4, {aH}
    s_and_b32 {sT2}, {sO}, 0xf0
    s_lshl_b32 {sT3}, {sW}, 1
    s_add_u32 {sT3}, {sT3}, {sT2}
    s_lshl_b32 {sT3}, {sT3}, 10
    s_add_u32 {sT3}, {sT3}, {W_O}
    v_lshl_add_u32 {aO}, {vL}, 4, {sT3}
    v_lshl_add_u32 {aML}, {vKG}, 2, {vC}
    v_and_b32 {aML}, 15, {aML}
    s_lshr_b32 {sT3}, {sW}, 1
    s_add_u32 {sT3}, {sT3}, {sT2}
    s_lshl_b32 {sT3}, {sT3}, 7
    s_add_u32 {sT3}, {sT3}, {W_ML}
    v_lshl_add_u32 {aML}, {aML}, 3, {sT3}
    v_xor_b32 {t1}, {o["pol"]}, {t2}
    v_lshlrev_b32 {t1}, 13, {t1}
    v_lshrrev_b32 {aY}, 3, {vC}
    v_lshl_add_u32 {aY}, {aY}, 9, {t1}
    v_lshl_add_u32 {aY}, {t3}, 14, {aY}
    v_and_b32 {t5}, 7, {vC}
    v_lshl_add_u32 {aY}, {t5}, 4, {aY}
    s_lshl_b32 {sT3}, {sW}, 10
    s_add_u32 {sT3}, {sT3}, {W_Y}
    v_add_u32 {aY}, {sT3}, {aY}
    v_bfe_u32 {aZ}, {vL}, 3, 2
    v_lshl_add_u32 {aZ}, {aZ}, 9, {t1}
    v_lshl_add_u32 {aZ}, {t5}, 4, {aZ}
    s_lshr_b32 {sT2}, {sW}, 2
    s_lshl_b32 {sT2}, {sT2}, 14
    s_and_b32 {sT3}, {sW}, 3
    s_lshl_b32 {sT3}, {sT3}, 11
    s_add_u32 {sT3}, {sT3}, {sT2}
    s_add_u32 {sT3}, {sT3}, {W_Z}
    v_add_u32 {aZ}, {sT3}, {aZ}
    ; x1 for this workgroup's 16 columns: b'*16384 + gh*8192 + (idx>>1)*512 + (idx&1)*64 + c*4
    v_lshl_add_u32 {t5}, {vC}, 2, {t1}
    s_lshr_b32 {sT2}, {sIdx}, 1
    s_lshl_b32 {sT2}, {sT2}, 9
    s_lshl_b32 {sT3}, {sKh}, 6
    s_add_u32 {sT2}, {sT2}, {sT3}
    s_add_u32 {sT2}, {sT2}, {W_Y}
    v_lshl_add_u32 {aX1}, {t3}, 14, {t5}
    v_add_u32 {aX1}, {sT2}, {aX1}
    s_lshl_b32 {sT2}, {sB}, 14
    s_lshl_b32 {sT3}, {sS}, 9
    s_add_u32 {sT2}, {sT2}, {sT3}
    s_add_u32 {sT2}, {sT2}, {W_Z}
    v_lshl_add_u32 {aFin}, {t3}, 6, {t5}
    v_add_u32 {aFin}, {sT2}, {aFin}
    s_lshl_b32 {sT2}, {sIdx}, 5
    v_lshlrev_b32 {pOut}, 10, {t3}
    v_lshl_add_u32 {pOut}, {vC}, 1, {pOut}
    v_add_u32 {pOut}, {sT2}, {pOut}
    s_and_b32 {sT1}, {sO}, 0xf0                 ; O: (o & 0xf0)*1024 + w*4096 + (l>>2)*256 + s*16 + (l&3)*4
    s_lshl_b32 {sT2}, {sW}, 2
    s_add_u32 {sT2}, {sT2}, {sT1}
    s_lshl_b32 {sT2}, {sT2}, 10
    s_lshl_b32 {sT3}, {sS}, 4
    s_add_u32 {sT2}, {sT2}, {sT3}
    s_add_u32 {sT2}, {sT2}, {W_O}
    v_lshrrev_b32 {pO}, 2, {vL}
    v_lshl_add_u32 {pO}, {pO}, 8, {sT2}
    v_and_b32 {t5}, 3, {vL}
    v_lshl_add_u32 {pO}, {t5}, 2, {pO}
    s_add_u32 {sT2}, {sT1}, {sW}
    s_lshl_b32 {sT2}, {sT2}, 7
    s_lshl_b32 {sT3}, {sS}, 3
    s_add_u32 {sT2}, {sT2}, {sT3}
    s_add_u32 {sT2}, {sT2}, {W_ML}
    v_mov_b32 {pML}, {sT2}
    s_bfe_u32 {sT2}, {sIdx}, 0x20001
    s_lshl_b32 {sT2}, {sT2}, 2
    s_lshr_b32 {sT3}, {sIdx}, 3
    s_add_u32 {sT2}, {sT2}, {sT3}
    s_lshl_b32 {sT2}, {sT2}, 4
    s_lshl_b32 {sT3}, {sG}, 12
    s_add_u32 {sT2}, {sT2}, {sT3}
    s_lshl_b32 {sT3}, {sKh}, 10
    s_add_u32 {sT2}, {sT2}, {sT3}
    s_add_u32 {sT2}, {sT2}, {W_Q2}
    v_lshl_add_u32 {pQ}, {t3}, 11, {sT2}
    v_lshl_add_u32 {pQ}, {t2}, 9, {pQ}
    v_lshrrev_b32 {t5}, 3, {vC}
    v_lshl_add_u32 {pQ}, {t5}, 8, {pQ}
    s_lshl_b32 {sT2}, {sO}, 7
    v_lshl_add_u32 {pS}, {vL}, 1, {sT2}         ; o*128 + (b*16+n)*2
    s_lshl_b32 {sT2}, {sYo}, 7
    s_add_u32 {sT3}, {sT2}, {W_Z}
    v_add_u32 {pZ}, {sT3}, {aV}
    s_add_u32 {sT2}, {sT2}, {W_Y}
    v_lshlrev_b32 {pY}, 2, {vC}
    v_lshl_add_u32 {pY}, {t2}, 6, {pY}
    v_add_u32 {pY}, {sT2}, {pY}
    v_lshrrev_b32 {vT0}, 2, {vL}
    v_lshlrev_b32 {vT0}, 6, {vT0}
    v_and_b32 {vT1}, 3, {vL}
    v_lshl_add_u32 {vT0}, {vT1}, 3, {vT0}
    v_lshl_add_u32 {vT0}, {t3}, 5, {vT0}
    s_and_b32 {sT2}, {sW}, 3
    s_mul_i32 {sT2}, {sT2}, {2*WVS}
    v_add_u32 {vTq}, {sT2}, {vT0}
    v_add_u32 {vT0}, {sM0}, {vT0}
    v_xor_b32 {vT1}, 32, {vT0}
    s_lshl_b32 {sT2}, {sW}, 11
    s_add_u32 {sT2}, {sT2}, {OB}
    v_lshl_add_u32 {vOw}, {vL}, 3, {sT2}
    v_add_u32 {vOw2}, 1024, {vOw}
    s_lshl_b32 {sT2}, {sW}, 9
    s_add_u32 {sT2}, {sT2}, {OB}
    v_lshl_add_u32 {vOr}, {vL}, 3, {sT2}
    s_lshl_b32 {sT2}, {sW}, 3
    s_add_u32 {sT2}, {sT2}, {MLB}
    v_and_b32 {vMLw}, 3, {vL}
    v_lshl_add_u32 {vMLw}, {vMLw}, 6, {sT2}
    s_lshl_b32 {sT2}, {sW}, 6
    s_add_u32 {sT2}, {sT2}, {MLB}
    v_and_b32 {vMLr}, 7, {vL}
    v_lshl_add_u32 {vMLr}, {vMLr}, 3, {sT2}
    v_lshlrev_b32 {vR4c}, 2, {vC}
    v_lshl_add_u32 {vR4c}, {t2}, 7, {vR4c}
    v_add_u32 {vR4c}, {RQC}, {vR4c}
    ; x staging
    s_lshl_b32 {sT2}, {sW}, 7
    s_add_u32 {sT2}, {sT2}, {XB}
    v_lshl_add_u32 {vXw}, {t3}, 10, {sT2}
    v_lshl_add_u32 {vXw}, {vC}, 3, {vXw}
    v_lshl_add_u32 {vXw}, {t2}, 2, {vXw}
    v_min_u32 {vXr}, 2, {vC}
    v_lshl_add_u32 {vXr}, {vXr}, 10, {sT2}
    v_lshl_add_u32 {vXr}, {vKG}, 4, {vXr}
    v_lshlrev_b32 {t5}, 2, {t3}
    v_cmp_gt_u32 vcc, 8, {vC}
    v_cndmask_b32 {t5}, 8, {t5}, vcc
    v_and_b32 {vGS}, 7, {vL}
    v_lshlrev_b32 {vGS}, 8, {vGS}
    v_lshl_add_u32 {vGS}, {t3}, 4, {vGS}
    v_add_u32 {vGS}, {vGS}, {t5}
    v_add_u32 {vGS}, {RQC + 192}, {vGS}
    v_lshlrev_b32 {t5}, 1, {vC}
    v_lshl_add_u32 {t5}, {t2}, 5, {t5}
    s_lshl_b32 {sT2}, {sB}, 10
    s_lshl_b32 {sT3}, {sS}, 6
    s_add_u32 {sT2}, {sT2}, {sT3}
    s_add_u32 {sT2}, {sT2}, {XB}
    v_add_u32 {aRes}, {sT2}, {t5}
    s_lshl_b32 {sT1}, {sG}, 19                  ; wo: (512g + 64(w&3))*1024 + s*64
    s_and_b32 {sT2}, {sW}, 3
    s_lshl_b32 {sT2}, {sT2}, 16
    s_add_u32 {sT1}, {sT1}, {sT2}
    s_lshl_b32 {sT2}, {sS}, 6
    s_add_u32 {sT1}, {sT1}, {sT2}""")
    srd(sWo, 12, sT1, 4194304)
    srd(sOut, 22, None, 2048)
    a(f"""    s_mul_i32 {sT1}, {sG}, 14
    s_min_u32 {sT2}, {sIdx}, 13
    s_add_u32 {sT1}, {sT1}, {sT2}
    s_lshl_b32 {sT1}, {sT1}, 5
    s_mul_i32 {sT2}, {sW}, {64*3584}
    s_add_u32 {sT1}, {sT1}, {sT2}""")
    srd(sWg, 16, sT1, 1835008)
    srd(sWu, 18, sT1, 1835008)
    a(f"""    s_mul_i32 {sT1}, {sG}, 7
    s_min_u32 {sT2}, {sW}, 6
    s_add_u32 {sT1}, {sT1}, {sT2}
    s_lshl_b32 {sT1}, {sT1}, 15
    s_lshl_b32 {sT2}, {sIdx}, 5
    s_add_u32 {sT1}, {sT1}, {sT2}""")
    srd(sWd, 20, sT1, 1835008)
    a(f"""    s_cmp_lt_u32 {sW}, 4
    s_cbranch_scc1 L_joined
    s_cmp_eq_u32 {sW}, 7
    s_cbranch_scc0 L_young2""")
    b0, b1, bx, by = t0, t1, t2, t5
    a(f"""    v_mov_b32 {v(DD)}, 0x3f803f80
    v_mov_b32 {v(DD+1)}, 0x3f803f80
    v_mov_b32 {v(DD+2)}, 0x3f803f80
    v_mov_b32 {v(DD+3)}, 0x3f803f80
    v_lshlrev_b32 {b0}, 4, {vL}
    v_add_u32 {b0}, {ONES}, {b0}
    ds_write_b128 {b0}, {vr(DD,4)}
    v_subrev_u32 {b0}, {sM0}, {vT0}
    v_xor_b32 {b1}, 32, {b0}
    s_lshl_b32 {sT2}, {sKh}, 9
    v_subrev_u32 {bx}, {7*128}, {vXr}
    v_add_u32 {bx}, {sT2}, {bx}
    v_xor_b32 {by}, 512, {bx}
    v_mov_b32 {t3}, {QL + 1028}""")
    if o["esmall"]:
        a(f"    s_waitcnt lgkmcnt(0)\n    s_barrier\n    ds_read_b32 {vEp}, {t3}")
    else:
        a(f"""    s_waitcnt vmcnt(0)
    v_add_u32 {vEp}, {TAG_STEP}, {vEp}
    ds_write_b32 {t3}, {vEp}
    s_waitcnt lgkmcnt(0)
    s_barrier""")
    assert XB % 1024 == 0
    def q1_reads(k):
        if k == 4:
            a(f"    v_add_u32 {b0}, {4*WVS}, {b0}\n    v_add_u32 {b1}, {4*WVS}, {b1}")
        off = (k & 3) * WVS + T_WQ
        A, B = WB + 8 * (k & 1), XO + 8 * (k & 1)
        for ct in range(2):
            for jj in range(2):
                a(f"    ds_read_b64_tr_b16 {vr(A+4*ct+2*jj,2)}, {(b0, b1)[ct]} offset:{off + 1024*jj}")
        a(f"    ds_read_b128 {vr(B,4)}, {bx} offset:{64*k}")
        a(f"    ds_read_b128 {vr(B+4,4)}, {by} offset:{64*k}")
    q1_reads(0); q1_reads(1)
    D0, D1, DS = DD, DD + 12, DD + 4
    for k in range(8):
        a(f"    s_waitcnt lgkmcnt({6 if k < 7 else 0})")
        A, B = WB + 8 * (k & 1), XO + 8 * (k & 1)
        c = lambda r: vr(r, 4) if k else "0"
        a(f"    v_mfma_f32_16x16x32_bf16 {vr(D0,4)}, {vr(A,4)}, {vr(B,4)}, {c(D0)}")
        a(f"    v_mfma_f32_16x16x32_bf16 {vr(DS,4)}, {vr(B,4)}, {vr(B,4)}, {c(DS)}")
        a(f"    v_mfma_f32_16x16x32_bf16 {vr(D1,4)}, {vr(A+4,4)}, {vr(B,4)}, {c(D1)}")
        a(f"    v_mfma_f32_16x16x32_bf16 {vr(DS,4)}, {vr(B+4,4)}, {vr(B+4,4)}, {vr(DS,4)}")
        if k + 2 < 8:
            q1_reads(k + 2)
    S2, S1, mu, rs = v(DD + 8), v(DD + 9), v(DD + 10), v(DD + 11)
    a(f"""    v_cmp_eq_u32 vcc, 0, {vC}
    v_readlane_b32 {sT0}, {v(DD+4)}, 0
    v_readlane_b32 {sT1}, {v(DD+5)}, 1
    v_readlane_b32 {sT2}, {v(DD+6)}, 0
    v_readlane_b32 {sT3}, {v(DD+6)}, 1
    v_mov_b32 {S2}, {sT0}
    v_mov_b32 {t3}, {sT1}
    v_mov_b32 {S1}, {sT2}
    v_mov_b32 {t4}, {sT3}
    v_cndmask_b32 {S2}, {t3}, {S2}, vcc
    v_cndmask_b32 {S1}, {t4}, {S1}, vcc""")
    ln_stats(S2, S1, mu, rs)
    a(f"""    s_lshl_b32 {sT2}, {sG}, 13
    s_lshl_b32 {sT3}, {sKh}, 11
    s_add_u32 {sT2}, {sT2}, {sT3}
    s_lshr_b32 {sT3}, {sIdx}, 1
    s_lshl_b32 {sT3}, {sT3}, 7
    s_add_u32 {sT2}, {sT2}, {sT3}
    s_add_u32 {sT2}, {sT2}, {W_Q1}
    v_lshlrev_b32 {t3}, 7, {vC}
    v_lshl_add_u32 {t3}, {vKG}, 4, {t3}
    v_add_u32 {t3}, {OB + 7*2048}, {t3}
    v_lshlrev_b32 {t4}, 4, {vL}
    v_add_u32 {t1}, {OB + 7*2048}, {t4}
    v_lshrrev_b32 {t0}, 3, {vL}
    v_mul_u32_u24 {t0}, {4096 - 128}, {t0}
    v_add_u32 {t0}, {t0}, {t4}""")
    for ct, D in enumerate((D0, D1)):
        P4 = XO + 4 * ct
        for r in range(4):
            a(f"    v_mul_f32_dpp {v(DD+4+r)}, {v(D+r)}, {mu} quad_perm:[2,2,2,2] {DPP}")
        for r in range(4):
            a(f"    v_sub_f32 {v(D+r)}, {v(D+r)}, {v(DD+4+r)}")
            a(f"    v_mul_f32 {v(D+r)}, {v(D+r)}, {rs}")
        a(f"""    v_cvt_pk_bf16_f32 {v(P4)}, {v(D)}, {v(D+1)}
    v_cvt_pk_bf16_f32 {v(P4+2)}, {v(D+2)}, {v(D+3)}
    v_add_u32 {v(P4+1)}, {sXcc}, {vEp}
    v_add_u32 {v(P4+3)}, {sXcc}, {vEp}""")
    a(f"""    ds_write_b128 {t3}, {vr(XO,4)}
    ds_write_b128 {t3}, {vr(XO+4,4)} offset:64
    ds_read_b128 {vr(XO+8,4)}, {t1}
    s_mov_b64 exec, 0xffff
    s_waitcnt lgkmcnt(0)""")
    if not o["x_nopub"]:
        a(f"    buffer_store_dwordx4 {vr(XO+8,4)}, {t0}, {sWS}, {sT2} offen {'' if o['q1plain'] else 'sc1'}")
        if o["q1plain"]:
            a(f"    v_add_u32 {v(XO+20)}, {sT2}, {t0}")
            for i in range(4):
                a(f"    v_mov_b32 {v(XO+16+i)}, {v(XO+8+i)}")
    execm("-1")
    stamp(3)
    a("    s_setprio 0")
    a("    s_branch L_young3\nL_young2:")
    if o["touch"]:
        a("    s_mov_b64 exec, 1")
        groups = [[], [], []]
        if "v" in o["touch"]: groups[0].append(sV)
        if "w" in o["touch"]: groups[0].append(sWo); groups[1] += [sWg, sWu]; groups[2].append(sWd)
        if "o" in o["touch"]: groups[2].append(sOut)
        for k, grp in enumerate(groups):
            a(f"    s_cmp_eq_u32 {sW}, {4 + k}\n    s_cbranch_scc0 L_tc{k}")
            for d in grp:
                a(f"    buffer_load_dword {vDum}, off, {d}, 0")
            a(f"L_tc{k}:")
        a("    s_mov_b64 exec, -1")
    if not o["b1first"]:
        a("    s_barrier")
    a("L_young3:")
    for i in range(16):
        kload(i)
    a("    s_branch L_vloads\nL_joined:")

    def wo_own(lo=0, hi=4):
        if lo == hi:
            return
        r64_addr(10)
        a(f"    s_lshr_b32 {sT3}, {sW}, 2\n    s_lshl_b32 {sT3}, {sT3}, 18")
        for m, so in list(enumerate((0, 4096, 32768, 36864)))[lo:hi]:
            a(f"    s_add_u32 {sT2}, {sT3}, {so}")
            dma(sWo, T_WO + 1024 * m, sT2)
    def late_loads(y=None):
        if o["woown"]:
            wo_own()
        else:
          r64_addr(10)
        for half in range(0 if o["woown"] else 2):
            for m, so in enumerate((0, 4096, 32768, 36864)):
                a(f"    s_mov_b32 {sT2}, {so + half * 262144}")
                dma(sWo, T_WO + 1024 * m + (half - (o["wo_at"] == "Y" or bool(y))) * 4 * WVS, sT2)
        if o["pf_at"] == "wo":
            pf_load(y)
    def pf_load(y=None):
        t = v(TT + 7)
        if not o["l2pf"]:
            return
        if o["wdlate"]:
            a(f"""    s_sub_u32 {sT2}, {sW}, 1
    s_lshl1_add_u32 {sT1}, {sIdx}, {sT2}
    s_cmp_lt_u32 {sT2}, 2
    s_cselect_b32 {sT1}, {sT1}, 96""")
        else:
          a(f"""    s_mul_i32 {sT1}, {sIdx}, 3                  ; waves 1..3 of every workgroup
    s_sub_u32 {sT2}, {sW}, {5 if ((o["wo_at"] == "Y" or y) and o["pf_at"] == "wo") else 1}
    s_add_u32 {sT1}, {sT1}, {sT2}
    s_add_u32 {sT1}, {sT1}, 1
    s_cmp_lt_u32 {sT2}, 3
    s_cselect_b32 {sT1}, {sT1}, 97
    s_sub_u32 {sT1}, 96, {sT1}""")
        a(f"""    s_cmp_lt_u32 {sT1}, 64
    s_cbranch_scc0 L_pf_d{y or ''}
    s_and_b32 {sT2}, {sT1}, 31
    s_mul_i32 {sT2}, {sT2}, {16*3584}
    s_mul_i32 {sT3}, {sG}, 448
    s_add_u32 {sT2}, {sT2}, {sT3}
    v_lshrrev_b32 {t}, 2, {vL}
    v_mul_u32_u24 {t}, 3584, {t}
    v_and_b32 {vA}, 3, {vL}
    v_lshl_add_u32 {t}, {vA}, 7, {t}
    s_cmp_lt_u32 {sT1}, 32
    s_cselect_b32 s40, s16, s18
    s_cselect_b32 s41, s17, s19
    s_mov_b32 s42, 1835008
    s_branch L_pf_go{y or ''}
L_pf_d{y or ''}:
    s_sub_u32 {sT2}, {sT1}, 64
    s_lshl_b32 {sT2}, {sT2}, 13
    s_mul_i32 {sT3}, {sG}, {224*1024}
    s_add_u32 {sT2}, {sT2}, {sT3}
    v_lshlrev_b32 {t}, 7, {vL}
    s_mov_b32 s40, s20
    s_mov_b32 s41, s21
    s_cmp_lt_u32 {sT1}, {0 if o["wdlate"] else 92}
    s_cselect_b32 s42, 1835008, 0
L_pf_go{y or ''}:
    s_mov_b32 s43, 0x20000
    buffer_load_dword {vDum}, {t}, {sWq}, {sT2} offen {wf}""")
    def wd_load():
        a(f"    v_lshl_add_u32 {vA}, {vDma}, 10, {vHalf}")
        dma(sWd, T_WD, "0")
    nD = 0

    def wo_read():
        for e in range(2):
            for ct in range(2):
                for j in range(2):
                    a(f"    ds_read_b64_tr_b16 {vr(WB+8*e+4*ct+2*j,2)}, {(vT0, vT1)[ct]} offset:{T_WO + 1024*(2*e+j)}")

    a(f"""    s_cmp_eq_u32 {sW}, {99 if o["x_nogather"] else 1}
    s_cbranch_scc0 L_h2
    v_mov_b32 {t5}, {QL + 1028}
    ds_read_b32 {vEp}, {t5}
    s_lshr_b32 {sT2}, {sO}, 4
    s_lshl_b32 {sT2}, {sT2}, 12
    s_add_u32 {sT2}, {sT2}, {W_Q1}
    v_lshl_add_u32 {t5}, {vL}, 4, {sT2}
L_hq:""")
    for i in range(4):
        a(f"    buffer_load_dwordx4 {vr(DD+4*i,4)}, {t5}, {sWS}, 0 offen offset:{1024*i} sc1")
    a("    s_waitcnt vmcnt(0) lgkmcnt(0)")
    for r in range(DD + 1, DD + 16, 2):
        a(f"    v_sub_u32 {v(r)}, {v(r)}, {vEp}")
    a(f"""    v_max3_u32 {CHK}, {v(DD+1)}, {v(DD+3)}, {v(DD+5)}
    v_max3_u32 {CHK}, {v(DD+7)}, {v(DD+9)}, {CHK}
    v_max3_u32 {CHK}, {v(DD+11)}, {v(DD+13)}, {CHK}
    v_max_u32 {CHK}, {v(DD+15)}, {CHK}
    v_cmp_lt_u32 vcc, 15, {CHK}""")
    spin_tail("L_hq")
    a(f"""    v_cmp_ne_u32 vcc, {sXcc}, {v(DD+1)}
    v_cmp_ne_u32 s[94:95], {sXcc}, {v(DD+9)}""")
    add_bf16x8(XO, [v(DD + 2 * i) for i in range(4)], [v(DD + 8 + 2 * i) for i in range(4)])
    a(f"""    v_cmp_ne_u32 s[8:9], {sXcc}, {v(DD+5)}
    s_or_b64 s[94:95], s[94:95], vcc
    v_cmp_ne_u32 vcc, {sXcc}, {v(DD+13)}
    v_bfe_u32 {t5}, {vL}, 1, 2
    v_lshlrev_b32 {t5}, 8, {t5}
    v_bfe_u32 {t4}, {vL}, 3, 2
    v_lshl_add_u32 {t5}, {t4}, 6, {t5}
    v_lshrrev_b32 {t4}, 5, {vL}
    v_lshl_add_u32 {t5}, {t4}, 4, {t5}
    v_and_b32 {t4}, 1, {vL}
    v_lshl_add_u32 {t5}, {t4}, 3, {t5}
    v_add_u32 {t5}, {QL}, {t5}
    s_or_b64 s[94:95], s[94:95], s[8:9]
    s_or_b64 vcc, vcc, s[94:95]
    s_cselect_b32 {sT1}, 1, 3
    v_mov_b32 {v(DD+4)}, {sT1}
    ds_write_b64 {t5}, {vr(XO,2)}
    ds_write_b64 {t5}, {vr(XO+2,2)} offset:32
    v_mov_b32 {t5}, {QL + 1024}
    ds_write_b32 {t5}, {v(DD+4)}""")
    stamp(4)
    def lead_flag():
        a(f"""    s_cmp_eq_u32 {sIdx}, 0
    s_cbranch_scc0 L_nolead
    s_lshl_b32 {sT1}, {sG}, 7
    s_add_u32 {sT1}, {sT1}, {W_GF}
    v_mov_b32 {v(DD)}, {vEp}
    v_mov_b32 {v(DD+1)}, {vEp}
    v_mov_b32 {v(DD+2)}, {vEp}
    v_mov_b32 {v(DD+3)}, {vEp}
    v_lshlrev_b32 {t5}, 4, {vL}
    s_mov_b64 exec, 0xff
    buffer_store_dwordx4 {vr(DD,4)}, {t5}, {sWS}, {sT1} offen sc1
    s_mov_b64 exec, -1
L_nolead:""")
    if not o["leadx"]:
        lead_flag()
    a("L_h2:")
    if o["klin"]:
        assert o["qkearly"]
        a(f"    s_cmp_lt_u32 {sW}, 4\n    s_cbranch_scc0 L_h3")
        if o["mk2"] == "w3":
            a(f"    s_cmp_eq_u32 {sW}, 3\n    s_cbranch_scc0 L_mk9")
            marks2(TT + 8)
            a("L_mk9:")
        kshuffle()
        if o["woown"]:
            a("    s_waitcnt vmcnt(0)")
        a("L_h3:")
    a(f"""    v_lshlrev_b32 {t0}, 4, {vL}
    v_add_u32 {t0}, {QL}, {t0}
    v_mov_b32 {t2}, {QL + 1024}
    s_cmp_lt_u32 {sW}, 4
    s_cbranch_scc1 L_qf""")
    if o["q1plain"]:
        a(f"    s_cmp_eq_u32 {sW}, 7\n    s_cbranch_scc1 L_q1wt\nL_q1wt9:")
        tail(f"""L_q1wt:
    ds_read_b32 {t1}, {t2}
    s_waitcnt lgkmcnt(0)
    v_cmp_eq_u32 vcc, 3, {t1}
    s_cbranch_vccnz L_q1wt9
    s_mov_b64 exec, 0xffff
    buffer_store_dwordx4 {vr(XO+16,4)}, {v(XO+20)}, {sWS}, 0 offen sc1
    s_mov_b64 exec, -1
    s_waitcnt vmcnt(0)
    s_branch L_q1wt9""")
    a(f"""    {"s_barrier" if o["wo_at"] == "X" else ""}""")
    if o["woown"]:
        wo_own(0, o["wox"])
    a(f"""
    {"s_cmp_eq_u32 " + sMode + ", 1" if o["qkearly"] else ""}
    {"s_cbranch_scc1 L_pv1b" if o["qkearly"] else ""}
L_qf:
    ds_read_b32 {t1}, {t2}
    s_waitcnt lgkmcnt(0)
    v_cmp_eq_u32 vcc, {77 if o["x_nogather"] else 0}, {t1}""")
    spin_tail("L_qf")
    if o["qkearly"]:
        tail("L_mid:")
        into(tail, kshuffle)
        tail(f"""    v_mov_b32 {t2}, {QL + 1024}
    ds_read_b32 {t1}, {t2}
    v_lshlrev_b32 {t0}, 4, {vL}
    v_add_u32 {t0}, {QL}, {t0}
    s_waitcnt lgkmcnt(0)
    v_cmp_eq_u32 vcc, 0, {t1}
    s_cbranch_vccnz L_vrest
    s_mov_b32 {sMode}, 1
    s_branch L_qf_ok""")
    a(f"""    ds_read_b128 {vr(XO,4)}, {t0}
    v_readfirstlane_b32 {sPure}, {t1}
    s_lshr_b32 {sPure}, {sPure}, 1
    s_waitcnt lgkmcnt(0)""")
    stamp(6)
    a("    s_branch L_attn")
    a(f"L_q:\n    v_xor_b32 {vA}, 32, {vTq}")
    for e in range(2):
        for ct in range(2):
            for jj in range(2):
                a(f"    ds_read_b64_tr_b16 {vr(WB+8*e+4*ct+2*jj,2)}, {(vTq, vA)[ct]} offset:{e*WVS + T_WQ + 1024*jj}")
    a(f"""    s_lshl_b32 {sT1}, {sKh}, 10
    v_add_u32 {v(TT+16)}, {sT1}, {vR4}
    v_add_u32 {v(TT+17)}, {sT1}, {vR4c}
    v_bfe_u32 {v(TT+15)}, {vL}, 2, 1
    v_lshlrev_b32 {v(TT+15)}, 10, {v(TT+15)}
    v_bfe_u32 {t0}, {vL}, 3, 2
    v_lshl_add_u32 {v(TT+15)}, {t0}, 5, {v(TT+15)}
    v_and_b32 {t0}, 3, {vL}
    v_lshl_add_u32 {v(TT+15)}, {t0}, 3, {v(TT+15)}
    v_lshrrev_b32 {t0}, 5, {vL}
    v_lshl_add_u32 {v(TT+15)}, {t0}, 2, {v(TT+15)}
    s_lshl_b32 {sT2}, {sW}, 7
    s_add_u32 {sT2}, {sT2}, {XB}
    v_add_u32 {v(TT+15)}, {sT2}, {v(TT+15)}
    s_lshr_b32 {sT1}, {sW}, 2
    s_mov_b32 {sL}, {LSTR}
    s_mov_b32 {sLO}, {OSTR}""")
    if "d" in o["hint"]:
        a(f"    s_cmp_eq_u32 {sW}, 0\n    s_cbranch_scc0 L_q0")
        hint_wait("L_hd")
        a("L_q0:")
    ackwait()
    a("    s_barrier")
    stamp(15)
    gather_x(aZ, "0", "L_pd", lambda: stamp(17), None, v(TT + 15))
    if not o["inl"]:
        a(f"    s_cmp_eq_u32 {sT1}, {sKh}\n    s_cbranch_scc0 L_ql")
    a(f"""    s_waitcnt lgkmcnt(1)
    v_mfma_f32_16x16x32_bf16 {vr(DD,4)}, {vr(WB,4)}, {vr(XO,4)}, 0
    v_mfma_f32_16x16x32_bf16 {vr(DD+4,4)}, {vr(WB+4,4)}, {vr(XO,4)}, 0
    v_mfma_f32_16x16x32_bf16 {vr(DD+8,4)}, {vr(XO,4)}, {vr(XO,4)}, 0
    s_waitcnt lgkmcnt(0)
    v_mfma_f32_16x16x32_bf16 {vr(DD,4)}, {vr(WB+8,4)}, {vr(XO+4,4)}, {vr(DD,4)}
    v_mfma_f32_16x16x32_bf16 {vr(DD+4,4)}, {vr(WB+12,4)}, {vr(XO+4,4)}, {vr(DD+4,4)}
    v_mfma_f32_16x16x32_bf16 {vr(DD+8,4)}, {vr(XO+4,4)}, {vr(XO+4,4)}, {vr(DD+8,4)}""")
    if not o["inl"]:
      tail(f"""L_ql:
    s_waitcnt lgkmcnt(1)
    v_mfma_f32_16x16x32_bf16 {vr(DD+8,4)}, {vr(XO,4)}, {vr(XO,4)}, 0
    s_waitcnt lgkmcnt(0)
    v_mfma_f32_16x16x32_bf16 {vr(DD+8,4)}, {vr(XO+4,4)}, {vr(XO+4,4)}, {vr(DD+8,4)}
    s_nop 6
    s_branch L_qs""")
    two_tile_write(RQ)
    a("L_qs:")
    stats_write(RQ)
    a(f"    s_cmp_eq_u32 {sW}, 0\n    s_cbranch_scc0 L_q2")
    S = two_tile_reduce(RQ, 4, v(TT + 16), v(TT + 17))
    pack16(DD + 8, S, v(DD + 6))
    execm(m16)
    local_store(f"buffer_store_dwordx4 {vr(DD+8,4)}, {pQ}, {sWS}, 0 offen", "L_sq")
    execm("-1")
    a(f"    s_cmp_eq_u32 {sG}, 0\n    s_cbranch_scc1 L_res2\nL_q2:")
    tail(f"""L_res2:
    ds_read_u16 {vRes}, {aRes}
    s_waitcnt lgkmcnt(0)
    v_lshlrev_b32 {vRes}, 16, {vRes}
    s_branch L_q2""")
    if o["aprio"] is not None:
        a(f"    s_cmp_lt_u32 {sW}, 4\n    s_cbranch_scc{o['aprio']} L_ap\n    s_setprio 1\nL_ap:")
    if o["qbar"]:
        a("    s_barrier")
    stamp(18)
    poll([(f"buffer_load_dwordx4 {vr(DD+4*i,4)}, {aQ2}, {sWS}, 0 offen offset:{1024*i} sc1", [v(DD + 4 * i + k) for k in range(4)]) for i in range(2)], "L_pq",
         after={0: lambda: [a(f"    v_lshlrev_b32 {v(TT+2*i)}, 16, {v(DD+i)}\n    v_and_b32 {v(TT+2*i+1)}, 0xffff0000, {v(DD+i)}") for i in range(4)]} if o["spec"] else None)
    stamp(19)
    if o["spec"]:
        for i in range(4):
            y = DD + 8 + 2 * (i & 1)
            a(f"""    v_lshlrev_b32 {v(y)}, 16, {v(DD+4+i)}
    v_and_b32 {v(y+1)}, 0xffff0000, {v(DD+4+i)}
    v_pk_add_f32 {vr(y,2)}, {vr(y,2)}, {vr(TT+2*i,2)}
    v_cvt_pk_bf16_f32 {v(XO+i)}, {v(y)}, {v(y+1)}""")
    else:
        add_bf16x8(XO, [v(DD + i) for i in range(4)], [v(DD + 4 + i) for i in range(4)])
    a("L_attn:")
    s = [v(TT + i) for i in range(4)]
    def qk(u, rho):
        t = (u + rho) & 3
        c = vr(DD + 4 * u, 4) if rho else "0"
        a(f"    v_mfma_f32_16x16x32_bf16 {vr(DD+4*u,4)}, {vr(KB+16*u+4*t,4)}, {vr(XO+4*rho,4)}, {c}")
    def rot(rho):
        for i in range(4):
            a(f"    v_mov_b32_dpp {v(XO+4*rho+i)}, {v(XO+i)} row_ror:{16-4*rho} {DPP}")
    def merge(u):
        for r in range(4):
            a(f"    v_mov_b32_dpp {s[r]}, {v(DD+4*u+r)} quad_perm:[0,1,2,3] row_mask:0xf bank_mask:{1<<u}")
    for u in (1, 2, 3):
        qk(u, 0); rot(u)
    for u in (1, 2, 3):
        for rho in (1, 2, 3):
            qk(u, rho)
    qk(0, 0); qk(0, 1); merge(1); qk(0, 2); merge(2); qk(0, 3); merge(3); merge(0)
    m, lsum, tx = v(TT + 4), v(TT + 5), v(TT + 6)
    a(f"""    v_max3_f32 {m}, {s[0]}, {s[1]}, {s[2]}
    v_max_f32 {m}, {m}, {s[3]}
    v_max_f32_dpp {m}, {m}, {m} row_ror:4 {DPP}
    v_max_f32_dpp {m}, {m}, {m} row_ror:8 {DPP}
    v_mov_b32 {tx}, {m}
    v_permlane16_swap_b32 {m}, {tx}
    v_max_f32 {m}, {m}, {tx}
    v_mov_b32 {tx}, {m}
    v_permlane32_swap_b32 {m}, {tx}
    v_max_f32 {m}, {m}, {tx}
    v_mul_f32 {m}, {m}, {vScale}""")
    for r in range(4):
        a(f"    v_fma_f32 {s[r]}, {s[r]}, {vScale}, -{m}")
    for r in range(4):
        a(f"    v_exp_f32 {s[r]}, {s[r]}")
    P = TT + 8
    a(f"""    s_cmp_eq_u32 {sL}, 0
    v_cvt_pk_bf16_f32 {v(P)}, {s[0]}, {s[1]}
    v_cvt_pk_bf16_f32 {v(P+1)}, {s[2]}, {s[3]}
    s_cbranch_scc1 L_pv1""")
    aE, aOd = DD, DD + 4
    def pv(n, out):
        c1 = vr(aE, 4) if n else "0"
        c2 = vr(aOd, 4) if n else "0"
        out(f"    v_mfma_f32_4x4x4_16b_bf16 {vr(aE,4)}, {vr(P,2)}, {vr(VB+4*n,2)}, {c1} cbsz:4 abid:{n}")
        out(f"    v_mfma_f32_4x4x4_16b_bf16 {vr(aOd,4)}, {vr(P,2)}, {vr(VB+4*n+2,2)}, {c2} cbsz:4 abid:{n}")
    lred = [f"v_pk_add_f32 {vr(TT,2)}, {vr(TT,2)}, {vr(TT+2,2)}",
            f"v_add_f32 {lsum}, {s[0]}, {s[1]}",
            f"v_add_f32_dpp {lsum}, {lsum}, {lsum} row_ror:4 {DPP}",
            f"v_add_f32_dpp {lsum}, {lsum}, {lsum} row_ror:8 {DPP}",
            f"v_mov_b32 {tx}, {lsum}",
            f"v_permlane16_swap_b32 {lsum}, {tx}",
            f"v_add_f32 {lsum}, {lsum}, {tx}",
            f"v_mov_b32 {tx}, {lsum}",
            f"v_permlane32_swap_b32 {lsum}, {tx}",
            f"v_add_f32 {lsum}, {lsum}, {tx}",
            f"ds_write_b64 {vMLw}, {vr(TT+4,2)}"]
    stampL(7)
    for n in range(16):
        pv(n, a)
        if n < 15:
            a("    " + (lred[n] if n < len(lred) else "s_nop 0"))
    a("    s_nop 2\nL_pv3:")
    tail("L_pv1:")
    for l in lred:
        tail("    " + l)
    if o["qkearly"]:
        tail(f"    s_cmp_eq_u32 {sMode}, 1\n    s_cbranch_scc1 L_vrest\nL_pv1b:")
    def perms(n):
        b = VB + 4 * n
        tail(f"    s_waitcnt vmcnt({min(63, 60 - 4*n + (o['wox'] if o['woown'] else 0))})")
        tail(f"    v_perm_b32 {v(b)}, {v(b+4)}, {v(b+2)}, {sPlo}")
        tail(f"    v_perm_b32 {v(b+1)}, {v(b+5)}, {v(b+3)}, {sPlo}")
        tail(f"    v_perm_b32 {v(b+2)}, {v(b+4)}, {v(b+2)}, {sPhi}")
        tail(f"    v_perm_b32 {v(b+3)}, {v(b+5)}, {v(b+3)}, {sPhi}")
    perms(0)
    for n in range(16):
        if n < 15:
            perms(n + 1)
        pv(n, tail)
    tail("    s_nop 2\n    s_branch L_pv3")
    stampL(8)
    if o["x_stop"] == 8:
        a(f"    s_cmp_lt_u32 {sW}, 4\n    s_cbranch_scc0 L_done\n    {'s_barrier' if o['wo_at'] == 'X' else ''}\n    s_branch L_done")
    if o["aprio"] is not None:
        a("    s_setprio 0")
    a(f"    s_or_b32 {sT1}, {sL}, {sW}\n    s_cmp_lt_u32 {sT1}, 4")
    for h in range(4):
        ad = vOw if h < 2 else vOw2
        a(f"    ds_write2_b32 {ad}, {v(aE+h)}, {v(aOd+h)} offset0:{(h&1)*128} offset1:{(h&1)*128+1}")
    a(f"""    s_cbranch_scc1 L_late
L_nolate:
    s_cmp_lt_u32 {sW}, 4
    s_waitcnt lgkmcnt(0)
    s_barrier
    s_cbranch_scc0 L_yw
    ds_read_b64 {vr(TT,2)}, {vMLr}""")
    main = a
    a = tail
    a(f"L_late:\n    v_mov_b32 {t5}, {QL + 1028}\n    ds_read_b32 {vEp}, {t5}")
    if o["wo_at"] == "X":
        a("    s_barrier")
        stamp(1)
        if o["xy"]:
            a(f"    s_cmp_lt_u32 {sXcc}, {o['xy']}\n    s_cbranch_scc1 L_xy1")
        late_loads()
        if o["leadx"]:
            a(f"    s_cmp_eq_u32 {sW}, 1\n    s_cbranch_scc0 L_nolead\n    s_waitcnt lgkmcnt(0)")
            lead_flag()
        if o["xy"]:
            a("L_xy1:")
    a(f"""    s_cmp_eq_u32 {sG}, 0
    s_cbranch_scc0 L_nolate
    ds_read_u16 {vRes}, {aRes}
    s_waitcnt lgkmcnt(0)
    v_lshlrev_b32 {vRes}, 16, {vRes}
    s_branch L_nolate""")
    gA, gV = v(TT + 16), v(TT + 15)
    if o["mk2"] in ("w3", "a7"):
        a(f"""L_yw:
    s_cmp_eq_u32 {sL}, 0
    s_cbranch_scc0 L_wo
    s_cmp_eq_u32 {sW}, 7
    s_cbranch_scc0 L_yw1
    v_and_b32 {gA}, 7, {vL}
    v_lshlrev_b32 {gA}, 7, {gA}
    v_add_u32 {gA}, {W_GF + 4}, {gA}
    buffer_load_dword {gV}, {gA}, {sWS}, 0 offen sc1
L_yw1:""")
        wo_own(o["wox"], 4)
        a("    s_branch L_wo")
        a(f"""L_gf:
    v_and_b32 {gA}, 7, {vL}
    v_lshlrev_b32 {gA}, 7, {gA}
    v_add_u32 {gA}, {W_GF + 4}, {gA}
    buffer_load_dword {gV}, {gA}, {sWS}, 0 offen sc1
    s_waitcnt vmcnt(0)
L_gf0:
    v_cmp_ne_u32 vcc, {gV}, {vEp}
    s_cbranch_vccz L_gf1
    s_sub_u32 {sCnt}, {sCnt}, 1
    s_cbranch_scc0 L_gf
    s_mov_b32 {sCnt}, 0
L_gf1:""")
        if o["mk2"] == "a7":
            marks2(DD + 12)
        a("    s_branch L_gf_ok")
    else:
        a("L_yw:")
        if o["woown"] and o["wox"] < 4:
            a(f"    s_cmp_eq_u32 {sL}, 0\n    s_cbranch_scc0 L_wo")
            wo_own(o["wox"], 4)
        if o["xy"]:
            a(f"    s_cmp_eq_u32 {sL}, 0\n    s_cbranch_scc0 L_wo\n    s_cmp_lt_u32 {sXcc}, {o['xy']}\n    s_cbranch_scc0 L_xy2")
            late_loads("y")
            a("L_xy2:")
        if o["wo_at"] == "Y":
            a(f"    s_cmp_eq_u32 {sL}, 0\n    s_cbranch_scc0 L_wo")
            stamp(1)
            late_loads()
        a(f"""    s_or_b32 {sT1}, {sL}, 7
    s_cmp_eq_u32 {sT1}, {sW}
    s_cbranch_scc0 L_wo""")
        slot_addrs()
        c0 = TT + 8
        for i in range(4):
            a(f"    v_mov_b32 {v(c0+i)}, -1")
        a(f"""    s_mov_b32 exec_lo, 0
    s_mov_b32 exec_hi, 0xff00ff00
    buffer_store_dwordx4 {vr(c0,4)}, {cF}, {sWS}, 0 offen sc1
    s_cmp_eq_u32 {sPure}, {1 if (o["clr2"] == "plain" and not o["force_slow"]) else 2}""")
        for k, fl in enumerate(("sc1", "")):
            a(f"""    {"s_cbranch_scc1 L_mk1" if k == 0 else "L_mk1:"}
    s_mov_b32 exec_lo, 0xff00ff00
    s_mov_b32 exec_hi, 0
    buffer_store_dwordx4 {vr(c0,4)}, {cF}, {sWS}, 0 offen {fl}
    s_mov_b64 exec, -1
    buffer_store_dwordx4 {vr(c0,4)}, {cO}, {sWS}, {sT3} offen {fl}
    buffer_store_dwordx4 {vr(c0,4)}, {cQ}, {sWS}, 0 offen {fl}
    {"s_branch L_mk2" if k == 0 else "L_mk2:"}""")
        if o["hint"]:
            a(f"""    s_lshl_b32 {sT1}, {sG}, 7
    s_add_u32 {sT1}, {sT1}, {W_HT}
    v_lshlrev_b32 {t0}, 10, {vL}
    s_mov_b64 exec, 15
    buffer_load_dword {vDum}, {t0}, {sWS}, {sT1} offen sc1
    s_mov_b64 exec, -1""")
        a(f"""    v_and_b32 {t0}, 7, {vL}
    v_lshlrev_b32 {t0}, 7, {t0}
    v_add_u32 {t0}, {W_GF + 4}, {t0}
L_gf:
    buffer_load_dword {t1}, {t0}, {sWS}, 0 offen sc1
    s_waitcnt vmcnt(0)
    v_cmp_ne_u32 vcc, {t1}, {vEp}
    s_cbranch_vccz L_wo
    s_sub_u32 {sCnt}, {sCnt}, 1
    s_cbranch_scc0 L_gf
    s_mov_b32 {sCnt}, 0
    s_branch L_wo""")
    a = main
    for i in range(8):
        a(f"    ds_read_b64 {vr(XO+2*i,2)}, {vOr} offset:{i*2048}")
    mm, ll, M, Lr, f = v(TT), v(TT + 1), v(TT + 2), v(TT + 3), v(TT + 4)
    a(f"""    s_waitcnt lgkmcnt(8)
    v_max_f32_dpp {M}, {mm}, {mm} row_ror:4 {DPP}
    v_max_f32_dpp {M}, {M}, {M} row_ror:2 {DPP}
    v_max_f32_dpp {M}, {M}, {M} row_ror:1 {DPP}
    v_sub_f32 {f}, {mm}, {M}
    v_exp_f32 {f}, {f}
    v_mul_f32 {Lr}, {f}, {ll}""")
    o0, o1 = v(TT + 5), v(TT + 6)
    lr2 = [f"v_add_f32_dpp {Lr}, {Lr}, {Lr} row_ror:4 {DPP}",
           f"v_add_f32_dpp {Lr}, {Lr}, {Lr} row_ror:2 {DPP}",
           f"v_add_f32_dpp {Lr}, {Lr}, {Lr} row_ror:1 {DPP}"]
    for i in range(8):
        op = "v_mul_f32_dpp" if i == 0 else "v_fmac_f32_dpp"
        if i in (0, 4):
            a(f"    s_waitcnt lgkmcnt({4 - i})")
        a(f"    {op} {o0}, {f}, {v(XO+2*i)} row_newbcast:{i} {DPP}")
        a(f"    {op} {o1}, {f}, {v(XO+2*i+1)} row_newbcast:{i} {DPP}")
        if i < 3:
            a("    " + lr2[i])
    a(f"    v_cvt_pk_bf16_f32 {o0}, {o0}, {o1}")
    local_store(f"buffer_store_dword {o0}, {pO}, {sWS}, {sLO} offen\n    s_mov_b64 exec, 1\n    buffer_store_dwordx2 {vr(TT+2,2)}, {pML}, {sWS}, {sL} offen", "L_so")
    execm("-1")
    if o["inl"]:
        a("L_wo:\n    s_barrier")
    else:
        a(f"L_wo:\n    s_cmp_eq_u32 {sL}, 0\n    s_cbranch_scc1 L_wo0\nL_wo1:\n    s_barrier")
    aloads = [(f"buffer_load_dwordx2 {vr(TT,2)}, {aML}, {sWS}, {sL} offen sc1", [v(TT), v(TT + 1)]),
              (f"buffer_load_dwordx4 {vr(XO,4)}, {aO}, {sWS}, {sLO} offen sc1", [v(XO + i) for i in range(4)]),
              (f"buffer_load_dwordx4 {vr(XO+4,4)}, {aO}, {sWS}, {sLO} offen offset:1024 sc1", [v(XO + 4 + i) for i in range(4)])]
    if o["inl"]:
        pass
    elif o["aover"]:
        tail("L_wo0:\n    s_barrier")
        if o["pf_at"] == "poll":
            into(tail, poll, aloads, "L_pa0", pf_load, None, 1, "L_pa1")
        into(tail, poll, aloads, "L_pa1")
        tail("    s_barrier")
        into(tail, wo_read)
        tail("    s_branch L_pa_ok")
    elif o["pf_at"] == "poll":
        tail("L_wo0:\n    s_waitcnt vmcnt(0)\n    s_barrier")
        into(tail, poll, aloads, "L_pa0", lambda: (pf_load(), wo_read()), None, 1, "L_pa")
    else:
        tail("L_wo0:\n    s_waitcnt vmcnt(0)\n    s_branch L_wo1")
    stampL(9)
    mm, ll, M, e_, Lt = v(TT), v(TT + 1), v(TT + 2), v(TT + 3), v(TT + 4)
    def wo_fac():
        a(f"""    v_max_f32_dpp {M}, {mm}, {mm} row_ror:8 {DPP}
    v_max_f32_dpp {M}, {M}, {M} row_ror:4 {DPP}
    v_max_f32_dpp {M}, {M}, {M} row_ror:2 {DPP}
    v_max_f32_dpp {M}, {M}, {M} row_ror:1 {DPP}
    v_sub_f32 {e_}, {mm}, {M}
    v_exp_f32 {e_}, {e_}
    v_mul_f32 {Lt}, {e_}, {ll}""")
    poll(aloads, "L_pa", wo_read, after={0: wo_fac} if o["spec"] else None)
    if o["inl"]:
        a(f"    s_cmp_eq_u32 {sL}, 0\n    s_cbranch_scc0 L_pa2\n    {'' if o['woown'] else 's_barrier'}")
        wo_read()
        if o["mk2"] in ("w3", "a7"):
            a(f"    s_cmp_eq_u32 {sW}, 7\n    s_cbranch_scc1 L_gf0\nL_gf_ok:")
        if o["gue"]:
            a(f"""    s_cmp_lt_u32 {sIdx}, 14
    s_cbranch_scc0 L_pa2
    v_mul_u32_u24 {vA}, 3584, {vDma}
    v_add_u32 {vA}, {vA}, {vHalf}
    s_mov_b32 {sT1}, {32*3584}""")
            for srdn, off, so in ((sWg, T_FF, "0"), (sWg, T_FF + 1024, sT1), (sWu, T_FF + 2048, "0"), (sWu, T_FF + 3072, sT1))[:o["gue"]]:
                dma(srdn, off, so)
        a("L_pa2:")
    stampL(10)
    if o["pf_at"] == "afterA" or o["wd_at"] == "afterA":
        a(f"    s_cmp_eq_u32 {sL}, 0\n    s_cbranch_scc1 L_wo2a\nL_wo2:")
        tail("L_wo2a:")
        if o["pf_at"] == "afterA":
            into(tail, pf_load)
        if o["wd_at"] == "afterA":
            into(tail, wd_load)
        tail("    s_branch L_wo2")
    z0, z1 = v(TT + 5), v(TT + 6)
    if o["spec"]:
        a(f"""    s_waitcnt lgkmcnt(0)
    v_mfma_f32_16x16x32_bf16 {vr(DD,4)}, {vr(XO,4)}, {vr(WB,4)}, 0
    v_add_f32_dpp {Lt}, {Lt}, {Lt} row_ror:8 {DPP}
    v_mfma_f32_16x16x32_bf16 {vr(DD,4)}, {vr(XO+4,4)}, {vr(WB+8,4)}, {vr(DD,4)}
    v_mfma_f32_16x16x32_bf16 {vr(DD+4,4)}, {vr(XO,4)}, {vr(WB+4,4)}, 0
    v_add_f32_dpp {Lt}, {Lt}, {Lt} row_ror:4 {DPP}
    v_mfma_f32_16x16x32_bf16 {vr(DD+4,4)}, {vr(XO+4,4)}, {vr(WB+12,4)}, {vr(DD+4,4)}
    s_cmp_eq_u32 {sW}, 0
    v_add_f32_dpp {Lt}, {Lt}, {Lt} row_ror:2 {DPP}
    s_nop 1
    v_add_f32_dpp {Lt}, {Lt}, {Lt} row_ror:1 {DPP}
    v_rcp_f32 {Lt}, {Lt}""")
        for z, D in ((z0, DD), (z1, DD + 4)):
            for r in range(4):
                op = "v_mul_f32_dpp" if r == 0 else "v_fmac_f32_dpp"
                a(f"    {op} {z}, {e_}, {v(D+r)} row_newbcast:{r} {DPP}")
        a(f"""    v_permlane32_swap_b32 {z0}, {z1}
    v_add_f32 {z0}, {z0}, {z1}
    v_mul_f32 {z1}, {z0}, {Lt}
    v_mul_f32 {z0}, {z0}, {Lt}
    v_permlane16_swap_b32 {z0}, {z1}
    v_add_f32 {z0}, {z0}, {z1}
    ds_write_b32 {vW4}, {z0} offset:{RW - RQ}
    s_waitcnt lgkmcnt(0)
    s_barrier
    s_cbranch_scc0 L_roles""")
    else:
        mm, ll, M, e_, Lt = v(TT), v(TT + 1), v(TT + 2), v(TT + 3), v(TT + 4)
        a(f"""    v_max_f32_dpp {M}, {mm}, {mm} row_ror:8 {DPP}
    s_waitcnt lgkmcnt(0)
    v_mfma_f32_16x16x32_bf16 {vr(DD,4)}, {vr(XO,4)}, {vr(WB,4)}, 0
    v_max_f32_dpp {M}, {M}, {M} row_ror:4 {DPP}
    v_mfma_f32_16x16x32_bf16 {vr(DD+4,4)}, {vr(XO,4)}, {vr(WB+4,4)}, 0
    v_mfma_f32_16x16x32_bf16 {vr(DD,4)}, {vr(XO+4,4)}, {vr(WB+8,4)}, {vr(DD,4)}
    v_max_f32_dpp {M}, {M}, {M} row_ror:2 {DPP}
    v_mfma_f32_16x16x32_bf16 {vr(DD+4,4)}, {vr(XO+4,4)}, {vr(WB+12,4)}, {vr(DD+4,4)}
    s_nop 0
    v_max_f32_dpp {M}, {M}, {M} row_ror:1 {DPP}
    v_sub_f32 {e_}, {mm}, {M}
    v_exp_f32 {e_}, {e_}
    v_mul_f32 {Lt}, {e_}, {ll}""")
        z0, z1 = v(TT + 5), v(TT + 6)
        for r in range(4):
            op = "v_mul_f32_dpp" if r == 0 else "v_fmac_f32_dpp"
            a(f"    {op} {z0}, {e_}, {v(DD+r)} row_newbcast:{r} {DPP}")
            a(f"    {op} {z1}, {e_}, {v(DD+4+r)} row_newbcast:{r} {DPP}")
            a(f"    v_add_f32_dpp {Lt}, {Lt}, {Lt} row_ror:{8 >> r} {DPP}")
        a(f"""    s_cmp_eq_u32 {sW}, 0
    v_permlane32_swap_b32 {z0}, {z1}
    v_rcp_f32 {Lt}, {Lt}
    v_add_f32 {z0}, {z0}, {z1}
    v_mov_b32 {z1}, {z0}
    v_permlane16_swap_b32 {z0}, {z1}
    v_add_f32 {z0}, {z0}, {z1}
    v_mul_f32 {z0}, {z0}, {Lt}
    ds_write_b32 {vW4}, {z0} offset:{RW - RQ}
    s_waitcnt lgkmcnt(0)
    s_barrier
    s_cbranch_scc0 L_roles""")
    red8(vR4, (RW - RQ) // 256, TT)
    sum8(v(TT + 8), TT, extra=vRes)
    quad4(TT + 8)
    execm(mY)
    a(f"    buffer_store_dwordx4 {vr(TT+8,4)}, {pY}, {sWS}, {sL} offen sc1")
    if "b" in o["hint"]:
        execm("1")
        hint_post(0)
    execm("-1")
    a(f"""L_roles:
    s_cmp_lt_u32 {sIdx}, 14
    s_cbranch_scc0 L_nogu""")
    tail("L_nogu:")
    if o["wd_at"] == "afterY":
        tail(f"    s_cmp_eq_u32 {sL}, 0\n    s_cbranch_scc0 L_dn")
        if o["wdlate"]:
            t = v(TT + 7)
            tail(f"""    s_sub_u32 {sT1}, {sIdx}, 14
    s_sub_u32 {sT2}, {sW}, 1
    s_lshl1_add_u32 {sT1}, {sT1}, {sT2}
    s_cmp_lt_u32 {sT2}, 2
    s_cselect_b32 {sT1}, {sT1}, 28
    s_cmp_lt_u32 {sT1}, 28
    s_cselect_b32 s42, 1835008, 0
    s_lshl_b32 {sT2}, {sT1}, 13
    s_mul_i32 {sT3}, {sG}, {224*1024}
    s_add_u32 {sT2}, {sT2}, {sT3}
    v_lshlrev_b32 {t}, 7, {vL}
    s_mov_b32 s40, s20
    s_mov_b32 s41, s21
    s_mov_b32 s43, 0x20000
    buffer_load_dword {vDum}, {t}, {sWq}, {sT2} offen {wf}
    s_waitcnt vmcnt(0)
    s_barrier""")
        into(tail, wd_load)
    if o["clr2"] == "warm2":
        tail(f"""    s_cmp_eq_u32 {sW}, 7
    s_cbranch_scc0 L_nw2""")
        into(tail, slot_addrs)
        for k in range(2):
            tail(f"""    s_mov_b32 exec_lo, {"0x11111111" if o["w64"] else "0x01010101"}
    s_mov_b32 exec_hi, {"0x11111111" if o["w64"] else "0x01010101"}
    buffer_load_dword {vDum}, {cO}, {sWS}, {sT3} offen sc1
    s_mov_b64 exec, {"17" if o["w64"] else "1"}
    buffer_load_dword {vDum}, {cQ}, {sWS}, 0 offen sc1
    s_mov_b32 exec_lo, {"0x11001100" if o["w64"] else "0x01000100"}
    buffer_load_dword {vDum}, {cF}, {sWS}, 0 offen sc1
    s_mov_b64 exec, -1""")
            if k == 0:
                tail(f"""    s_cmp_lt_u32 {sIdx}, 28
    s_cbranch_scc0 L_dn
    v_subrev_u32 {cO}, {14*1024}, {cO}
    v_subrev_u32 {cQ}, {14*128}, {cQ}
    v_subrev_u32 {cF}, {14*128}, {cF}""")
        tail("    s_branch L_dn\nL_nw2:")
    tail(f"""    s_xor_b32 {sT1}, s2, 255
    s_or_b32 {sT1}, {sT1}, {sL}
    s_or_b32 {sT1}, {sT1}, {sW}
    s_cbranch_scc1 L_dn
    ; every workgroup has read the epoch word by now: leave this launch's tag for the next one
    v_mov_b32 {t5}, {QL + 1028}
    ds_read_b32 {v(DD)}, {t5}
    v_lshlrev_b32 {t5}, 4, {vL}
    s_waitcnt lgkmcnt(0)
    v_mov_b32 {v(DD+1)}, {v(DD)}
    v_mov_b32 {v(DD+2)}, {v(DD)}
    v_mov_b32 {v(DD+3)}, {v(DD)}
    s_mov_b64 exec, 0xff
    buffer_store_dwordx4 {vr(DD,4)}, {t5}, {sWS}, 0 offen sc1
    s_mov_b64 exec, -1""")
    tail("    s_branch L_dn")
    a(f"    s_cmp_eq_u32 {sL}, 0\n    s_cbranch_scc1 L_gu0")
    tail(f"""L_gu0:
    v_mul_u32_u24 {vA}, 3584, {vDma}
    v_add_u32 {vA}, {vA}, {vHalf}
    s_mov_b32 {sT1}, {32*3584}""")
    for srdn, off, so in ((sWg, T_FF, "0"), (sWg, T_FF + 1024, sT1), (sWu, T_FF + 2048, "0"), (sWu, T_FF + 3072, sT1))[o["gue"]:]:
        into(tail, dma, srdn, off, so)
    wd_here = o["wd_at"] == "afterY" and not o["wdb"]
    if wd_here:
        into(tail, wd_load)
    if o["ack"]:
        tail(f"    s_waitcnt vmcnt({4 - o['gue'] + wd_here})")
    tail("    s_branch L_gu1")
    ackwait()
    a("L_gu1:")
    if "b" in o["hint"]:
        a(f"    s_cmp_eq_u32 {sW}, 0\n    s_cbranch_scc0 L_gu2")
        hint_wait("L_hb")
        a("L_gu2:")
    a("    s_barrier")
    stampL(11)
    def gu_mid():
        for i in range(4):
            tr_read(WB + 4 * i, T_FF + 1024 * i)
    def gu_got():
        stampL(12)
    gather_x(aY, sL, "L_pb", gu_got, gu_mid)
    if o["wd_at"] == "afterY" and o["wdb"] and o["inl"]:
        wd_load()
    elif o["wd_at"] == "afterY" and o["wdb"]:
        a(f"    s_cmp_eq_u32 {sL}, 0\n    s_cbranch_scc1 L_wdb\nL_wdb1:")
        tail("L_wdb:")
        into(tail, wd_load)
        tail("    s_branch L_wdb1")
    a(f"""    s_waitcnt lgkmcnt(1)
    v_mfma_f32_16x16x32_bf16 {vr(DD,4)}, {vr(WB,4)}, {vr(XO,4)}, 0
    v_mfma_f32_16x16x32_bf16 {vr(DD+4,4)}, {vr(WB+8,4)}, {vr(XO,4)}, 0
    v_mfma_f32_16x16x32_bf16 {vr(DD+8,4)}, {vr(XO,4)}, {vr(XO,4)}, 0
    s_waitcnt lgkmcnt(0)
    v_mfma_f32_16x16x32_bf16 {vr(DD,4)}, {vr(WB+4,4)}, {vr(XO+4,4)}, {vr(DD,4)}
    v_mfma_f32_16x16x32_bf16 {vr(DD+4,4)}, {vr(WB+12,4)}, {vr(XO+4,4)}, {vr(DD+4,4)}
    v_mfma_f32_16x16x32_bf16 {vr(DD+8,4)}, {vr(XO+4,4)}, {vr(XO+4,4)}, {vr(DD+8,4)}
    s_add_u32 {sT1}, {sL}, {W_H}
    s_cmp_eq_u32 {sW}, 0""")
    two_tile_write(RG)
    stats_write(RG)
    a("    s_cbranch_scc0 L_dn")
    S = two_tile_reduce(RG, 8, vR4, vR4c)
    U = v(DD + 6)
    a(f"""    v_mov_b32 {U}, {S}
    v_permlane32_swap_b32 {S}, {U}
    v_max_f32 {S}, 0, {S}
    v_mul_f32 {S}, {S}, {U}""")
    pack16(DD + 8, S, U)
    execm(m8)
    local_store(f"buffer_store_dwordx4 {vr(DD+8,4)}, {pS}, {sWS}, {sT1} offen", "L_sh")
    execm("-1")
    stampL(13)
    a(f"""L_dn:
    s_cmp_eq_u32 {sW}, 7
    s_cbranch_scc1 L_dn7
    s_or_b32 {sT1}, {sW}, {sG}
    s_cmp_eq_u32 {sT1}, 0
    s_cbranch_scc1 L_x1
L_dn0:""")
    a = tail
    a("L_dn7:\n    s_waitcnt vmcnt(0)")
    if o["clr2"] == "warm":
        a(f"""    s_cmp_eq_u32 {sL}, 0
    s_cbranch_scc0 L_dn1
    s_mov_b32 {sT3}, {OSTR}
    s_mov_b64 exec, {m16}
    buffer_load_dword {vDum}, {cO}, {sWS}, {sT3} offen sc1
    s_mov_b64 exec, 1
    buffer_load_dword {vDum}, {cQ}, {sWS}, 0 offen sc1
    s_mov_b32 exec_lo, 0x01000100
    buffer_load_dword {vDum}, {cF}, {sWS}, 0 offen sc1
    s_mov_b64 exec, -1""")
    a("    s_branch L_dn1")
    a("L_x1:\n    s_waitcnt vmcnt(0)")
    sum_cols(aX1, sL, "L_pr", vX1)
    a(f"""    v_cvt_pk_bf16_f32 {vX1}, {vX1}, {vX1}
    v_and_b32 {vX1}, 0xffff0000, {vX1}
    s_branch L_dn0""")
    a = main
    a("    s_waitcnt vmcnt(0)")
    tr_read(WB, T_WD)
    execm(mC2)
    poll([(f"buffer_load_dwordx4 {vr(XO,4)}, {aH}, {sWS}, {sL} offen sc1", [v(XO + i) for i in range(4)])], "L_pc2")
    execm("-1")
    stampL(14)
    a(f"""    s_waitcnt lgkmcnt(0)
    v_mfma_f32_16x16x32_bf16 {vr(DD,4)}, {vr(WB,4)}, {vr(XO,4)}, 0
    ds_write_b128 {vWd}, {vr(DD,4)} offset:{RD - RQ}
    s_waitcnt lgkmcnt(0)
L_dn1:
    s_cmp_eq_u32 {sW}, 0
    s_barrier
    s_cbranch_scc0 L_dn2""")
    red8(vR4, (RD - RQ) // 256, TT)
    sum8(v(TT + 8), TT, extra=vX1)
    quad4(TT + 8)
    execm(mZ)
    a(f"    buffer_store_dwordx4 {vr(TT+8,4)}, {pZ}, {sWS}, {sL} offen sc1")
    if "d" in o["hint"] or "f" in o["hint"]:
        execm("1")
        hint_post(1)
    execm("-1")
    a(f"L_dn2:\n    s_cmp_eq_u32 {sL}, 0\n    s_cbranch_scc1 L_q")
    a(f"""    s_and_b32 {sT1}, {sIdx}, 7
    s_xor_b32 {sT1}, {sT1}, {sG}
    s_or_b32 {sT1}, {sT1}, {sW}
    s_cbranch_scc1 L_done""")
    if "f" in o["hint"]:
        hint_wait("L_hf")
    ackwait()
    stamp(31)
    sum_cols(aFin, sL, "L_pf", v(DD))
    if o["x_pad"] == "loop":
        a(f"    s_mov_b32 {sT1}, 0\nL_pad:")
        for i in range(62):
            a(f"    v_add3_u32 {v(TT)}, {v(TT)}, {v(TT+1)}, {v(TT+2)}")
        a(f"    s_add_u32 {sT1}, {sT1}, 1\n    s_cmp_lt_u32 {sT1}, 16\n    s_cbranch_scc1 L_pad")
    if o["x_pad"] == "line":
        for i in range(1024):
            a(f"    v_add3_u32 {v(TT)}, {v(TT)}, {v(TT+1)}, {v(TT+2)}")
    if o["x_pad"] == "far":
        a("    s_branch L_far\nL_farb:")
    if o["bias"]:
        a(f"    v_add_f32 {v(DD)}, {f32(o['bias'])}, {v(DD)}")
    pack16(DD + 4, v(DD), v(DD + 1))
    execm(m8)
    a(f"    buffer_store_dwordx4 {vr(DD+4,4)}, {pOut}, {sOut}, 0 offen")
    stamp(20)
    a("L_done:")
    if o["diag"]:
        execm("-1")
        stamp(21)
        a(f"""    s_waitcnt lgkmcnt(0)
    v_writelane_b32 {vStamp}, s98, 21
    v_writelane_b32 {vStamp}, {sPure}, 32
    v_writelane_b32 {vStamp}, {sCnt}, 33
    s_lshl_b32 {sT1}, s2, 3
    s_add_u32 {sT1}, {sT1}, {sW}
    s_lshl_b32 {sT1}, {sT1}, 8
    s_add_u32 {sT1}, {sT1}, {W_DIAG}
    buffer_store_dword {vStamp}, {aV}, {sWS}, {sT1} offen""")
        if o["x_dbg"]:
            a(f"""    s_mov_b32 s40, s24
    s_mov_b32 s41, s25
    s_mov_b32 s42, 256
    s_mov_b32 s43, 0x20000
    v_readlane_b32 {sT1}, {vStamp}, 0
    s_not_b32 {sT2}, {sT1}
    v_mov_b32 {v(TT)}, 0
    v_writelane_b32 {v(TT)}, {sT2}, 0""")
            for n, k in enumerate(o["x_dbg"]):
                a(f"    v_readlane_b32 {sT1}, {vStamp}, {k}\n    s_nop 3\n    v_writelane_b32 {v(TT)}, {sT1}, {n+1}")
            a(f"    s_mov_b64 exec, 0xffff\n    buffer_atomic_umax {v(TT)}, {aV}, s[40:43], 0 offen")
    a("L_end:\n    s_endpgm")
    a(tail.text().rstrip("\n"))
    a(tail2.text().rstrip("\n"))
    a("L_codeend:")
    if o["x_pad"] == "far":
        a("    s_endpgm\nL_far:")
        for i in range(1024):
            a(f"    v_add3_u32 {v(TT)}, {v(TT)}, {v(TT+1)}, {v(TT+2)}")
        a("    s_branch L_farb")
    body, nops = hazard.fix(a.text())
    return body


HEAD = open("interleave_layers__gqa_block_cached__glu_gated_reglu__decode.s.ref").read().split("; Override")[0]

DESC = """;
; One persistent launch: 256 workgroups (one per CU) x 8 waves. Workgroup id = 8*idx + g, idx = 16*b + s.
; Per layer: q (32 columns x half of the rows per workgroup, two partial sums) -> scores, true max per 64 keys,
;   P V -> partial O, m, l -> output projection with the exact split-softmax weights (32 columns per workgroup)
;   -> Y partials over g -> gate / up (14 workgroups per group, 16 hidden columns each) -> h
; Hand-offs go through d_ws. Every slot is first marked with all-ones words by this launch; a reader repeats its
;   loads until no word carries the mark. The first q pieces and the per-group flags carry a tag derived from a word
;   found in d_ws (it only tells this launch's words from an earlier launch's). Stores are write-through (sc1) except
;   between workgroups that have all reported the same XCC id, where a plain store reaches the shared L2.
"""

def write(path, **kw):
    body = gen(**kw)
    txt = kernel_file(NAME, body, 256, 512, LDS_BYTES, vgpr=256, accum=256, sgpr=102, comment=HEAD + DESC)
    open(path, "w").write(txt)
    build(path, NAME)
    return path

if __name__ == "__main__":
    write("main_diag.s", diag=True)
    write("main.s")
    print("LDS", LDS_BYTES)
```

```python
import sys, math, struct
from asmlib import *
import hazard

NAME = "interleave_layers__gqa_block_cached__glu_gated_reglu__decode_kernel"

def f32(x):
    return "0x%08x" % struct.unpack("<I", struct.pack("<f", x))[0]

DEFAULT = dict(
    kvf="nt",
    wf="",
    wd_at="afterY",
    pf_at="wo",
    l2pf=True,
    ack=True,
    force_slow=False,
    diag=False,
    prefetch=True,
    spin=8000000,
    bias=0.0,
    x_stop=None,
    x_nogather=False,
    x_nowq=False,
    qbar=True,
    b1first=False,
    pol=0,
    aprio=None,
    q1plain=True,
    leadx=False,
    mk2='a7',
    gue=2,
    wox=0,
    woown=True,
    wdlate=True,
    thr=0,
    xy=None,
    flip=2,
    phv=0,
    phase=True,
    touch='',
    klin=True,
    esmall=True,
    kpre=2,
    mfirst=False,
    spec=True,
    inl=True,
    hint='',
    wo_at='X',
    aover=True,
    wdb=True,
    qkearly=True,
    w64=False,
    clr2="warm2",
    x_noclr=False,
    x_skipm=0,
    x_half=False,
    x_delay=None,
    x_nopub=False,

    x_pad=None,
    x_dbg=None,
    b1at=12,
    kwait=48,
)

WVS = 11264
T_WQ, T_WO, T_FF, T_WD = 0, 2048, 6144, 10240
OB = 8 * WVS
XB = OB + 16384
ONES = XB + 2048
QL = ONES + 1024
MLB = QL + 1024 + 256
RQ = MLB + 256
RQC = RQ + 2048
RW = RQC + 2048
RG = RW + 2048
RGC = RG + 2048
RD = RGC + 2048
DUM = RD + 2048
LDS_BYTES = DUM + (DUM - RQ) + 1024
F0 = 0x10000
W_ML, W_H, W_Y, W_Z, W_Q2 = F0, F0 + 0x10000, F0 + 0x20000, F0 + 0x30000, F0 + 0x40000
LSTR = 0x8000
W_Q1 = 0x58000
W_GF = 0x8000
W_HT = 0x9000
W_O = 0x70000
OSTR = 0x50000
OSLOT = 1024
W_DIAG = 0x200000
WS_BYTES = 0x400000
TAG_STEP = 0x9E3779B0


def gen(**kw):
    o = dict(DEFAULT); o.update(kw)
    a = Asm()
    kvf, wf = o["kvf"], o["wf"]
    sW = "s3"
    sK, sV, sWS, sWq, sX, sWo, sWg, sWu, sOut = [f"s[{i}:{i+3}]" for i in (28, 32, 36, 40, 44, 48, 52, 56, 60)]
    sWd = "s[4:7]"
    sG, sIdx, sB, sS, sO, sPure, sTag, sCnt, sL, sLO = [f"s{i}" for i in range(64, 74)]
    sT0, sT1, sT2, sT3 = "s74", "s75", "s76", "s77"
    sM0 = "s78"
    sYo = "s79"
    sMode = sTag
    sKh = "s101"
    c4k = {0: "s15" if o["phase"] else "0", 1: "s80", 2: "s81", 3: "s82"}
    sPlo, sPhi = "s83", "s84"
    sXcc = "s85"
    mC2, m16, m8, mY, mZ = "s[86:87]", "s[88:89]", "s[90:91]", "s[92:93]", "s[96:97]"
    sSt = "s[98:99]"
    vL = "v0"
    names = """vKG vC vT vT0 vT1 vTq vR4 vL16 vW4 vWg vWd vR4c vGS vOw vOw2 vOr vMLw vMLr vXw vXr
               aK aV aQ2 aO aML aY aH aZ aX1 aFin aRes pO pML pY pZ pS pQ pOut
               vDma vHalf vScale vInv vRes vX1 vStamp vA vEp""".split()
    R = {n: f"v{i+1}" for i, n in enumerate(names)}
    globals().update(R)
    assert len(names) + 1 <= 48, len(names)
    WB = 48
    XO = 64
    DD = 88
    TT = 104
    KB = 124
    VB = 188
    v = lambda i: f"v{i}"
    vr = lambda i, n: f"v[{i}:{i+n-1}]"
    DPP = "row_mask:0xf bank_mask:0xf"
    CHK = v(TT + 19)
    vDum = v(TT + 18)

    def stamp(i, layered=False):
        if o["diag"] is True or (o["diag"] == "light" and i == 21) or (isinstance(o["diag"], tuple) and (i in o["diag"] or i == 21)):
            a(f"    s_mov_b32 m0, s100\n    v_writelane_b32 {vStamp}, s98, m0\n    s_memrealtime {sSt}")
            if layered:
                a(f"    s_lshr_b32 s100, {sL}, 11\n    s_or_b32 s100, s100, {i}")
            else:
                a(f"    s_mov_b32 s100, {i}")
    stampL = lambda i: stamp(i, True)

    def srd(dst, lo, off_sgpr, size):
        d = int(dst[2:dst.index(":")])
        if off_sgpr is None:
            a(f"    s_mov_b32 s{d}, s{lo}\n    s_mov_b32 s{d+1}, s{lo+1}\n    s_mov_b32 s{d+2}, {size}")
        else:
            a(f"    s_add_u32 s{d}, s{lo}, {off_sgpr}\n    s_addc_u32 s{d+1}, s{lo+1}, 0\n    s_sub_u32 s{d+2}, {size}, {off_sgpr}")
        a(f"    s_mov_b32 s{d+3}, 0x20000")

    tail = Asm()
    tail2 = Asm()

    def into(stream, fn, *args):
        nonlocal a
        old, a = a, stream
        fn(*args)
        a = old

    def execm(m):
        a(f"    s_mov_b64 exec, {m}")

    def spin_tail(lbl):
        a(f"    s_cbranch_vccnz {lbl}_again\n{lbl}_ok:")
        tail2(f"{lbl}_again:\n    s_sub_u32 {sCnt}, {sCnt}, 1\n    s_cbranch_scc0 {lbl}\n    s_mov_b32 {sCnt}, 0\n    s_branch {lbl}_ok")

    def poll(loads, lbl, mid=None, mid2=None, younger=0, once=None, after=None):
        a(f"{lbl}:")
        for l, _ in loads:
            a("    " + l)
        if mid:
            mid()
        first = True
        pend = []
        for i, (_, regs) in enumerate(loads):
            a(f"    s_waitcnt vmcnt({len(loads)-1-i+younger})")
            if i == 0 and mid2:
                mid2()
            pend += regs
            last = i == len(loads) - 1 or (after and i in after)
            while len(pend) >= (3 if first else 2) or (last and pend):
                if first:
                    if len(pend) >= 3:
                        a(f"    v_max3_u32 {CHK}, {pend[0]}, {pend[1]}, {pend[2]}"); pend = pend[3:]
                    elif len(pend) == 2:
                        a(f"    v_max_u32 {CHK}, {pend[0]}, {pend[1]}"); pend = []
                    else:
                        a(f"    v_mov_b32 {CHK}, {pend[0]}"); pend = []
                    first = False
                elif len(pend) >= 2:
                    a(f"    v_max3_u32 {CHK}, {pend[0]}, {pend[1]}, {CHK}"); pend = pend[2:]
                else:
                    a(f"    v_max_u32 {CHK}, {pend[0]}, {CHK}"); pend = []
            if after and i in after:
                after[i]()
        a(f"    v_cmp_eq_u32 vcc, -1, {CHK}")
        if once:
            a(f"    s_cbranch_vccnz {once}\n    s_branch {once}_ok")
        else:
            spin_tail(lbl)

    def local_store(ins, lbl):
        if o["force_slow"]:
            a("    " + ins.replace("\n    s_mov_b64 exec, 1\n", " sc1\n    s_mov_b64 exec, 1\n") + " sc1")
            return
        a(f"    s_cmp_eq_u32 {sPure}, 0\n    s_cbranch_scc1 {lbl}_wt\n    {ins}\n{lbl}_e:")
        tail2(f"{lbl}_wt:\n    " + ins.replace("\n    s_mov_b64 exec, 1\n", " sc1\n    s_mov_b64 exec, 1\n") + f" sc1\n    s_branch {lbl}_e")

    vHt = v(TT + 10)
    def hint_post(use):
        a(f"""    s_lshr_b32 {sT0}, {sL}, {15 - 11}
    s_lshl_b32 {sT3}, {sG}, 7
    s_add_u32 {sT0}, {sT0}, {sT3}
    s_add_u32 {sT0}, {sT0}, {W_HT + use * 1024}
    s_lshl_b32 {sT3}, {sIdx}, 2
    s_add_u32 {sT3}, {sT3}, {sT0}
    buffer_store_dword {vEp}, off, {sWS}, {sT3}""")
    def hint_wait(lbl):
        a(f"""    s_cmp_eq_u32 {sPure}, 0
    s_cbranch_scc1 {lbl}_ok
    s_mov_b32 exec_hi, 0
{lbl}:
    buffer_load_dword {vHt}, {aV}, {sWS}, {sT0} offen sc1
    s_waitcnt vmcnt(0)
    v_cmp_ne_u32 vcc, {vHt}, {vEp}""")
        spin_tail(lbl)
        a("    s_mov_b64 exec, -1")

    def ackwait():
        if o["x_delay"] is not None:
            for i in range(o["x_delay"]):
                a("    s_nop 15")
        elif o["ack"]:
            a("    s_waitcnt vmcnt(0)")

    def dma(srdn, tile_off, soff):
        a(f"    s_add_u32 m0, {sM0}, {tile_off}")
        a(f"    buffer_load_dwordx4 {vA}, {srdn}, {soff} offen {wf} lds")

    def tr_read(dst, tile_off):
        a(f"    ds_read_b64_tr_b16 {vr(dst,2)}, {vT} offset:{tile_off}")
        a(f"    ds_read_b64_tr_b16 {vr(dst+2,2)}, {vT} offset:{tile_off+512}")

    def red8(addr, unit0, tmp):
        for i in range(4):
            a(f"    ds_read2st64_b32 {vr(tmp+2*i,2)}, {addr} offset0:{unit0+2*i} offset1:{unit0+2*i+1}")

    def sum8(dst, tmp, extra=None, later=0):
        for i in range(4):
            a(f"    s_waitcnt lgkmcnt({3 - i + later})")
            a(f"    v_add_f32 {v(tmp+2*i)}, {v(tmp+2*i)}, {v(tmp+2*i+1)}")
            if i == 1:
                a(f"    v_add_f32 {v(tmp)}, {v(tmp)}, {v(tmp+2)}")
                if extra:
                    a(f"    v_add_f32 {v(tmp)}, {v(tmp)}, {extra}")
        a(f"    v_add_f32 {v(tmp+4)}, {v(tmp+4)}, {v(tmp+6)}")
        a(f"    v_add_f32 {dst}, {v(tmp)}, {v(tmp+4)}")

    def ln_stats(S2, S1, mu, rstd):
        a(f"    v_mul_f32 {mu}, {f32(1/512)}, {S1}")
        a(f"    v_mul_f32 {S2}, {f32(1/512)}, {S2}")
        a(f"    v_fma_f32 {S2}, -{mu}, {mu}, {S2}")
        a(f"    v_max_f32 {S2}, 0, {S2}")
        a(f"    v_add_f32 {S2}, {f32(1e-5)}, {S2}")
        a(f"    v_rsq_f32 {rstd}, {S2}")

    def pack16(d, S, T):
        a(f"    v_mov_b32_dpp {T}, {S} quad_perm:[1,1,3,3] {DPP}")
        a(f"    v_cvt_pk_bf16_f32 {v(d)}, {S}, {T}")
        for i in (1, 2, 3):
            a(f"    v_mov_b32_dpp {v(d+i)}, {v(d)} row_shl:{2*i} {DPP}")

    def quad4(d):
        for i in (1, 2, 3):
            a(f"    v_mov_b32_dpp {v(d+i)}, {v(d)} quad_perm:[{i},{i},{i},{i}] {DPP}")

    def gather_x(addr, soff, lbl, st, mid2=None, xw=None):
        Y = XO + 8
        poll([(f"buffer_load_dwordx4 {vr(Y+4*i,4)}, {addr}, {sWS}, {soff} offen offset:{128*i} sc1",
               [v(Y + 4 * i + j) for j in range(4)]) for i in range(2 if o['x_half'] else 4)], lbl, None, mid2,
             after={1: lambda: [a(f"    v_pk_add_f32 {vr(Y+j,2)}, {vr(Y+j,2)}, {vr(Y+4+j,2)}") for j in (0, 2)]} if o["spec"] else None)
        st()
        for j in (0, 2):
            if not o["spec"]:
                a(f"    v_pk_add_f32 {vr(Y+j,2)}, {vr(Y+j,2)}, {vr(Y+4+j,2)}")
            a(f"    v_pk_add_f32 {vr(Y+8+j,2)}, {vr(Y+8+j,2)}, {vr(Y+12+j,2)}")
        for j in (0, 2):
            a(f"    v_pk_add_f32 {vr(Y+j,2)}, {vr(Y+j,2)}, {vr(Y+8+j,2)}")
        a(f"""    v_permlane32_swap_b32 {v(Y)}, {v(Y+2)}
    v_permlane32_swap_b32 {v(Y+1)}, {v(Y+3)}
    v_pk_add_f32 {vr(Y,2)}, {vr(Y,2)}, {vr(Y+2,2)}
    v_cvt_pk_bf16_f32 {v(Y)}, {v(Y)}, {v(Y+1)}
    ds_write_b32 {xw or vXw}, {v(Y)}
    ds_read_b128 {vr(XO,4)}, {vXr}
    ds_read_b128 {vr(XO+4,4)}, {vXr} offset:64""")

    def sum_cols(addr, soff, lbl, dst):
        poll([(f"buffer_load_dword {v(TT+i)}, {addr}, {sWS}, {soff} offen offset:{128*i} sc1", [v(TT + i)]) for i in range(4)], lbl)
        a(f"""    v_add_f32 {v(TT)}, {v(TT)}, {v(TT+1)}
    v_add_f32 {v(TT+2)}, {v(TT+2)}, {v(TT+3)}
    v_add_f32 {dst}, {v(TT)}, {v(TT+2)}
    v_mov_b32 {v(TT)}, {dst}
    v_permlane32_swap_b32 {dst}, {v(TT)}
    v_add_f32 {dst}, {dst}, {v(TT)}""")

    def two_tile_write(base):
        a(f"    ds_write_b128 {vWg}, {vr(DD,4)} offset:{base - RQ}")
        a(f"    ds_write_b128 {vWg}, {vr(DD+4,4)} offset:{base - RQ + 128}")

    def stats_write(base):
        a(f"    ds_write_b128 {vL16}, {vr(DD+8,4)} offset:{base - RQ + 2048 + 192}")
        a("    s_waitcnt lgkmcnt(0)\n    s_barrier")

    def two_tile_reduce(base, n, aD, aC):
        st = v(TT + 8)
        S2, S1, mu, rs, S, CS = v(DD), v(DD + 1), v(DD + 2), v(DD + 3), v(DD + 4), v(DD + 5)
        u = (base - RQ) // 256
        h = n // 2
        a(f"    ds_read_b32 {st}, {vGS} offset:{base - RQ}")
        for i in range(h):
            a(f"    ds_read2st64_b32 {vr(TT+2*i,2)}, {aD} offset0:{u+2*i} offset1:{u+2*i+1}")
        for i in range(h):
            a(f"    ds_read2st64_b32 {vr(XO+2*i,2)}, {aC} offset0:{u+2*i} offset1:{u+2*i+1}")
        chain = [f"v_add_f32_dpp {st}, {st}, {st} quad_perm:[1,0,3,2] {DPP}",
                 f"v_add_f32_dpp {st}, {st}, {st} quad_perm:[2,3,0,1] {DPP}",
                 f"v_add_f32_dpp {st}, {st}, {st} row_half_mirror {DPP}",
                 f"v_mul_f32_dpp {mu}, {st}, {vInv} row_newbcast:8 {DPP}\n    v_mul_f32_dpp {S2}, {st}, {vInv} row_newbcast:0 {DPP}",
                 f"v_fma_f32 {S2}, -{mu}, {mu}, {S2}\n    v_max_f32 {S2}, 0, {S2}\n    v_add_f32 {S2}, {f32(1e-5)}, {S2}\n    v_rsq_f32 {rs}, {S2}"]
        if n == 8:
            fill = [f"s_waitcnt lgkmcnt(6)\n    v_pk_add_f32 {vr(TT,2)}, {vr(TT,2)}, {vr(TT+2,2)}",
                    f"s_waitcnt lgkmcnt(4)\n    v_pk_add_f32 {vr(TT+4,2)}, {vr(TT+4,2)}, {vr(TT+6,2)}",
                    f"s_waitcnt lgkmcnt(2)\n    v_pk_add_f32 {vr(XO,2)}, {vr(XO,2)}, {vr(XO+2,2)}",
                    f"v_pk_add_f32 {vr(TT,2)}, {vr(TT,2)}, {vr(TT+4,2)}\n    s_waitcnt lgkmcnt(0)\n    v_pk_add_f32 {vr(XO+4,2)}, {vr(XO+4,2)}, {vr(XO+6,2)}",
                    f"v_pk_add_f32 {vr(XO,2)}, {vr(XO,2)}, {vr(XO+4,2)}\n    v_add_f32 {S}, {v(TT)}, {v(TT+1)}\n    v_add_f32 {CS}, {v(XO)}, {v(XO+1)}"]
        else:
            fill = [f"s_waitcnt lgkmcnt(2)\n    v_pk_add_f32 {vr(TT,2)}, {vr(TT,2)}, {vr(TT+2,2)}",
                    f"s_waitcnt lgkmcnt(0)\n    v_pk_add_f32 {vr(XO,2)}, {vr(XO,2)}, {vr(XO+2,2)}",
                    f"v_add_f32 {S}, {v(TT)}, {v(TT+1)}\n    v_add_f32 {CS}, {v(XO)}, {v(XO+1)}", None, None]
        a(f"    s_waitcnt lgkmcnt({2*h})")
        for c_, f_ in zip(chain, fill):
            a("    " + c_)
            if f_:
                a("    " + f_)
        a(f"    v_fma_f32 {S}, -{mu}, {CS}, {S}\n    v_mul_f32 {S}, {S}, {rs}")
        return S

    def add_bf16x8(d, A, B):
        for i in range(4):
            x, y = TT + 4 * (i & 1), TT + 4 * (i & 1) + 2
            a(f"""    v_lshlrev_b32 {v(x)}, 16, {A[i]}
    v_and_b32 {v(x+1)}, 0xffff0000, {A[i]}
    v_lshlrev_b32 {v(y)}, 16, {B[i]}
    v_and_b32 {v(y+1)}, 0xffff0000, {B[i]}
    v_pk_add_f32 {vr(x,2)}, {vr(x,2)}, {vr(y,2)}
    v_cvt_pk_bf16_f32 {v(d+i)}, {v(x)}, {v(x+1)}""")

    def r64_addr(shift):
        t = v(TT + 7)
        a(f"""    v_bfe_u32 {vA}, {vL}, 2, 2
    v_lshl_add_u32 {vA}, {vKG}, 3, {vA}
    v_lshlrev_b32 {vA}, {shift}, {vA}
    v_and_b32 {t}, 1, {vKG}
    v_lshlrev_b32 {t}, 1, {t}
    v_xor_b32 {t}, {t}, {vL}
    v_and_b32 {t}, 3, {t}
    v_lshl_add_u32 {vA}, {t}, 4, {vA}""")

    cO, cF, cQ = v(TT + 12), v(TT + 13), v(TT + 14)
    def slot_addrs(tmp=TT + 2):
        t2, t3, t4 = v(tmp), v(tmp + 1), v(tmp + 2)
        a(f"""    s_lshl_b32 {sT2}, {sO}, 10
    s_add_u32 {sT2}, {sT2}, {W_O}
    v_lshl_add_u32 {cO}, {vL}, 4, {sT2}
    v_mov_b32 {t2}, {sO}
    v_mov_b32 {t3}, {sYo}
    v_cmp_lt_u32 vcc, 1, {vKG}
    v_cndmask_b32 {t2}, {t2}, {t3}, vcc
    v_lshrrev_b32 {t3}, 3, {vL}
    v_lshlrev_b32 {t4}, 15, {t3}
    v_lshl_add_u32 {cF}, {t2}, 7, {t4}
    v_and_b32 {t4}, 7, {vL}
    v_lshl_add_u32 {cF}, {t4}, 4, {cF}
    v_add_u32 {cF}, {F0}, {cF}
    s_lshl_b32 {sT2}, {sO}, 7
    s_add_u32 {sT2}, {sT2}, {W_Q2}
    v_lshlrev_b32 {t3}, 22, {t3}
    v_lshl_add_u32 {cQ}, {t4}, 4, {t3}
    v_add_u32 {cQ}, {sT2}, {cQ}
    s_mov_b32 {sT3}, {OSTR}""")

    def marks2(c):
        slot_addrs(DD + 8)
        for i in range(4):
            a(f"    v_mov_b32 {v(c+i)}, -1")
        a(f"""    buffer_store_dwordx4 {vr(c,4)}, {cO}, {sWS}, {sT3} offen sc1
    buffer_store_dwordx4 {vr(c,4)}, {cQ}, {sWS}, 0 offen sc1
    s_mov_b32 exec_lo, 0xff00ff00
    s_mov_b32 exec_hi, 0xff00ff00
    buffer_store_dwordx4 {vr(c,4)}, {cF}, {sWS}, 0 offen sc1
    s_mov_b64 exec, -1""")

    def kshuffle():
        if not o["klin"]:
            return
        aw, ar = DD, DD + 4
        a(f"""    s_add_u32 {sT1}, {sM0}, {T_WO}
    v_xor_b32 {v(aw)}, {vC}, {vKG}
    v_lshlrev_b32 {v(ar)}, 4, {v(aw)}
    v_lshl_add_u32 {v(aw)}, {vKG}, 8, {v(ar)}
    v_lshl_add_u32 {v(ar)}, {vC}, 8, {v(ar)}
    v_add_u32 {v(aw)}, {sT1}, {v(aw)}
    v_add_u32 {v(ar)}, {sT1}, {v(ar)}""")
        for j in (1, 2, 3):
            a(f"    v_xor_b32 {v(aw+j)}, {64*j}, {v(aw)}\n    v_xor_b32 {v(ar+j)}, {64*j}, {v(ar)}")
        for u in range(4):
            h = (u & 1) * 4096
            if u:
                a("    s_waitcnt lgkmcnt(6)")
            for j in range(4):
                a(f"    ds_write_b128 {v(aw+j)}, {vr(KB+16*u+4*j,4)} offset:{h + 1024*j}")
            for t in range(4):
                a(f"    ds_read_b128 {vr(KB+16*u+4*t,4)}, {v(ar+t)} offset:{h}")

    def thr_wait(n):
        lbl = a.label("L_th")
        a(f"    s_bitcmp1_b32 {sXcc}, 0\n    s_cbranch_scc1 {lbl}\n    s_waitcnt vmcnt({min(63, n)})\n{lbl}:")

    def kload(i):
        if o["thr"] and i >= o["thr"]:
            thr_wait(o["thr"] - 1)
        if o["klin"]:
            a(f"    buffer_load_dwordx4 {vr(KB+16*(i&3)+4*(i>>2),4)}, {aK}, {sK}, {c4k[i>>2]} offen offset:{(i&3)*1024} {kvf}")
            return
        u, t = i // 4, i % 4
        a(f"    buffer_load_dwordx4 {vr(KB+4*i,4)}, {aK}, {sK}, 0 offen offset:{u*1024+t*64} {kvf}")

    t0, t1, t2, t3, t4, t5 = [v(TT + i) for i in range(6)]
    a(f"""    s_cmp_ge_u32 s2, 256
    s_cbranch_scc1 L_end
    s_load_dwordx16 s[4:19], s[0:1], 0
    s_load_dwordx8 s[20:27], s[0:1], 64
    v_lshrrev_b32 v1, 6, v0
    v_and_b32 {vL}, 63, v0
    v_readfirstlane_b32 {sW}, v1""")
    if o["diag"]:
        a(f"    v_mov_b32 {vStamp}, 0\n    s_memrealtime {sSt}\n    s_mov_b32 s100, 0")
    a(f"""    s_lshr_b32 {sIdx}, s2, 3
    s_and_b32 {sG}, s2, 7
    s_lshr_b32 {sB}, s2, 7
    s_and_b32 {sS}, {sIdx}, 15
    s_and_b32 {sKh}, {sIdx}, 1
    v_lshrrev_b32 {vKG}, 4, {vL}
    v_and_b32 {vC}, 15, {vL}
""")
    if o["klin"]:
        a(f"    v_lshlrev_b32 {aK}, 4, {vL}")
    else:
        a(f"""    ; K lane address: (c>>2)*4096 + (c&3)*256 + kg*16
    v_bfe_u32 {aK}, {vL}, 2, 2
    v_lshlrev_b32 {aK}, 12, {aK}
    v_and_b32 {t1}, 3, {vL}
    v_lshl_add_u32 {aK}, {t1}, 8, {aK}
    v_lshl_add_u32 {aK}, {vKG}, 4, {aK}""")
    a(f"""    ; kv byte offset: ((8b + g)*16 + s)*8 + w) << 14
    s_lshl3_add_u32 {sT0}, {sB}, {sG}
    s_lshl4_add_u32 {sT0}, {sT0}, {sS}
    s_lshl3_add_u32 {sT0}, {sT0}, {sW}
    {("s_lshl_b32 " + sT1 + ", " + sKh + ", 2") if o["flip"] == 1 else ""}
    {("s_and_b32 " + sT1 + ", " + sIdx + ", 7") if o["flip"] == 2 else ""}
    {("s_add_u32 " + sT1 + ", " + sIdx + ", s2") if o["flip"] == 3 else ""}
    {("s_and_b32 " + sT1 + ", " + sT1 + ", 7") if o["flip"] == 3 else ""}
    {("s_xor_b32 " + sT0 + ", " + sT0 + ", " + sT1) if o["flip"] else ""}
    s_lshl_b32 {sT0}, {sT0}, 14
    s_mov_b32 s31, 0x20000
    s_sub_u32 s30, 33554432, {sT0}
    s_cmp_lt_u32 {sW}, 4
    s_cbranch_scc0 L_young
    s_lshl2_add_u32 {sT1}, {sKh}, {sW}
    s_lshl_b32 {sT1}, {sT1}, 19
    s_lshr_b32 {sT2}, {sIdx}, 1
    s_lshl4_add_u32 {sT2}, {sG}, {sT2}
    s_lshl_b32 {sT2}, {sT2}, 6
    s_add_u32 {sT1}, {sT1}, {sT2}
    s_mul_i32 {sT3}, {sW}, {2*WVS}""")
    r64_addr(13)
    a(f"""    s_mov_b32 s43, 0x20000
    s_sub_u32 s42, 4194304, {sT1}
    s_add_u32 m0, {sT3}, {T_WQ}
    s_waitcnt lgkmcnt(0)
    s_add_u32 s40, s10, {sT1}
    s_addc_u32 s41, s11, 0""")
    if o["diag"]:
        stamp(2)
        a(f"    s_add_u32 m0, {sT3}, {T_WQ}")
    def wq_pieces():
        for k in range(0 if o["x_nowq"] else 4):
            if k:
                a(f"    s_add_u32 m0, {sT3}, {(k >> 1) * WVS + T_WQ + (k & 1) * 1024}")
                a(f"    s_mov_b32 {sT2}, {((k >> 1) * 32 + (k & 1) * 4) * 8192}")
            a(f"    buffer_load_dwordx4 {vA}, {sWq}, {sT2 if k else 0} offen {wf} lds")
    if not o["mfirst"]:
        wq_pieces()
    def phase0():
        if o["phase"]:
            if o["phv"] == 0:
                a(f"    s_add_u32 s15, {sIdx}, {sW}\n    s_add_u32 s15, s15, {sG}")
            elif o["phv"] == 1:
                a(f"    s_lshr_b32 s15, {sIdx}, 2\n    s_add_u32 s15, s15, {sW}\n    s_add_u32 s15, s15, {sG}")
            else:
                a(f"    s_lshr_b32 s15, {sIdx}, 3\n    s_add_u32 s15, s15, {sW}")
            a(f"    s_and_b32 s15, s15, 3\n    s_lshl_b32 s15, s15, 12")
    phase0()
    a(f"    s_add_u32 s28, s6, {sT0}\n    s_addc_u32 s29, s7, 0")
    def common2():
        a(f"""    v_lshlrev_b32 {aV}, 2, {vL}
    s_getreg_b32 {sXcc}, hwreg(HW_REG_XCC_ID, 0, 4)
    s_lshl_b32 {sO}, {sG}, 5
    s_add_u32 {sO}, {sO}, {sIdx}
    {"s_xor_b32 s80, s15, 4096" if o["phase"] else "s_mov_b32 s80, 4096"}
    {"s_xor_b32 s81, s15, 8192" if o["phase"] else "s_mov_b32 s81, 8192"}
    {"s_xor_b32 s82, s15, 12288" if o["phase"] else "s_mov_b32 s82, 12288"}
    s_add_u32 s32, s8, {sT0}
    s_addc_u32 s33, s9, 0
    s_mov_b32 s34, s30
    s_mov_b32 s35, 0x20000
    s_mov_b32 s36, s26
    s_mov_b32 s37, s27
    s_mov_b32 s38, {WS_BYTES}
    s_mov_b32 s39, 0x20000
    s_lshr_b32 {sT1}, {sG}, 2
    s_xor_b32 {sT1}, {sT1}, {o["pol"]}
    s_lshl1_add_u32 {sYo}, {sB}, {sT1}
    s_lshl4_add_u32 {sYo}, {sYo}, {sS}
    s_and_b32 {sT1}, {sG}, 3
    s_lshl2_add_u32 {sYo}, {sYo}, {sT1}""")
    c0 = TT + 8
    def small_ops():
        a(f"""    v_lshlrev_b32 {t0}, 4, {vL}
    s_cmp_eq_u32 {sW}, 0
    s_cbranch_scc0 L_sm1""")
        srd(sX, 4, None, 2048)
        a(f"""    s_mov_b32 m0, {XB}
    s_nop 0
    buffer_load_dwordx4 {t0}, {sX}, 0 offen lds
    buffer_load_dwordx4 {t0}, {sX}, 0 offen offset:1024 lds
    s_branch L_sm9
L_sm1:
    s_cmp_eq_u32 {sW}, 3
    s_cbranch_scc0 L_sm2
    buffer_load_dword {vEp}, off, {sWS}, 0 offset:4 sc1
    s_branch L_sm9
L_sm2:
    v_mov_b32 {v(c0)}, -1
    v_mov_b32 {v(c0+1)}, -1
    v_mov_b32 {v(c0+2)}, -1
    v_mov_b32 {v(c0+3)}, -1""")
        slot_addrs()
        a(f"""    s_cmp_eq_u32 {sW}, 1
    s_cbranch_scc1 L_sm3
    v_mov_b32 {cO}, {cF}
    s_mov_b32 exec_lo, 0x00ff00ff
    s_mov_b32 exec_hi, 0x00ff00ff
L_sm3:
    {"s_cmp_eq_u32 " + sW + ", " + str(o["x_skipm"]) if o["x_skipm"] else ""}
    {"s_cbranch_scc1 L_sm4" if o["x_skipm"] in (1, 2) else ""}
    {"s_branch L_sm4" if o["x_skipm"] == 3 else ""}
    buffer_store_dwordx4 {vr(c0,4)}, {cO}, {sWS}, 0 offen sc1
L_sm4:
    s_mov_b64 exec, -1
L_sm9:""")
    if o["mfirst"]:
        a(f"    s_mov_b32 s14, {sT3}")
        common2()
        small_ops()
        a(f"    s_mov_b32 {sT3}, s14\n    s_add_u32 m0, {sT3}, {T_WQ}")
        wq_pieces()
    for i in range(16):
        if i == o["kpre"] and not o["mfirst"]:
            common2()
            if o["esmall"]:
                small_ops()
        kload(i)
        if i + 1 == o["b1at"]:
            stamp(16)
            a(f"    s_waitcnt vmcnt({o['b1at'] - (o['kpre'] if (o['esmall'] and not o['mfirst']) else 0)})")
            if o["esmall"]:
                a(f"""    s_cmp_eq_u32 {sW}, 3
    s_cbranch_scc0 L_b1
    v_mov_b32 {t3}, {QL + 1028}
    v_add_u32 {vEp}, {TAG_STEP}, {vEp}
    ds_write_b32 {t3}, {vEp}
    s_waitcnt lgkmcnt(0)
L_b1:""")
            a("    s_barrier")
            stamp(22)
    a("L_vloads:")
    for n in range(16):
        for r, d in ((0, 2), (1, 4), (2, 3), (3, 5)):
            key = 4 * n + r
            if key == o["kwait"]:
                a(f"    s_waitcnt vmcnt({key})")
                if o["qkearly"]:
                    a(f"    s_cmp_lt_u32 {sW}, 4\n    s_cbranch_scc0 L_mid\nL_vrest:")
            if o["thr"] and key % 4 == 0:
                dv = 4 * o["thr"]
                thr_wait(dv - 4 if key >= dv else max(0, (dv - 4 - key) // 4 + key))
            a(f"    buffer_load_dword {v(VB+4*n+d)}, {aV}, {sV}, {c4k[key//16]} offen offset:{(key%16)*256} {kvf}")
    stamp(5)
    a(f"""    s_cmp_lt_u32 {sW}, 4
    s_cbranch_scc0 L_joined
    s_branch L_setup
L_young:""")
    if o["prefetch"]:
        a(f"""    ; each of these waves pulls 128 bytes of the code into L2
    s_getpc_b64 s[94:95]
L_pc:
    s_lshl2_add_u32 {sT2}, {sIdx}, {sW}
    s_sub_u32 {sT2}, {sT2}, 4
    s_lshl_b32 {sT2}, {sT2}, 7
    s_min_u32 {sT2}, {sT2}, L_codeend-L_pc-64
    v_lshl_add_u32 {t2}, {vL}, 6, {sT2}
    s_mov_b64 exec, 3
    global_load_dword {vDum}, {t2}, s[94:95]
    s_mov_b64 exec, -1""")
    a(f"""    v_mov_b32 {t3}, {QL + 1024}
    v_mov_b32 {t4}, 0
    ds_write_b32 {t3}, {t4}
    s_waitcnt lgkmcnt(0)
    s_add_u32 s28, s6, {sT0}
    s_addc_u32 s29, s7, 0""")
    phase0()
    common2()
    a(f"""    s_cmp_eq_u32 {sW}, 7
    s_cbranch_scc1 L_w7a
    {"s_barrier" if o["b1first"] else ""}
    s_branch L_setup
L_w7a:""")
    a("    s_setprio 3")
    if not o["esmall"]:
        srd(sX, 4, None, 2048)
        a(f"""    s_mov_b32 m0, {XB}
    v_lshlrev_b32 {t0}, 4, {vL}
    v_mov_b32 {v(c0)}, -1
    buffer_load_dwordx4 {t0}, {sX}, 0 offen lds
    buffer_load_dwordx4 {t0}, {sX}, 0 offen offset:1024 lds
    buffer_load_dword {vEp}, off, {sWS}, 0 offset:4 sc1
    v_mov_b32 {v(c0+1)}, -1
    v_mov_b32 {v(c0+2)}, -1
    v_mov_b32 {v(c0+3)}, -1""")
        slot_addrs()
        if not o["x_noclr"]:
            a(f"""    buffer_store_dwordx4 {vr(c0,4)}, {cO}, {sWS}, 0 offen sc1
    s_mov_b32 exec_lo, 0x00ff00ff
    s_mov_b32 exec_hi, 0x00ff00ff
    buffer_store_dwordx4 {vr(c0,4)}, {cF}, {sWS}, 0 offen sc1
    s_mov_b64 exec, -1""")
    a(f"""L_setup:
    v_bfe_u32 {t5}, {vL}, 3, 2
    v_lshlrev_b32 {vDma}, 3, {t5}
    v_lshrrev_b32 {t5}, 5, {vL}
    v_lshl_add_u32 {vDma}, {t5}, 2, {vDma}
    v_bfe_u32 {t5}, {vL}, 1, 2
    v_add_u32 {vDma}, {vDma}, {t5}
    v_and_b32 {vHalf}, 1, {vL}
    v_lshlrev_b32 {vHalf}, 4, {vHalf}
    s_mul_i32 {sM0}, {sW}, {WVS}""")
    h8 = t1
    a(f"""    s_mov_b32 s86, 0x00030003
    s_mov_b32 s87, 0x00030003
    s_mov_b32 s88, 0x01010101
    s_mov_b32 s89, 0x01010101
    s_mov_b32 s90, 0x01010101
    s_mov_b32 s91, 0
    s_mov_b32 s92, 0x00001111
    s_mov_b32 s93, 0x00001111
    s_mov_b32 s96, 0x11111111
    s_mov_b32 s97, 0
    s_mov_b32 {sPlo}, 0x05040100
    s_mov_b32 {sPhi}, 0x07060302
    s_mov_b32 {sCnt}, {o['spin']}
    s_mov_b32 {sL}, 0
    s_mov_b32 {sLO}, 0
    s_mov_b32 {sPure}, 0
    s_mov_b32 {sMode}, 0
    v_lshrrev_b32 {t2}, 1, {vKG}
    v_and_b32 {t3}, 1, {vKG}
    v_lshl_add_u32 {vT}, {vL}, 3, {sM0}
    s_lshl_b32 {sT2}, {sW}, 8
    s_add_u32 {sT2}, {sT2}, {RQ}                ; RQ + w*256
    v_add_u32 {vW4}, {sT2}, {aV}
    v_add_u32 {vR4}, {RQ}, {aV}
    v_lshlrev_b32 {vWd}, 6, {vC}
    v_lshl_add_u32 {vWd}, {vKG}, 4, {vWd}
    v_add_u32 {vWd}, {sT2}, {vWd}
    v_lshlrev_b32 {t5}, 4, {vL}
    v_add_u32 {vL16}, {sT2}, {t5}
    v_add_u32 {t5}, {DUM}, {t5}
    v_add_u32 {vWg}, {2048 - 128}, {vWd}
    v_cmp_eq_u32 vcc, 2, {vC}
    v_cndmask_b32 {vWg}, {t5}, {vWg}, vcc
    v_cmp_gt_u32 vcc, 2, {vC}
    v_cndmask_b32 {vWg}, {vWg}, {vWd}, vcc
    v_cndmask_b32 {vWd}, {t5}, {vWd}, vcc
    v_cmp_gt_u32 vcc, 2, {vL}
    v_cndmask_b32 {vL16}, {t5}, {vL16}, vcc
    v_mov_b32 {vInv}, {f32(1/512)}
    v_mov_b32 {vScale}, {f32(128**-0.5 * math.log2(math.e))}
    v_mov_b32 {vRes}, 0
    v_mov_b32 {vX1}, 0
    v_mov_b32 {v(XO+20)}, 0
    ds_write_b32 {vR4}, {vRes} offset:{RD - RQ + 7*256}
    v_lshrrev_b32 {t4}, 2, {vC}
    s_and_b32 {sT3}, {sO}, 0xf0
    s_lshl_b32 {sT3}, {sT3}, 7
    s_add_u32 {sT3}, {sT3}, {W_Q2}
    v_lshl_add_u32 {aQ2}, {vL}, 4, {sT3}
    s_lshl_b32 {sT2}, {sG}, 12
    s_lshl_b32 {sT3}, {sW}, 8
    s_add_u32 {sT2}, {sT2}, {sT3}
    s_add_u32 {sT2}, {sT2}, {W_H}
    v_lshl_add_u32 {aH}, {t2}, 7, {sT2}
    v_lshl_add_u32 {aH}, {vC}, 5, {aH}
    v_lshl_add_u32 {aH}, {t3}, 4, {aH}
    s_and_b32 {sT2}, {sO}, 0xf0
    s_lshl_b32 {sT3}, {sW}, 1
    s_add_u32 {sT3}, {sT3}, {sT2}
    s_lshl_b32 {sT3}, {sT3}, 10
    s_add_u32 {sT3}, {sT3}, {W_O}
    v_lshl_add_u32 {aO}, {vL}, 4, {sT3}
    v_lshl_add_u32 {aML}, {vKG}, 2, {vC}
    v_and_b32 {aML}, 15, {aML}
    s_lshr_b32 {sT3}, {sW}, 1
    s_add_u32 {sT3}, {sT3}, {sT2}
    s_lshl_b32 {sT3}, {sT3}, 7
    s_add_u32 {sT3}, {sT3}, {W_ML}
    v_lshl_add_u32 {aML}, {aML}, 3, {sT3}
    v_xor_b32 {t1}, {o["pol"]}, {t2}
    v_lshlrev_b32 {t1}, 13, {t1}
    v_lshrrev_b32 {aY}, 3, {vC}
    v_lshl_add_u32 {aY}, {aY}, 9, {t1}
    v_lshl_add_u32 {aY}, {t3}, 14, {aY}
    v_and_b32 {t5}, 7, {vC}
    v_lshl_add_u32 {aY}, {t5}, 4, {aY}
    s_lshl_b32 {sT3}, {sW}, 10
    s_add_u32 {sT3}, {sT3}, {W_Y}
    v_add_u32 {aY}, {sT3}, {aY}
    v_bfe_u32 {aZ}, {vL}, 3, 2
    v_lshl_add_u32 {aZ}, {aZ}, 9, {t1}
    v_lshl_add_u32 {aZ}, {t5}, 4, {aZ}
    s_lshr_b32 {sT2}, {sW}, 2
    s_lshl_b32 {sT2}, {sT2}, 14
    s_and_b32 {sT3}, {sW}, 3
    s_lshl_b32 {sT3}, {sT3}, 11
    s_add_u32 {sT3}, {sT3}, {sT2}
    s_add_u32 {sT3}, {sT3}, {W_Z}
    v_add_u32 {aZ}, {sT3}, {aZ}
    ; x1 for this workgroup's 16 columns: b'*16384 + gh*8192 + (idx>>1)*512 + (idx&1)*64 + c*4
    v_lshl_add_u32 {t5}, {vC}, 2, {t1}
    s_lshr_b32 {sT2}, {sIdx}, 1
    s_lshl_b32 {sT2}, {sT2}, 9
    s_lshl_b32 {sT3}, {sKh}, 6
    s_add_u32 {sT2}, {sT2}, {sT3}
    s_add_u32 {sT2}, {sT2}, {W_Y}
    v_lshl_add_u32 {aX1}, {t3}, 14, {t5}
    v_add_u32 {aX1}, {sT2}, {aX1}
    s_lshl_b32 {sT2}, {sB}, 14
    s_lshl_b32 {sT3}, {sS}, 9
    s_add_u32 {sT2}, {sT2}, {sT3}
    s_add_u32 {sT2}, {sT2}, {W_Z}
    v_lshl_add_u32 {aFin}, {t3}, 6, {t5}
    v_add_u32 {aFin}, {sT2}, {aFin}
    s_lshl_b32 {sT2}, {sIdx}, 5
    v_lshlrev_b32 {pOut}, 10, {t3}
    v_lshl_add_u32 {pOut}, {vC}, 1, {pOut}
    v_add_u32 {pOut}, {sT2}, {pOut}
    s_and_b32 {sT1}, {sO}, 0xf0                 ; O: (o & 0xf0)*1024 + w*4096 + (l>>2)*256 + s*16 + (l&3)*4
    s_lshl_b32 {sT2}, {sW}, 2
    s_add_u32 {sT2}, {sT2}, {sT1}
    s_lshl_b32 {sT2}, {sT2}, 10
    s_lshl_b32 {sT3}, {sS}, 4
    s_add_u32 {sT2}, {sT2}, {sT3}
    s_add_u32 {sT2}, {sT2}, {W_O}
    v_lshrrev_b32 {pO}, 2, {vL}
    v_lshl_add_u32 {pO}, {pO}, 8, {sT2}
    v_and_b32 {t5}, 3, {vL}
    v_lshl_add_u32 {pO}, {t5}, 2, {pO}
    s_add_u32 {sT2}, {sT1}, {sW}
    s_lshl_b32 {sT2}, {sT2}, 7
    s_lshl_b32 {sT3}, {sS}, 3
    s_add_u32 {sT2}, {sT2}, {sT3}
    s_add_u32 {sT2}, {sT2}, {W_ML}
    v_mov_b32 {pML}, {sT2}
    s_bfe_u32 {sT2}, {sIdx}, 0x20001
    s_lshl_b32 {sT2}, {sT2}, 2
    s_lshr_b32 {sT3}, {sIdx}, 3
    s_add_u32 {sT2}, {sT2}, {sT3}
    s_lshl_b32 {sT2}, {sT2}, 4
    s_lshl_b32 {sT3}, {sG}, 12
    s_add_u32 {sT2}, {sT2}, {sT3}
    s_lshl_b32 {sT3}, {sKh}, 10
    s_add_u32 {sT2}, {sT2}, {sT3}
    s_add_u32 {sT2}, {sT2}, {W_Q2}
    v_lshl_add_u32 {pQ}, {t3}, 11, {sT2}
    v_lshl_add_u32 {pQ}, {t2}, 9, {pQ}
    v_lshrrev_b32 {t5}, 3, {vC}
    v_lshl_add_u32 {pQ}, {t5}, 8, {pQ}
    s_lshl_b32 {sT2}, {sO}, 7
    v_lshl_add_u32 {pS}, {vL}, 1, {sT2}         ; o*128 + (b*16+n)*2
    s_lshl_b32 {sT2}, {sYo}, 7
    s_add_u32 {sT3}, {sT2}, {W_Z}
    v_add_u32 {pZ}, {sT3}, {aV}
    s_add_u32 {sT2}, {sT2}, {W_Y}
    v_lshlrev_b32 {pY}, 2, {vC}
    v_lshl_add_u32 {pY}, {t2}, 6, {pY}
    v_add_u32 {pY}, {sT2}, {pY}
    v_lshrrev_b32 {vT0}, 2, {vL}
    v_lshlrev_b32 {vT0}, 6, {vT0}
    v_and_b32 {vT1}, 3, {vL}
    v_lshl_add_u32 {vT0}, {vT1}, 3, {vT0}
    v_lshl_add_u32 {vT0}, {t3}, 5, {vT0}
    s_and_b32 {sT2}, {sW}, 3
    s_mul_i32 {sT2}, {sT2}, {2*WVS}
    v_add_u32 {vTq}, {sT2}, {vT0}
    v_add_u32 {vT0}, {sM0}, {vT0}
    v_xor_b32 {vT1}, 32, {vT0}
    s_lshl_b32 {sT2}, {sW}, 11
    s_add_u32 {sT2}, {sT2}, {OB}
    v_lshl_add_u32 {vOw}, {vL}, 3, {sT2}
    v_add_u32 {vOw2}, 1024, {vOw}
    s_lshl_b32 {sT2}, {sW}, 9
    s_add_u32 {sT2}, {sT2}, {OB}
    v_lshl_add_u32 {vOr}, {vL}, 3, {sT2}
    s_lshl_b32 {sT2}, {sW}, 3
    s_add_u32 {sT2}, {sT2}, {MLB}
    v_and_b32 {vMLw}, 3, {vL}
    v_lshl_add_u32 {vMLw}, {vMLw}, 6, {sT2}
    s_lshl_b32 {sT2}, {sW}, 6
    s_add_u32 {sT2}, {sT2}, {MLB}
    v_and_b32 {vMLr}, 7, {vL}
    v_lshl_add_u32 {vMLr}, {vMLr}, 3, {sT2}
    v_lshlrev_b32 {vR4c}, 2, {vC}
    v_lshl_add_u32 {vR4c}, {t2}, 7, {vR4c}
    v_add_u32 {vR4c}, {RQC}, {vR4c}
    ; x staging
    s_lshl_b32 {sT2}, {sW}, 7
    s_add_u32 {sT2}, {sT2}, {XB}
    v_lshl_add_u32 {vXw}, {t3}, 10, {sT2}
    v_lshl_add_u32 {vXw}, {vC}, 3, {vXw}
    v_lshl_add_u32 {vXw}, {t2}, 2, {vXw}
    v_min_u32 {vXr}, 2, {vC}
    v_lshl_add_u32 {vXr}, {vXr}, 10, {sT2}
    v_lshl_add_u32 {vXr}, {vKG}, 4, {vXr}
    v_lshlrev_b32 {t5}, 2, {t3}
    v_cmp_gt_u32 vcc, 8, {vC}
    v_cndmask_b32 {t5}, 8, {t5}, vcc
    v_and_b32 {vGS}, 7, {vL}
    v_lshlrev_b32 {vGS}, 8, {vGS}
    v_lshl_add_u32 {vGS}, {t3}, 4, {vGS}
    v_add_u32 {vGS}, {vGS}, {t5}
    v_add_u32 {vGS}, {RQC + 192}, {vGS}
    v_lshlrev_b32 {t5}, 1, {vC}
    v_lshl_add_u32 {t5}, {t2}, 5, {t5}
    s_lshl_b32 {sT2}, {sB}, 10
    s_lshl_b32 {sT3}, {sS}, 6
    s_add_u32 {sT2}, {sT2}, {sT3}
    s_add_u32 {sT2}, {sT2}, {XB}
    v_add_u32 {aRes}, {sT2}, {t5}
    s_lshl_b32 {sT1}, {sG}, 19                  ; wo: (512g + 64(w&3))*1024 + s*64
    s_and_b32 {sT2}, {sW}, 3
    s_lshl_b32 {sT2}, {sT2}, 16
    s_add_u32 {sT1}, {sT1}, {sT2}
    s_lshl_b32 {sT2}, {sS}, 6
    s_add_u32 {sT1}, {sT1}, {sT2}""")
    srd(sWo, 12, sT1, 4194304)
    srd(sOut, 22, None, 2048)
    a(f"""    s_mul_i32 {sT1}, {sG}, 14
    s_min_u32 {sT2}, {sIdx}, 13
    s_add_u32 {sT1}, {sT1}, {sT2}
    s_lshl_b32 {sT1}, {sT1}, 5
    s_mul_i32 {sT2}, {sW}, {64*3584}
    s_add_u32 {sT1}, {sT1}, {sT2}""")
    srd(sWg, 16, sT1, 1835008)
    srd(sWu, 18, sT1, 1835008)
    a(f"""    s_mul_i32 {sT1}, {sG}, 7
    s_min_u32 {sT2}, {sW}, 6
    s_add_u32 {sT1}, {sT1}, {sT2}
    s_lshl_b32 {sT1}, {sT1}, 15
    s_lshl_b32 {sT2}, {sIdx}, 5
    s_add_u32 {sT1}, {sT1}, {sT2}""")
    srd(sWd, 20, sT1, 1835008)
    a(f"""    s_cmp_lt_u32 {sW}, 4
    s_cbranch_scc1 L_joined
    s_cmp_eq_u32 {sW}, 7
    s_cbranch_scc0 L_young2""")
    b0, b1, bx, by = t0, t1, t2, t5
    a(f"""    v_mov_b32 {v(DD)}, 0x3f803f80
    v_mov_b32 {v(DD+1)}, 0x3f803f80
    v_mov_b32 {v(DD+2)}, 0x3f803f80
    v_mov_b32 {v(DD+3)}, 0x3f803f80
    v_lshlrev_b32 {b0}, 4, {vL}
    v_add_u32 {b0}, {ONES}, {b0}
    ds_write_b128 {b0}, {vr(DD,4)}
    v_subrev_u32 {b0}, {sM0}, {vT0}
    v_xor_b32 {b1}, 32, {b0}
    s_lshl_b32 {sT2}, {sKh}, 9
    v_subrev_u32 {bx}, {7*128}, {vXr}
    v_add_u32 {bx}, {sT2}, {bx}
    v_xor_b32 {by}, 512, {bx}
    v_mov_b32 {t3}, {QL + 1028}""")
    if o["esmall"]:
        a(f"    s_waitcnt lgkmcnt(0)\n    s_barrier\n    ds_read_b32 {vEp}, {t3}")
    else:
        a(f"""    s_waitcnt vmcnt(0)
    v_add_u32 {vEp}, {TAG_STEP}, {vEp}
    ds_write_b32 {t3}, {vEp}
    s_waitcnt lgkmcnt(0)
    s_barrier""")
    assert XB % 1024 == 0
    def q1_reads(k):
        if k == 4:
            a(f"    v_add_u32 {b0}, {4*WVS}, {b0}\n    v_add_u32 {b1}, {4*WVS}, {b1}")
        off = (k & 3) * WVS + T_WQ
        A, B = WB + 8 * (k & 1), XO + 8 * (k & 1)
        for ct in range(2):
            for jj in range(2):
                a(f"    ds_read_b64_tr_b16 {vr(A+4*ct+2*jj,2)}, {(b0, b1)[ct]} offset:{off + 1024*jj}")
        a(f"    ds_read_b128 {vr(B,4)}, {bx} offset:{64*k}")
        a(f"    ds_read_b128 {vr(B+4,4)}, {by} offset:{64*k}")
    q1_reads(0); q1_reads(1)
    D0, D1, DS = DD, DD + 12, DD + 4
    for k in range(8):
        a(f"    s_waitcnt lgkmcnt({6 if k < 7 else 0})")
        A, B = WB + 8 * (k & 1), XO + 8 * (k & 1)
        c = lambda r: vr(r, 4) if k else "0"
        a(f"    v_mfma_f32_16x16x32_bf16 {vr(D0,4)}, {vr(A,4)}, {vr(B,4)}, {c(D0)}")
        a(f"    v_mfma_f32_16x16x32_bf16 {vr(DS,4)}, {vr(B,4)}, {vr(B,4)}, {c(DS)}")
        a(f"    v_mfma_f32_16x16x32_bf16 {vr(D1,4)}, {vr(A+4,4)}, {vr(B,4)}, {c(D1)}")
        a(f"    v_mfma_f32_16x16x32_bf16 {vr(DS,4)}, {vr(B+4,4)}, {vr(B+4,4)}, {vr(DS,4)}")
        if k + 2 < 8:
            q1_reads(k + 2)
    S2, S1, mu, rs = v(DD + 8), v(DD + 9), v(DD + 10), v(DD + 11)
    a(f"""    v_cmp_eq_u32 vcc, 0, {vC}
    v_readlane_b32 {sT0}, {v(DD+4)}, 0
    v_readlane_b32 {sT1}, {v(DD+5)}, 1
    v_readlane_b32 {sT2}, {v(DD+6)}, 0
    v_readlane_b32 {sT3}, {v(DD+6)}, 1
    v_mov_b32 {S2}, {sT0}
    v_mov_b32 {t3}, {sT1}
    v_mov_b32 {S1}, {sT2}
    v_mov_b32 {t4}, {sT3}
    v_cndmask_b32 {S2}, {t3}, {S2}, vcc
    v_cndmask_b32 {S1}, {t4}, {S1}, vcc""")
    ln_stats(S2, S1, mu, rs)
    a(f"""    s_lshl_b32 {sT2}, {sG}, 13
    s_lshl_b32 {sT3}, {sKh}, 11
    s_add_u32 {sT2}, {sT2}, {sT3}
    s_lshr_b32 {sT3}, {sIdx}, 1
    s_lshl_b32 {sT3}, {sT3}, 7
    s_add_u32 {sT2}, {sT2}, {sT3}
    s_add_u32 {sT2}, {sT2}, {W_Q1}
    v_lshlrev_b32 {t3}, 7, {vC}
    v_lshl_add_u32 {t3}, {vKG}, 4, {t3}
    v_add_u32 {t3}, {OB + 7*2048}, {t3}
    v_lshlrev_b32 {t4}, 4, {vL}
    v_add_u32 {t1}, {OB + 7*2048}, {t4}
    v_lshrrev_b32 {t0}, 3, {vL}
    v_mul_u32_u24 {t0}, {4096 - 128}, {t0}
    v_add_u32 {t0}, {t0}, {t4}""")
    for ct, D in enumerate((D0, D1)):
        P4 = XO + 4 * ct
        for r in range(4):
            a(f"    v_mul_f32_dpp {v(DD+4+r)}, {v(D+r)}, {mu} quad_perm:[2,2,2,2] {DPP}")
        for r in range(4):
            a(f"    v_sub_f32 {v(D+r)}, {v(D+r)}, {v(DD+4+r)}")
            a(f"    v_mul_f32 {v(D+r)}, {v(D+r)}, {rs}")
        a(f"""    v_cvt_pk_bf16_f32 {v(P4)}, {v(D)}, {v(D+1)}
    v_cvt_pk_bf16_f32 {v(P4+2)}, {v(D+2)}, {v(D+3)}
    v_add_u32 {v(P4+1)}, {sXcc}, {vEp}
    v_add_u32 {v(P4+3)}, {sXcc}, {vEp}""")
    a(f"""    ds_write_b128 {t3}, {vr(XO,4)}
    ds_write_b128 {t3}, {vr(XO+4,4)} offset:64
    ds_read_b128 {vr(XO+8,4)}, {t1}
    s_mov_b64 exec, 0xffff
    s_waitcnt lgkmcnt(0)""")
    if not o["x_nopub"]:
        a(f"    buffer_store_dwordx4 {vr(XO+8,4)}, {t0}, {sWS}, {sT2} offen {'' if o['q1plain'] else 'sc1'}")
        if o["q1plain"]:
            a(f"    v_add_u32 {v(XO+20)}, {sT2}, {t0}")
            for i in range(4):
                a(f"    v_mov_b32 {v(XO+16+i)}, {v(XO+8+i)}")
    execm("-1")
    stamp(3)
    a("    s_setprio 0")
    a("    s_branch L_young3\nL_young2:")
    if o["touch"]:
        a("    s_mov_b64 exec, 1")
        groups = [[], [], []]
        if "v" in o["touch"]: groups[0].append(sV)
        if "w" in o["touch"]: groups[0].append(sWo); groups[1] += [sWg, sWu]; groups[2].append(sWd)
        if "o" in o["touch"]: groups[2].append(sOut)
        for k, grp in enumerate(groups):
            a(f"    s_cmp_eq_u32 {sW}, {4 + k}\n    s_cbranch_scc0 L_tc{k}")
            for d in grp:
                a(f"    buffer_load_dword {vDum}, off, {d}, 0")
            a(f"L_tc{k}:")
        a("    s_mov_b64 exec, -1")
    if not o["b1first"]:
        a("    s_barrier")
    a("L_young3:")
    for i in range(16):
        kload(i)
    a("    s_branch L_vloads\nL_joined:")

    def wo_own(lo=0, hi=4):
        if lo == hi:
            return
        r64_addr(10)
        a(f"    s_lshr_b32 {sT3}, {sW}, 2\n    s_lshl_b32 {sT3}, {sT3}, 18")
        for m, so in list(enumerate((0, 4096, 32768, 36864)))[lo:hi]:
            a(f"    s_add_u32 {sT2}, {sT3}, {so}")
            dma(sWo, T_WO + 1024 * m, sT2)
    def late_loads(y=None):
        if o["woown"]:
            wo_own()
        else:
          r64_addr(10)
        for half in range(0 if o["woown"] else 2):
            for m, so in enumerate((0, 4096, 32768, 36864)):
                a(f"    s_mov_b32 {sT2}, {so + half * 262144}")
                dma(sWo, T_WO + 1024 * m + (half - (o["wo_at"] == "Y" or bool(y))) * 4 * WVS, sT2)
        if o["pf_at"] == "wo":
            pf_load(y)
    def pf_load(y=None):
        t = v(TT + 7)
        if not o["l2pf"]:
            return
        if o["wdlate"]:
            a(f"""    s_sub_u32 {sT2}, {sW}, 1
    s_lshl1_add_u32 {sT1}, {sIdx}, {sT2}
    s_cmp_lt_u32 {sT2}, 2
    s_cselect_b32 {sT1}, {sT1}, 96""")
        else:
          a(f"""    s_mul_i32 {sT1}, {sIdx}, 3                  ; waves 1..3 of every workgroup
    s_sub_u32 {sT2}, {sW}, {5 if ((o["wo_at"] == "Y" or y) and o["pf_at"] == "wo") else 1}
    s_add_u32 {sT1}, {sT1}, {sT2}
    s_add_u32 {sT1}, {sT1}, 1
    s_cmp_lt_u32 {sT2}, 3
    s_cselect_b32 {sT1}, {sT1}, 97
    s_sub_u32 {sT1}, 96, {sT1}""")
        a(f"""    s_cmp_lt_u32 {sT1}, 64
    s_cbranch_scc0 L_pf_d{y or ''}
    s_and_b32 {sT2}, {sT1}, 31
    s_mul_i32 {sT2}, {sT2}, {16*3584}
    s_mul_i32 {sT3}, {sG}, 448
    s_add_u32 {sT2}, {sT2}, {sT3}
    v_lshrrev_b32 {t}, 2, {vL}
    v_mul_u32_u24 {t}, 3584, {t}
    v_and_b32 {vA}, 3, {vL}
    v_lshl_add_u32 {t}, {vA}, 7, {t}
    s_cmp_lt_u32 {sT1}, 32
    s_cselect_b32 s40, s16, s18
    s_cselect_b32 s41, s17, s19
    s_mov_b32 s42, 1835008
    s_branch L_pf_go{y or ''}
L_pf_d{y or ''}:
    s_sub_u32 {sT2}, {sT1}, 64
    s_lshl_b32 {sT2}, {sT2}, 13
    s_mul_i32 {sT3}, {sG}, {224*1024}
    s_add_u32 {sT2}, {sT2}, {sT3}
    v_lshlrev_b32 {t}, 7, {vL}
    s_mov_b32 s40, s20
    s_mov_b32 s41, s21
    s_cmp_lt_u32 {sT1}, {0 if o["wdlate"] else 92}
    s_cselect_b32 s42, 1835008, 0
L_pf_go{y or ''}:
    s_mov_b32 s43, 0x20000
    buffer_load_dword {vDum}, {t}, {sWq}, {sT2} offen {wf}""")
    def wd_load():
        a(f"    v_lshl_add_u32 {vA}, {vDma}, 10, {vHalf}")
        dma(sWd, T_WD, "0")
    nD = 0

    def wo_read():
        for e in range(2):
            for ct in range(2):
                for j in range(2):
                    a(f"    ds_read_b64_tr_b16 {vr(WB+8*e+4*ct+2*j,2)}, {(vT0, vT1)[ct]} offset:{T_WO + 1024*(2*e+j)}")

    a(f"""    s_cmp_eq_u32 {sW}, {99 if o["x_nogather"] else 1}
    s_cbranch_scc0 L_h2
    v_mov_b32 {t5}, {QL + 1028}
    ds_read_b32 {vEp}, {t5}
    s_lshr_b32 {sT2}, {sO}, 4
    s_lshl_b32 {sT2}, {sT2}, 12
    s_add_u32 {sT2}, {sT2}, {W_Q1}
    v_lshl_add_u32 {t5}, {vL}, 4, {sT2}
L_hq:""")
    for i in range(4):
        a(f"    buffer_load_dwordx4 {vr(DD+4*i,4)}, {t5}, {sWS}, 0 offen offset:{1024*i} sc1")
    a("    s_waitcnt vmcnt(0) lgkmcnt(0)")
    for r in range(DD + 1, DD + 16, 2):
        a(f"    v_sub_u32 {v(r)}, {v(r)}, {vEp}")
    a(f"""    v_max3_u32 {CHK}, {v(DD+1)}, {v(DD+3)}, {v(DD+5)}
    v_max3_u32 {CHK}, {v(DD+7)}, {v(DD+9)}, {CHK}
    v_max3_u32 {CHK}, {v(DD+11)}, {v(DD+13)}, {CHK}
    v_max_u32 {CHK}, {v(DD+15)}, {CHK}
    v_cmp_lt_u32 vcc, 15, {CHK}""")
    spin_tail("L_hq")
    a(f"""    v_cmp_ne_u32 vcc, {sXcc}, {v(DD+1)}
    v_cmp_ne_u32 s[94:95], {sXcc}, {v(DD+9)}""")
    add_bf16x8(XO, [v(DD + 2 * i) for i in range(4)], [v(DD + 8 + 2 * i) for i in range(4)])
    a(f"""    v_cmp_ne_u32 s[8:9], {sXcc}, {v(DD+5)}
    s_or_b64 s[94:95], s[94:95], vcc
    v_cmp_ne_u32 vcc, {sXcc}, {v(DD+13)}
    v_bfe_u32 {t5}, {vL}, 1, 2
    v_lshlrev_b32 {t5}, 8, {t5}
    v_bfe_u32 {t4}, {vL}, 3, 2
    v_lshl_add_u32 {t5}, {t4}, 6, {t5}
    v_lshrrev_b32 {t4}, 5, {vL}
    v_lshl_add_u32 {t5}, {t4}, 4, {t5}
    v_and_b32 {t4}, 1, {vL}
    v_lshl_add_u32 {t5}, {t4}, 3, {t5}
    v_add_u32 {t5}, {QL}, {t5}
    s_or_b64 s[94:95], s[94:95], s[8:9]
    s_or_b64 vcc, vcc, s[94:95]
    s_cselect_b32 {sT1}, 1, 3
    v_mov_b32 {v(DD+4)}, {sT1}
    ds_write_b64 {t5}, {vr(XO,2)}
    ds_write_b64 {t5}, {vr(XO+2,2)} offset:32
    v_mov_b32 {t5}, {QL + 1024}
    ds_write_b32 {t5}, {v(DD+4)}""")
    stamp(4)
    def lead_flag():
        a(f"""    s_cmp_eq_u32 {sIdx}, 0
    s_cbranch_scc0 L_nolead
    s_lshl_b32 {sT1}, {sG}, 7
    s_add_u32 {sT1}, {sT1}, {W_GF}
    v_mov_b32 {v(DD)}, {vEp}
    v_mov_b32 {v(DD+1)}, {vEp}
    v_mov_b32 {v(DD+2)}, {vEp}
    v_mov_b32 {v(DD+3)}, {vEp}
    v_lshlrev_b32 {t5}, 4, {vL}
    s_mov_b64 exec, 0xff
    buffer_store_dwordx4 {vr(DD,4)}, {t5}, {sWS}, {sT1} offen sc1
    s_mov_b64 exec, -1
L_nolead:""")
    if not o["leadx"]:
        lead_flag()
    a("L_h2:")
    if o["klin"]:
        assert o["qkearly"]
        a(f"    s_cmp_lt_u32 {sW}, 4\n    s_cbranch_scc0 L_h3")
        if o["mk2"] == "w3":
            a(f"    s_cmp_eq_u32 {sW}, 3\n    s_cbranch_scc0 L_mk9")
            marks2(TT + 8)
            a("L_mk9:")
        kshuffle()
        if o["woown"]:
            a("    s_waitcnt vmcnt(0)")
        a("L_h3:")
    a(f"""    v_lshlrev_b32 {t0}, 4, {vL}
    v_add_u32 {t0}, {QL}, {t0}
    v_mov_b32 {t2}, {QL + 1024}
    s_cmp_lt_u32 {sW}, 4
    s_cbranch_scc1 L_qf""")
    if o["q1plain"]:
        a(f"    s_cmp_eq_u32 {sW}, 7\n    s_cbranch_scc1 L_q1wt\nL_q1wt9:")
        tail(f"""L_q1wt:
    ds_read_b32 {t1}, {t2}
    s_waitcnt lgkmcnt(0)
    v_cmp_eq_u32 vcc, 3, {t1}
    s_cbranch_vccnz L_q1wt9
    s_mov_b64 exec, 0xffff
    buffer_store_dwordx4 {vr(XO+16,4)}, {v(XO+20)}, {sWS}, 0 offen sc1
    s_mov_b64 exec, -1
    s_waitcnt vmcnt(0)
    s_branch L_q1wt9""")
    a(f"""    {"s_barrier" if o["wo_at"] == "X" else ""}""")
    if o["woown"]:
        wo_own(0, o["wox"])
    a(f"""
    {"s_cmp_eq_u32 " + sMode + ", 1" if o["qkearly"] else ""}
    {"s_cbranch_scc1 L_pv1b" if o["qkearly"] else ""}
L_qf:
    ds_read_b32 {t1}, {t2}
    s_waitcnt lgkmcnt(0)
    v_cmp_eq_u32 vcc, {77 if o["x_nogather"] else 0}, {t1}""")
    spin_tail("L_qf")
    if o["qkearly"]:
        tail("L_mid:")
        into(tail, kshuffle)
        tail(f"""    v_mov_b32 {t2}, {QL + 1024}
    ds_read_b32 {t1}, {t2}
    v_lshlrev_b32 {t0}, 4, {vL}
    v_add_u32 {t0}, {QL}, {t0}
    s_waitcnt lgkmcnt(0)
    v_cmp_eq_u32 vcc, 0, {t1}
    s_cbranch_vccnz L_vrest
    s_mov_b32 {sMode}, 1
    s_branch L_qf_ok""")
    a(f"""    ds_read_b128 {vr(XO,4)}, {t0}
    v_readfirstlane_b32 {sPure}, {t1}
    s_lshr_b32 {sPure}, {sPure}, 1
    s_waitcnt lgkmcnt(0)""")
    stamp(6)
    a("    s_branch L_attn")
    a(f"L_q:\n    v_xor_b32 {vA}, 32, {vTq}")
    for e in range(2):
        for ct in range(2):
            for jj in range(2):
                a(f"    ds_read_b64_tr_b16 {vr(WB+8*e+4*ct+2*jj,2)}, {(vTq, vA)[ct]} offset:{e*WVS + T_WQ + 1024*jj}")
    a(f"""    s_lshl_b32 {sT1}, {sKh}, 10
    v_add_u32 {v(TT+16)}, {sT1}, {vR4}
    v_add_u32 {v(TT+17)}, {sT1}, {vR4c}
    v_bfe_u32 {v(TT+15)}, {vL}, 2, 1
    v_lshlrev_b32 {v(TT+15)}, 10, {v(TT+15)}
    v_bfe_u32 {t0}, {vL}, 3, 2
    v_lshl_add_u32 {v(TT+15)}, {t0}, 5, {v(TT+15)}
    v_and_b32 {t0}, 3, {vL}
    v_lshl_add_u32 {v(TT+15)}, {t0}, 3, {v(TT+15)}
    v_lshrrev_b32 {t0}, 5, {vL}
    v_lshl_add_u32 {v(TT+15)}, {t0}, 2, {v(TT+15)}
    s_lshl_b32 {sT2}, {sW}, 7
    s_add_u32 {sT2}, {sT2}, {XB}
    v_add_u32 {v(TT+15)}, {sT2}, {v(TT+15)}
    s_lshr_b32 {sT1}, {sW}, 2
    s_mov_b32 {sL}, {LSTR}
    s_mov_b32 {sLO}, {OSTR}""")
    if "d" in o["hint"]:
        a(f"    s_cmp_eq_u32 {sW}, 0\n    s_cbranch_scc0 L_q0")
        hint_wait("L_hd")
        a("L_q0:")
    ackwait()
    a("    s_barrier")
    stamp(15)
    gather_x(aZ, "0", "L_pd", lambda: stamp(17), None, v(TT + 15))
    if not o["inl"]:
        a(f"    s_cmp_eq_u32 {sT1}, {sKh}\n    s_cbranch_scc0 L_ql")
    a(f"""    s_waitcnt lgkmcnt(1)
    v_mfma_f32_16x16x32_bf16 {vr(DD,4)}, {vr(WB,4)}, {vr(XO,4)}, 0
    v_mfma_f32_16x16x32_bf16 {vr(DD+4,4)}, {vr(WB+4,4)}, {vr(XO,4)}, 0
    v_mfma_f32_16x16x32_bf16 {vr(DD+8,4)}, {vr(XO,4)}, {vr(XO,4)}, 0
    s_waitcnt lgkmcnt(0)
    v_mfma_f32_16x16x32_bf16 {vr(DD,4)}, {vr(WB+8,4)}, {vr(XO+4,4)}, {vr(DD,4)}
    v_mfma_f32_16x16x32_bf16 {vr(DD+4,4)}, {vr(WB+12,4)}, {vr(XO+4,4)}, {vr(DD+4,4)}
    v_mfma_f32_16x16x32_bf16 {vr(DD+8,4)}, {vr(XO+4,4)}, {vr(XO+4,4)}, {vr(DD+8,4)}""")
    if not o["inl"]:
      tail(f"""L_ql:
    s_waitcnt lgkmcnt(1)
    v_mfma_f32_16x16x32_bf16 {vr(DD+8,4)}, {vr(XO,4)}, {vr(XO,4)}, 0
    s_waitcnt lgkmcnt(0)
    v_mfma_f32_16x16x32_bf16 {vr(DD+8,4)}, {vr(XO+4,4)}, {vr(XO+4,4)}, {vr(DD+8,4)}
    s_nop 6
    s_branch L_qs""")
    two_tile_write(RQ)
    a("L_qs:")
    stats_write(RQ)
    a(f"    s_cmp_eq_u32 {sW}, 0\n    s_cbranch_scc0 L_q2")
    S = two_tile_reduce(RQ, 4, v(TT + 16), v(TT + 17))
    pack16(DD + 8, S, v(DD + 6))
    execm(m16)
    local_store(f"buffer_store_dwordx4 {vr(DD+8,4)}, {pQ}, {sWS}, 0 offen", "L_sq")
    execm("-1")
    a(f"    s_cmp_eq_u32 {sG}, 0\n    s_cbranch_scc1 L_res2\nL_q2:")
    tail(f"""L_res2:
    ds_read_u16 {vRes}, {aRes}
    s_waitcnt lgkmcnt(0)
    v_lshlrev_b32 {vRes}, 16, {vRes}
    s_branch L_q2""")
    if o["aprio"] is not None:
        a(f"    s_cmp_lt_u32 {sW}, 4\n    s_cbranch_scc{o['aprio']} L_ap\n    s_setprio 1\nL_ap:")
    if o["qbar"]:
        a("    s_barrier")
    stamp(18)
    poll([(f"buffer_load_dwordx4 {vr(DD+4*i,4)}, {aQ2}, {sWS}, 0 offen offset:{1024*i} sc1", [v(DD + 4 * i + k) for k in range(4)]) for i in range(2)], "L_pq",
         after={0: lambda: [a(f"    v_lshlrev_b32 {v(TT+2*i)}, 16, {v(DD+i)}\n    v_and_b32 {v(TT+2*i+1)}, 0xffff0000, {v(DD+i)}") for i in range(4)]} if o["spec"] else None)
    stamp(19)
    if o["spec"]:
        for i in range(4):
            y = DD + 8 + 2 * (i & 1)
            a(f"""    v_lshlrev_b32 {v(y)}, 16, {v(DD+4+i)}
    v_and_b32 {v(y+1)}, 0xffff0000, {v(DD+4+i)}
    v_pk_add_f32 {vr(y,2)}, {vr(y,2)}, {vr(TT+2*i,2)}
    v_cvt_pk_bf16_f32 {v(XO+i)}, {v(y)}, {v(y+1)}""")
    else:
        add_bf16x8(XO, [v(DD + i) for i in range(4)], [v(DD + 4 + i) for i in range(4)])
    a("L_attn:")
    s = [v(TT + i) for i in range(4)]
    def qk(u, rho):
        t = (u + rho) & 3
        c = vr(DD + 4 * u, 4) if rho else "0"
        a(f"    v_mfma_f32_16x16x32_bf16 {vr(DD+4*u,4)}, {vr(KB+16*u+4*t,4)}, {vr(XO+4*rho,4)}, {c}")
    def rot(rho):
        for i in range(4):
            a(f"    v_mov_b32_dpp {v(XO+4*rho+i)}, {v(XO+i)} row_ror:{16-4*rho} {DPP}")
    def merge(u):
        for r in range(4):
            a(f"    v_mov_b32_dpp {s[r]}, {v(DD+4*u+r)} quad_perm:[0,1,2,3] row_mask:0xf bank_mask:{1<<u}")
    for u in (1, 2, 3):
        qk(u, 0); rot(u)
    for u in (1, 2, 3):
        for rho in (1, 2, 3):
            qk(u, rho)
    qk(0, 0); qk(0, 1); merge(1); qk(0, 2); merge(2); qk(0, 3); merge(3); merge(0)
    m, lsum, tx = v(TT + 4), v(TT + 5), v(TT + 6)
    a(f"""    v_max3_f32 {m}, {s[0]}, {s[1]}, {s[2]}
    v_max_f32 {m}, {m}, {s[3]}
    v_max_f32_dpp {m}, {m}, {m} row_ror:4 {DPP}
    v_max_f32_dpp {m}, {m}, {m} row_ror:8 {DPP}
    v_mov_b32 {tx}, {m}
    v_permlane16_swap_b32 {m}, {tx}
    v_max_f32 {m}, {m}, {tx}
    v_mov_b32 {tx}, {m}
    v_permlane32_swap_b32 {m}, {tx}
    v_max_f32 {m}, {m}, {tx}
    v_mul_f32 {m}, {m}, {vScale}""")
    for r in range(4):
        a(f"    v_fma_f32 {s[r]}, {s[r]}, {vScale}, -{m}")
    for r in range(4):
        a(f"    v_exp_f32 {s[r]}, {s[r]}")
    P = TT + 8
    a(f"""    s_cmp_eq_u32 {sL}, 0
    v_cvt_pk_bf16_f32 {v(P)}, {s[0]}, {s[1]}
    v_cvt_pk_bf16_f32 {v(P+1)}, {s[2]}, {s[3]}
    s_cbranch_scc1 L_pv1""")
    aE, aOd = DD, DD + 4
    def pv(n, out):
        c1 = vr(aE, 4) if n else "0"
        c2 = vr(aOd, 4) if n else "0"
        out(f"    v_mfma_f32_4x4x4_16b_bf16 {vr(aE,4)}, {vr(P,2)}, {vr(VB+4*n,2)}, {c1} cbsz:4 abid:{n}")
        out(f"    v_mfma_f32_4x4x4_16b_bf16 {vr(aOd,4)}, {vr(P,2)}, {vr(VB+4*n+2,2)}, {c2} cbsz:4 abid:{n}")
    lred = [f"v_pk_add_f32 {vr(TT,2)}, {vr(TT,2)}, {vr(TT+2,2)}",
            f"v_add_f32 {lsum}, {s[0]}, {s[1]}",
            f"v_add_f32_dpp {lsum}, {lsum}, {lsum} row_ror:4 {DPP}",
            f"v_add_f32_dpp {lsum}, {lsum}, {lsum} row_ror:8 {DPP}",
            f"v_mov_b32 {tx}, {lsum}",
            f"v_permlane16_swap_b32 {lsum}, {tx}",
            f"v_add_f32 {lsum}, {lsum}, {tx}",
            f"v_mov_b32 {tx}, {lsum}",
            f"v_permlane32_swap_b32 {lsum}, {tx}",
            f"v_add_f32 {lsum}, {lsum}, {tx}",
            f"ds_write_b64 {vMLw}, {vr(TT+4,2)}"]
    stampL(7)
    for n in range(16):
        pv(n, a)
        if n < 15:
            a("    " + (lred[n] if n < len(lred) else "s_nop 0"))
    a("    s_nop 2\nL_pv3:")
    tail("L_pv1:")
    for l in lred:
        tail("    " + l)
    if o["qkearly"]:
        tail(f"    s_cmp_eq_u32 {sMode}, 1\n    s_cbranch_scc1 L_vrest\nL_pv1b:")
    def perms(n):
        b = VB + 4 * n
        tail(f"    s_waitcnt vmcnt({min(63, 60 - 4*n + (o['wox'] if o['woown'] else 0))})")
        tail(f"    v_perm_b32 {v(b)}, {v(b+4)}, {v(b+2)}, {sPlo}")
        tail(f"    v_perm_b32 {v(b+1)}, {v(b+5)}, {v(b+3)}, {sPlo}")
        tail(f"    v_perm_b32 {v(b+2)}, {v(b+4)}, {v(b+2)}, {sPhi}")
        tail(f"    v_perm_b32 {v(b+3)}, {v(b+5)}, {v(b+3)}, {sPhi}")
    perms(0)
    for n in range(16):
        if n < 15:
            perms(n + 1)
        pv(n, tail)
    tail("    s_nop 2\n    s_branch L_pv3")
    stampL(8)
    if o["x_stop"] == 8:
        a(f"    s_cmp_lt_u32 {sW}, 4\n    s_cbranch_scc0 L_done\n    {'s_barrier' if o['wo_at'] == 'X' else ''}\n    s_branch L_done")
    if o["aprio"] is not None:
        a("    s_setprio 0")
    a(f"    s_or_b32 {sT1}, {sL}, {sW}\n    s_cmp_lt_u32 {sT1}, 4")
    for h in range(4):
        ad = vOw if h < 2 else vOw2
        a(f"    ds_write2_b32 {ad}, {v(aE+h)}, {v(aOd+h)} offset0:{(h&1)*128} offset1:{(h&1)*128+1}")
    a(f"""    s_cbranch_scc1 L_late
L_nolate:
    s_cmp_lt_u32 {sW}, 4
    s_waitcnt lgkmcnt(0)
    s_barrier
    s_cbranch_scc0 L_yw
    ds_read_b64 {vr(TT,2)}, {vMLr}""")
    main = a
    a = tail
    a(f"L_late:\n    v_mov_b32 {t5}, {QL + 1028}\n    ds_read_b32 {vEp}, {t5}")
    if o["wo_at"] == "X":
        a("    s_barrier")
        stamp(1)
        if o["xy"]:
            a(f"    s_cmp_lt_u32 {sXcc}, {o['xy']}\n    s_cbranch_scc1 L_xy1")
        late_loads()
        if o["leadx"]:
            a(f"    s_cmp_eq_u32 {sW}, 1\n    s_cbranch_scc0 L_nolead\n    s_waitcnt lgkmcnt(0)")
            lead_flag()
        if o["xy"]:
            a("L_xy1:")
    a(f"""    s_cmp_eq_u32 {sG}, 0
    s_cbranch_scc0 L_nolate
    ds_read_u16 {vRes}, {aRes}
    s_waitcnt lgkmcnt(0)
    v_lshlrev_b32 {vRes}, 16, {vRes}
    s_branch L_nolate""")
    gA, gV = v(TT + 16), v(TT + 15)
    if o["mk2"] in ("w3", "a7"):
        a(f"""L_yw:
    s_cmp_eq_u32 {sL}, 0
    s_cbranch_scc0 L_wo
    s_cmp_eq_u32 {sW}, 7
    s_cbranch_scc0 L_yw1
    v_and_b32 {gA}, 7, {vL}
    v_lshlrev_b32 {gA}, 7, {gA}
    v_add_u32 {gA}, {W_GF + 4}, {gA}
    buffer_load_dword {gV}, {gA}, {sWS}, 0 offen sc1
L_yw1:""")
        wo_own(o["wox"], 4)
        a("    s_branch L_wo")
        a(f"""L_gf:
    v_and_b32 {gA}, 7, {vL}
    v_lshlrev_b32 {gA}, 7, {gA}
    v_add_u32 {gA}, {W_GF + 4}, {gA}
    buffer_load_dword {gV}, {gA}, {sWS}, 0 offen sc1
    s_waitcnt vmcnt(0)
L_gf0:
    v_cmp_ne_u32 vcc, {gV}, {vEp}
    s_cbranch_vccz L_gf1
    s_sub_u32 {sCnt}, {sCnt}, 1
    s_cbranch_scc0 L_gf
    s_mov_b32 {sCnt}, 0
L_gf1:""")
        if o["mk2"] == "a7":
            marks2(DD + 12)
        a("    s_branch L_gf_ok")
    else:
        a("L_yw:")
        if o["woown"] and o["wox"] < 4:
            a(f"    s_cmp_eq_u32 {sL}, 0\n    s_cbranch_scc0 L_wo")
            wo_own(o["wox"], 4)
        if o["xy"]:
            a(f"    s_cmp_eq_u32 {sL}, 0\n    s_cbranch_scc0 L_wo\n    s_cmp_lt_u32 {sXcc}, {o['xy']}\n    s_cbranch_scc0 L_xy2")
            late_loads("y")
            a("L_xy2:")
        if o["wo_at"] == "Y":
            a(f"    s_cmp_eq_u32 {sL}, 0\n    s_cbranch_scc0 L_wo")
            stamp(1)
            late_loads()
        a(f"""    s_or_b32 {sT1}, {sL}, 7
    s_cmp_eq_u32 {sT1}, {sW}
    s_cbranch_scc0 L_wo""")
        slot_addrs()
        c0 = TT + 8
        for i in range(4):
            a(f"    v_mov_b32 {v(c0+i)}, -1")
        a(f"""    s_mov_b32 exec_lo, 0
    s_mov_b32 exec_hi, 0xff00ff00
    buffer_store_dwordx4 {vr(c0,4)}, {cF}, {sWS}, 0 offen sc1
    s_cmp_eq_u32 {sPure}, {1 if (o["clr2"] == "plain" and not o["force_slow"]) else 2}""")
        for k, fl in enumerate(("sc1", "")):
            a(f"""    {"s_cbranch_scc1 L_mk1" if k == 0 else "L_mk1:"}
    s_mov_b32 exec_lo, 0xff00ff00
    s_mov_b32 exec_hi, 0
    buffer_store_dwordx4 {vr(c0,4)}, {cF}, {sWS}, 0 offen {fl}
    s_mov_b64 exec, -1
    buffer_store_dwordx4 {vr(c0,4)}, {cO}, {sWS}, {sT3} offen {fl}
    buffer_store_dwordx4 {vr(c0,4)}, {cQ}, {sWS}, 0 offen {fl}
    {"s_branch L_mk2" if k == 0 else "L_mk2:"}""")
        if o["hint"]:
            a(f"""    s_lshl_b32 {sT1}, {sG}, 7
    s_add_u32 {sT1}, {sT1}, {W_HT}
    v_lshlrev_b32 {t0}, 10, {vL}
    s_mov_b64 exec, 15
    buffer_load_dword {vDum}, {t0}, {sWS}, {sT1} offen sc1
    s_mov_b64 exec, -1""")
        a(f"""    v_and_b32 {t0}, 7, {vL}
    v_lshlrev_b32 {t0}, 7, {t0}
    v_add_u32 {t0}, {W_GF + 4}, {t0}
L_gf:
    buffer_load_dword {t1}, {t0}, {sWS}, 0 offen sc1
    s_waitcnt vmcnt(0)
    v_cmp_ne_u32 vcc, {t1}, {vEp}
    s_cbranch_vccz L_wo
    s_sub_u32 {sCnt}, {sCnt}, 1
    s_cbranch_scc0 L_gf
    s_mov_b32 {sCnt}, 0
    s_branch L_wo""")
    a = main
    for i in range(8):
        a(f"    ds_read_b64 {vr(XO+2*i,2)}, {vOr} offset:{i*2048}")
    mm, ll, M, Lr, f = v(TT), v(TT + 1), v(TT + 2), v(TT + 3), v(TT + 4)
    a(f"""    s_waitcnt lgkmcnt(8)
    v_max_f32_dpp {M}, {mm}, {mm} row_ror:4 {DPP}
    v_max_f32_dpp {M}, {M}, {M} row_ror:2 {DPP}
    v_max_f32_dpp {M}, {M}, {M} row_ror:1 {DPP}
    v_sub_f32 {f}, {mm}, {M}
    v_exp_f32 {f}, {f}
    v_mul_f32 {Lr}, {f}, {ll}""")
    o0, o1 = v(TT + 5), v(TT + 6)
    lr2 = [f"v_add_f32_dpp {Lr}, {Lr}, {Lr} row_ror:4 {DPP}",
           f"v_add_f32_dpp {Lr}, {Lr}, {Lr} row_ror:2 {DPP}",
           f"v_add_f32_dpp {Lr}, {Lr}, {Lr} row_ror:1 {DPP}"]
    for i in range(8):
        op = "v_mul_f32_dpp" if i == 0 else "v_fmac_f32_dpp"
        if i in (0, 4):
            a(f"    s_waitcnt lgkmcnt({4 - i})")
        a(f"    {op} {o0}, {f}, {v(XO+2*i)} row_newbcast:{i} {DPP}")
        a(f"    {op} {o1}, {f}, {v(XO+2*i+1)} row_newbcast:{i} {DPP}")
        if i < 3:
            a("    " + lr2[i])
    a(f"    v_cvt_pk_bf16_f32 {o0}, {o0}, {o1}")
    local_store(f"buffer_store_dword {o0}, {pO}, {sWS}, {sLO} offen\n    s_mov_b64 exec, 1\n    buffer_store_dwordx2 {vr(TT+2,2)}, {pML}, {sWS}, {sL} offen", "L_so")
    execm("-1")
    if o["inl"]:
        a("L_wo:\n    s_barrier")
    else:
        a(f"L_wo:\n    s_cmp_eq_u32 {sL}, 0\n    s_cbranch_scc1 L_wo0\nL_wo1:\n    s_barrier")
    aloads = [(f"buffer_load_dwordx2 {vr(TT,2)}, {aML}, {sWS}, {sL} offen sc1", [v(TT), v(TT + 1)]),
              (f"buffer_load_dwordx4 {vr(XO,4)}, {aO}, {sWS}, {sLO} offen sc1", [v(XO + i) for i in range(4)]),
              (f"buffer_load_dwordx4 {vr(XO+4,4)}, {aO}, {sWS}, {sLO} offen offset:1024 sc1", [v(XO + 4 + i) for i in range(4)])]
    if o["inl"]:
        pass
    elif o["aover"]:
        tail("L_wo0:\n    s_barrier")
        if o["pf_at"] == "poll":
            into(tail, poll, aloads, "L_pa0", pf_load, None, 1, "L_pa1")
        into(tail, poll, aloads, "L_pa1")
        tail("    s_barrier")
        into(tail, wo_read)
        tail("    s_branch L_pa_ok")
    elif o["pf_at"] == "poll":
        tail("L_wo0:\n    s_waitcnt vmcnt(0)\n    s_barrier")
        into(tail, poll, aloads, "L_pa0", lambda: (pf_load(), wo_read()), None, 1, "L_pa")
    else:
        tail("L_wo0:\n    s_waitcnt vmcnt(0)\n    s_branch L_wo1")
    stampL(9)
    mm, ll, M, e_, Lt = v(TT), v(TT + 1), v(TT + 2), v(TT + 3), v(TT + 4)
    def wo_fac():
        a(f"""    v_max_f32_dpp {M}, {mm}, {mm} row_ror:8 {DPP}
    v_max_f32_dpp {M}, {M}, {M} row_ror:4 {DPP}
    v_max_f32_dpp {M}, {M}, {M} row_ror:2 {DPP}
    v_max_f32_dpp {M}, {M}, {M} row_ror:1 {DPP}
    v_sub_f32 {e_}, {mm}, {M}
    v_exp_f32 {e_}, {e_}
    v_mul_f32 {Lt}, {e_}, {ll}""")
    poll(aloads, "L_pa", wo_read, after={0: wo_fac} if o["spec"] else None)
    if o["inl"]:
        a(f"    s_cmp_eq_u32 {sL}, 0\n    s_cbranch_scc0 L_pa2\n    {'' if o['woown'] else 's_barrier'}")
        wo_read()
        if o["mk2"] in ("w3", "a7"):
            a(f"    s_cmp_eq_u32 {sW}, 7\n    s_cbranch_scc1 L_gf0\nL_gf_ok:")
        if o["gue"]:
            a(f"""    s_cmp_lt_u32 {sIdx}, 14
    s_cbranch_scc0 L_pa2
    v_mul_u32_u24 {vA}, 3584, {vDma}
    v_add_u32 {vA}, {vA}, {vHalf}
    s_mov_b32 {sT1}, {32*3584}""")
            for srdn, off, so in ((sWg, T_FF, "0"), (sWg, T_FF + 1024, sT1), (sWu, T_FF + 2048, "0"), (sWu, T_FF + 3072, sT1))[:o["gue"]]:
                dma(srdn, off, so)
        a("L_pa2:")
    stampL(10)
    if o["pf_at"] == "afterA" or o["wd_at"] == "afterA":
        a(f"    s_cmp_eq_u32 {sL}, 0\n    s_cbranch_scc1 L_wo2a\nL_wo2:")
        tail("L_wo2a:")
        if o["pf_at"] == "afterA":
            into(tail, pf_load)
        if o["wd_at"] == "afterA":
            into(tail, wd_load)
        tail("    s_branch L_wo2")
    z0, z1 = v(TT + 5), v(TT + 6)
    if o["spec"]:
        a(f"""    s_waitcnt lgkmcnt(0)
    v_mfma_f32_16x16x32_bf16 {vr(DD,4)}, {vr(XO,4)}, {vr(WB,4)}, 0
    v_add_f32_dpp {Lt}, {Lt}, {Lt} row_ror:8 {DPP}
    v_mfma_f32_16x16x32_bf16 {vr(DD,4)}, {vr(XO+4,4)}, {vr(WB+8,4)}, {vr(DD,4)}
    v_mfma_f32_16x16x32_bf16 {vr(DD+4,4)}, {vr(XO,4)}, {vr(WB+4,4)}, 0
    v_add_f32_dpp {Lt}, {Lt}, {Lt} row_ror:4 {DPP}
    v_mfma_f32_16x16x32_bf16 {vr(DD+4,4)}, {vr(XO+4,4)}, {vr(WB+12,4)}, {vr(DD+4,4)}
    s_cmp_eq_u32 {sW}, 0
    v_add_f32_dpp {Lt}, {Lt}, {Lt} row_ror:2 {DPP}
    s_nop 1
    v_add_f32_dpp {Lt}, {Lt}, {Lt} row_ror:1 {DPP}
    v_rcp_f32 {Lt}, {Lt}""")
        for z, D in ((z0, DD), (z1, DD + 4)):
            for r in range(4):
                op = "v_mul_f32_dpp" if r == 0 else "v_fmac_f32_dpp"
                a(f"    {op} {z}, {e_}, {v(D+r)} row_newbcast:{r} {DPP}")
        a(f"""    v_permlane32_swap_b32 {z0}, {z1}
    v_add_f32 {z0}, {z0}, {z1}
    v_mul_f32 {z1}, {z0}, {Lt}
    v_mul_f32 {z0}, {z0}, {Lt}
    v_permlane16_swap_b32 {z0}, {z1}
    v_add_f32 {z0}, {z0}, {z1}
    ds_write_b32 {vW4}, {z0} offset:{RW - RQ}
    s_waitcnt lgkmcnt(0)
    s_barrier
    s_cbranch_scc0 L_roles""")
    else:
        mm, ll, M, e_, Lt = v(TT), v(TT + 1), v(TT + 2), v(TT + 3), v(TT + 4)
        a(f"""    v_max_f32_dpp {M}, {mm}, {mm} row_ror:8 {DPP}
    s_waitcnt lgkmcnt(0)
    v_mfma_f32_16x16x32_bf16 {vr(DD,4)}, {vr(XO,4)}, {vr(WB,4)}, 0
    v_max_f32_dpp {M}, {M}, {M} row_ror:4 {DPP}
    v_mfma_f32_16x16x32_bf16 {vr(DD+4,4)}, {vr(XO,4)}, {vr(WB+4,4)}, 0
    v_mfma_f32_16x16x32_bf16 {vr(DD,4)}, {vr(XO+4,4)}, {vr(WB+8,4)}, {vr(DD,4)}
    v_max_f32_dpp {M}, {M}, {M} row_ror:2 {DPP}
    v_mfma_f32_16x16x32_bf16 {vr(DD+4,4)}, {vr(XO+4,4)}, {vr(WB+12,4)}, {vr(DD+4,4)}
    s_nop 0
    v_max_f32_dpp {M}, {M}, {M} row_ror:1 {DPP}
    v_sub_f32 {e_}, {mm}, {M}
    v_exp_f32 {e_}, {e_}
    v_mul_f32 {Lt}, {e_}, {ll}""")
        z0, z1 = v(TT + 5), v(TT + 6)
        for r in range(4):
            op = "v_mul_f32_dpp" if r == 0 else "v_fmac_f32_dpp"
            a(f"    {op} {z0}, {e_}, {v(DD+r)} row_newbcast:{r} {DPP}")
            a(f"    {op} {z1}, {e_}, {v(DD+4+r)} row_newbcast:{r} {DPP}")
            a(f"    v_add_f32_dpp {Lt}, {Lt}, {Lt} row_ror:{8 >> r} {DPP}")
        a(f"""    s_cmp_eq_u32 {sW}, 0
    v_permlane32_swap_b32 {z0}, {z1}
    v_rcp_f32 {Lt}, {Lt}
    v_add_f32 {z0}, {z0}, {z1}
    v_mov_b32 {z1}, {z0}
    v_permlane16_swap_b32 {z0}, {z1}
    v_add_f32 {z0}, {z0}, {z1}
    v_mul_f32 {z0}, {z0}, {Lt}
    ds_write_b32 {vW4}, {z0} offset:{RW - RQ}
    s_waitcnt lgkmcnt(0)
    s_barrier
    s_cbranch_scc0 L_roles""")
    red8(vR4, (RW - RQ) // 256, TT)
    sum8(v(TT + 8), TT, extra=vRes)
    quad4(TT + 8)
    execm(mY)
    a(f"    buffer_store_dwordx4 {vr(TT+8,4)}, {pY}, {sWS}, {sL} offen sc1")
    if "b" in o["hint"]:
        execm("1")
        hint_post(0)
    execm("-1")
    a(f"""L_roles:
    s_cmp_lt_u32 {sIdx}, 14
    s_cbranch_scc0 L_nogu""")
    tail("L_nogu:")
    if o["wd_at"] == "afterY":
        tail(f"    s_cmp_eq_u32 {sL}, 0\n    s_cbranch_scc0 L_dn")
        if o["wdlate"]:
            t = v(TT + 7)
            tail(f"""    s_sub_u32 {sT1}, {sIdx}, 14
    s_sub_u32 {sT2}, {sW}, 1
    s_lshl1_add_u32 {sT1}, {sT1}, {sT2}
    s_cmp_lt_u32 {sT2}, 2
    s_cselect_b32 {sT1}, {sT1}, 28
    s_cmp_lt_u32 {sT1}, 28
    s_cselect_b32 s42, 1835008, 0
    s_lshl_b32 {sT2}, {sT1}, 13
    s_mul_i32 {sT3}, {sG}, {224*1024}
    s_add_u32 {sT2}, {sT2}, {sT3}
    v_lshlrev_b32 {t}, 7, {vL}
    s_mov_b32 s40, s20
    s_mov_b32 s41, s21
    s_mov_b32 s43, 0x20000
    buffer_load_dword {vDum}, {t}, {sWq}, {sT2} offen {wf}
    s_waitcnt vmcnt(0)
    s_barrier""")
        into(tail, wd_load)
    if o["clr2"] == "warm2":
        tail(f"""    s_cmp_eq_u32 {sW}, 7
    s_cbranch_scc0 L_nw2""")
        into(tail, slot_addrs)
        for k in range(2):
            tail(f"""    s_mov_b32 exec_lo, {"0x11111111" if o["w64"] else "0x01010101"}
    s_mov_b32 exec_hi, {"0x11111111" if o["w64"] else "0x01010101"}
    buffer_load_dword {vDum}, {cO}, {sWS}, {sT3} offen sc1
    s_mov_b64 exec, {"17" if o["w64"] else "1"}
    buffer_load_dword {vDum}, {cQ}, {sWS}, 0 offen sc1
    s_mov_b32 exec_lo, {"0x11001100" if o["w64"] else "0x01000100"}
    buffer_load_dword {vDum}, {cF}, {sWS}, 0 offen sc1
    s_mov_b64 exec, -1""")
            if k == 0:
                tail(f"""    s_cmp_lt_u32 {sIdx}, 28
    s_cbranch_scc0 L_dn
    v_subrev_u32 {cO}, {14*1024}, {cO}
    v_subrev_u32 {cQ}, {14*128}, {cQ}
    v_subrev_u32 {cF}, {14*128}, {cF}""")
        tail("    s_branch L_dn\nL_nw2:")
    tail(f"""    s_xor_b32 {sT1}, s2, 255
    s_or_b32 {sT1}, {sT1}, {sL}
    s_or_b32 {sT1}, {sT1}, {sW}
    s_cbranch_scc1 L_dn
    ; every workgroup has read the epoch word by now: leave this launch's tag for the next one
    v_mov_b32 {t5}, {QL + 1028}
    ds_read_b32 {v(DD)}, {t5}
    v_lshlrev_b32 {t5}, 4, {vL}
    s_waitcnt lgkmcnt(0)
    v_mov_b32 {v(DD+1)}, {v(DD)}
    v_mov_b32 {v(DD+2)}, {v(DD)}
    v_mov_b32 {v(DD+3)}, {v(DD)}
    s_mov_b64 exec, 0xff
    buffer_store_dwordx4 {vr(DD,4)}, {t5}, {sWS}, 0 offen sc1
    s_mov_b64 exec, -1""")
    tail("    s_branch L_dn")
    a(f"    s_cmp_eq_u32 {sL}, 0\n    s_cbranch_scc1 L_gu0")
    tail(f"""L_gu0:
    v_mul_u32_u24 {vA}, 3584, {vDma}
    v_add_u32 {vA}, {vA}, {vHalf}
    s_mov_b32 {sT1}, {32*3584}""")
    for srdn, off, so in ((sWg, T_FF, "0"), (sWg, T_FF + 1024, sT1), (sWu, T_FF + 2048, "0"), (sWu, T_FF + 3072, sT1))[o["gue"]:]:
        into(tail, dma, srdn, off, so)
    wd_here = o["wd_at"] == "afterY" and not o["wdb"]
    if wd_here:
        into(tail, wd_load)
    if o["ack"]:
        tail(f"    s_waitcnt vmcnt({4 - o['gue'] + wd_here})")
    tail("    s_branch L_gu1")
    ackwait()
    a("L_gu1:")
    if "b" in o["hint"]:
        a(f"    s_cmp_eq_u32 {sW}, 0\n    s_cbranch_scc0 L_gu2")
        hint_wait("L_hb")
        a("L_gu2:")
    a("    s_barrier")
    stampL(11)
    def gu_mid():
        for i in range(4):
            tr_read(WB + 4 * i, T_FF + 1024 * i)
    def gu_got():
        stampL(12)
    gather_x(aY, sL, "L_pb", gu_got, gu_mid)
    if o["wd_at"] == "afterY" and o["wdb"] and o["inl"]:
        wd_load()
    elif o["wd_at"] == "afterY" and o["wdb"]:
        a(f"    s_cmp_eq_u32 {sL}, 0\n    s_cbranch_scc1 L_wdb\nL_wdb1:")
        tail("L_wdb:")
        into(tail, wd_load)
        tail("    s_branch L_wdb1")
    a(f"""    s_waitcnt lgkmcnt(1)
    v_mfma_f32_16x16x32_bf16 {vr(DD,4)}, {vr(WB,4)}, {vr(XO,4)}, 0
    v_mfma_f32_16x16x32_bf16 {vr(DD+4,4)}, {vr(WB+8,4)}, {vr(XO,4)}, 0
    v_mfma_f32_16x16x32_bf16 {vr(DD+8,4)}, {vr(XO,4)}, {vr(XO,4)}, 0
    s_waitcnt lgkmcnt(0)
    v_mfma_f32_16x16x32_bf16 {vr(DD,4)}, {vr(WB+4,4)}, {vr(XO+4,4)}, {vr(DD,4)}
    v_mfma_f32_16x16x32_bf16 {vr(DD+4,4)}, {vr(WB+12,4)}, {vr(XO+4,4)}, {vr(DD+4,4)}
    v_mfma_f32_16x16x32_bf16 {vr(DD+8,4)}, {vr(XO+4,4)}, {vr(XO+4,4)}, {vr(DD+8,4)}
    s_add_u32 {sT1}, {sL}, {W_H}
    s_cmp_eq_u32 {sW}, 0""")
    two_tile_write(RG)
    stats_write(RG)
    a("    s_cbranch_scc0 L_dn")
    S = two_tile_reduce(RG, 8, vR4, vR4c)
    U = v(DD + 6)
    a(f"""    v_mov_b32 {U}, {S}
    v_permlane32_swap_b32 {S}, {U}
    v_max_f32 {S}, 0, {S}
    v_mul_f32 {S}, {S}, {U}""")
    pack16(DD + 8, S, U)
    execm(m8)
    local_store(f"buffer_store_dwordx4 {vr(DD+8,4)}, {pS}, {sWS}, {sT1} offen", "L_sh")
    execm("-1")
    stampL(13)
    a(f"""L_dn:
    s_cmp_eq_u32 {sW}, 7
    s_cbranch_scc1 L_dn7
    s_or_b32 {sT1}, {sW}, {sG}
    s_cmp_eq_u32 {sT1}, 0
    s_cbranch_scc1 L_x1
L_dn0:""")
    a = tail
    a("L_dn7:\n    s_waitcnt vmcnt(0)")
    if o["clr2"] == "warm":
        a(f"""    s_cmp_eq_u32 {sL}, 0
    s_cbranch_scc0 L_dn1
    s_mov_b32 {sT3}, {OSTR}
    s_mov_b64 exec, {m16}
    buffer_load_dword {vDum}, {cO}, {sWS}, {sT3} offen sc1
    s_mov_b64 exec, 1
    buffer_load_dword {vDum}, {cQ}, {sWS}, 0 offen sc1
    s_mov_b32 exec_lo, 0x01000100
    buffer_load_dword {vDum}, {cF}, {sWS}, 0 offen sc1
    s_mov_b64 exec, -1""")
    a("    s_branch L_dn1")
    a("L_x1:\n    s_waitcnt vmcnt(0)")
    sum_cols(aX1, sL, "L_pr", vX1)
    a(f"""    v_cvt_pk_bf16_f32 {vX1}, {vX1}, {vX1}
    v_and_b32 {vX1}, 0xffff0000, {vX1}
    s_branch L_dn0""")
    a = main
    a("    s_waitcnt vmcnt(0)")
    tr_read(WB, T_WD)
    execm(mC2)
    poll([(f"buffer_load_dwordx4 {vr(XO,4)}, {aH}, {sWS}, {sL} offen sc1", [v(XO + i) for i in range(4)])], "L_pc2")
    execm("-1")
    stampL(14)
    a(f"""    s_waitcnt lgkmcnt(0)
    v_mfma_f32_16x16x32_bf16 {vr(DD,4)}, {vr(WB,4)}, {vr(XO,4)}, 0
    ds_write_b128 {vWd}, {vr(DD,4)} offset:{RD - RQ}
    s_waitcnt lgkmcnt(0)
L_dn1:
    s_cmp_eq_u32 {sW}, 0
    s_barrier
    s_cbranch_scc0 L_dn2""")
    red8(vR4, (RD - RQ) // 256, TT)
    sum8(v(TT + 8), TT, extra=vX1)
    quad4(TT + 8)
    execm(mZ)
    a(f"    buffer_store_dwordx4 {vr(TT+8,4)}, {pZ}, {sWS}, {sL} offen sc1")
    if "d" in o["hint"] or "f" in o["hint"]:
        execm("1")
        hint_post(1)
    execm("-1")
    a(f"L_dn2:\n    s_cmp_eq_u32 {sL}, 0\n    s_cbranch_scc1 L_q")
    a(f"""    s_and_b32 {sT1}, {sIdx}, 7
    s_xor_b32 {sT1}, {sT1}, {sG}
    s_or_b32 {sT1}, {sT1}, {sW}
    s_cbranch_scc1 L_done""")
    if "f" in o["hint"]:
        hint_wait("L_hf")
    ackwait()
    stamp(31)
    sum_cols(aFin, sL, "L_pf", v(DD))
    if o["x_pad"] == "loop":
        a(f"    s_mov_b32 {sT1}, 0\nL_pad:")
        for i in range(62):
            a(f"    v_add3_u32 {v(TT)}, {v(TT)}, {v(TT+1)}, {v(TT+2)}")
        a(f"    s_add_u32 {sT1}, {sT1}, 1\n    s_cmp_lt_u32 {sT1}, 16\n    s_cbranch_scc1 L_pad")
    if o["x_pad"] == "line":
        for i in range(1024):
            a(f"    v_add3_u32 {v(TT)}, {v(TT)}, {v(TT+1)}, {v(TT+2)}")
    if o["x_pad"] == "far":
        a("    s_branch L_far\nL_farb:")
    if o["bias"]:
        a(f"    v_add_f32 {v(DD)}, {f32(o['bias'])}, {v(DD)}")
    pack16(DD + 4, v(DD), v(DD + 1))
    execm(m8)
    a(f"    buffer_store_dwordx4 {vr(DD+4,4)}, {pOut}, {sOut}, 0 offen")
    stamp(20)
    a("L_done:")
    if o["diag"]:
        execm("-1")
        stamp(21)
        a(f"""    s_waitcnt lgkmcnt(0)
    v_writelane_b32 {vStamp}, s98, 21
    v_writelane_b32 {vStamp}, {sPure}, 32
    v_writelane_b32 {vStamp}, {sCnt}, 33
    s_lshl_b32 {sT1}, s2, 3
    s_add_u32 {sT1}, {sT1}, {sW}
    s_lshl_b32 {sT1}, {sT1}, 8
    s_add_u32 {sT1}, {sT1}, {W_DIAG}
    buffer_store_dword {vStamp}, {aV}, {sWS}, {sT1} offen""")
        if o["x_dbg"]:
            a(f"""    s_mov_b32 s40, s24
    s_mov_b32 s41, s25
    s_mov_b32 s42, 256
    s_mov_b32 s43, 0x20000
    v_readlane_b32 {sT1}, {vStamp}, 0
    s_not_b32 {sT2}, {sT1}
    v_mov_b32 {v(TT)}, 0
    v_writelane_b32 {v(TT)}, {sT2}, 0""")
            for n, k in enumerate(o["x_dbg"]):
                a(f"    v_readlane_b32 {sT1}, {vStamp}, {k}\n    s_nop 3\n    v_writelane_b32 {v(TT)}, {sT1}, {n+1}")
            a(f"    s_mov_b64 exec, 0xffff\n    buffer_atomic_umax {v(TT)}, {aV}, s[40:43], 0 offen")
    a("L_end:\n    s_endpgm")
    a(tail.text().rstrip("\n"))
    a(tail2.text().rstrip("\n"))
    a("L_codeend:")
    if o["x_pad"] == "far":
        a("    s_endpgm\nL_far:")
        for i in range(1024):
            a(f"    v_add3_u32 {v(TT)}, {v(TT)}, {v(TT+1)}, {v(TT+2)}")
        a("    s_branch L_farb")
    body, nops = hazard.fix(a.text())
    return body


HEAD = open("interleave_layers__gqa_block_cached__glu_gated_reglu__decode.s.ref").read().split("; Override")[0]

DESC = """;
; One persistent launch: 256 workgroups (one per CU) x 8 waves. Workgroup id = 8*idx + g, idx = 16*b + s.
; Per layer: q (32 columns x half of the rows per workgroup, two partial sums) -> scores, true max per 64 keys,
;   P V -> partial O, m, l -> output projection with the exact split-softmax weights (32 columns per workgroup)
;   -> Y partials over g -> gate / up (14 workgroups per group, 16 hidden columns each) -> h
; Hand-offs go through d_ws. Every slot is first marked with all-ones words by this launch; a reader repeats its
;   loads until no word carries the mark. The first q pieces and the per-group flags carry a tag derived from a word
;   found in d_ws (it only tells this launch's words from an earlier launch's). Stores are write-through (sc1) except
;   between workgroups that have all reported the same XCC id, where a plain store reaches the shared L2.
"""

def write(path, **kw):
    body = gen(**kw)
    txt = kernel_file(NAME, body, 256, 512, LDS_BYTES, vgpr=256, accum=256, sgpr=102, comment=HEAD + DESC)
    open(path, "w").write(txt)
    build(path, NAME)
    return path

if __name__ == "__main__":
    write("main_diag.s", diag=True)
    write("main.s")
    print("LDS", LDS_BYTES)
```
